```python
import torch

def _softmax(x, axis=-1):
    return torch.softmax(x, dim=axis)
def _gelu(x):
    return torch.nn.functional.gelu(x, approximate="tanh")
def _silu(x):
    return torch.nn.functional.silu(x)
def _sigmoid(x):
    return torch.sigmoid(x)
def _layernorm(x, axis=-1, eps=1e-5):
    m = x.mean(dim=axis, keepdim=True)
    v = x.var(dim=axis, keepdim=True, unbiased=False)
    return (x - m) / torch.sqrt(v + eps)
def _scatter_add(tgt, idx, src, axis=0):
    return tgt.clone().index_add_(axis, idx, src)
def _segment_sum(src, seg, n):
    out = torch.zeros((n,) + src.shape[1:], dtype=src.dtype)
    return out.index_add_(0, seg, src)
def _pad(x, pw):
    flat = tuple(v for pair in reversed(pw) for v in pair)
    return torch.nn.functional.pad(x, flat)

kernel_name = 'standalone__geglu_ffn__sampling'

def setup_inputs():

    _w = (lambda a: (lambda t: t.to(torch.bfloat16) if t.is_floating_point() else t)(torch.as_tensor(a)))
    B, S, D, F = 32, 32, 576, 4608
    return {
        "x": _w((lambda *s: torch.randn(*s, dtype=torch.bfloat16) * 0.05)(B, S, D)),
        "w_gate": _w((lambda *s: torch.randn(*s, dtype=torch.bfloat16) * 0.05)(D, F)),
        "w_up": _w((lambda *s: torch.randn(*s, dtype=torch.bfloat16) * 0.05)(D, F)),
        "w_down": _w((lambda *s: torch.randn(*s, dtype=torch.bfloat16) * 0.05)(F, D)),
    }

def reference(x, w_gate, w_up, w_down):
    return (_gelu(x @ w_gate) * (x @ w_up)) @ w_down
```

```python
import sys, struct
STAMP = "--stamp" in sys.argv
out = []
def e(s=""): out.append(s)
def f2u(x): return "0x%08x" % struct.unpack("<I", struct.pack("<f", x))[0]

X_BYTES = 1024*576*2
W_BYTES = 576*4608*2
H_OFF = 0
H_BYTES = 1024*4608*2
P_OFF = 0x1000000
P_STRIDE = 1024*576*4
ST_OFF = 0x4000000

def header():
    e("; @launch kernel=gemm1_kernel grid=(256,1,1) block=(512,1,1) lds=160128")
    e("; @launch kernel=gemm2_kernel grid=(256,1,1) block=(512,1,1) lds=147456")
    e("; @launch kernel=reduce_kernel grid=(576,1,1) block=(256,1,1) lds=0")
    e('.amdgcn_target "amdgcn-amd-amdhsa--gfx950"')
    e(".text")

def kstart(name):
    e(f".globl {name}")
    e(".p2align 8")
    e(f".type {name},@function")
    e(f"{name}:")

def kdesc(name, vgpr, sgpr=102):
    e('.section .rodata,"a"')
    e(".p2align 6")
    e(f".amdhsa_kernel {name}")
    e(f"  .amdhsa_next_free_vgpr {vgpr}")
    e(f"  .amdhsa_next_free_sgpr {sgpr}")
    e(f"  .amdhsa_accum_offset {(vgpr+3)//4*4}")
    e("  .amdhsa_group_segment_fixed_size 0")
    e("  .amdhsa_kernarg_size 56")
    e("  .amdhsa_user_sgpr_count 2")
    e("  .amdhsa_user_sgpr_kernarg_segment_ptr 1")
    e("  .amdhsa_system_sgpr_workgroup_id_x 1")
    e(".end_amdhsa_kernel")
    e(".text")

def srd(d, lo, hi, nbytes):
    e(f"  s_mov_b32 s{d}, {lo}")
    e(f"  s_mov_b32 s{d+1}, {hi}")
    e(f"  s_mov_b32 s{d+2}, {nbytes}")
    e(f"  s_mov_b32 s{d+3}, 0x00020000")

def stamp_setup(kern, s_wv):
    if not STAMP: return
    e(f"  s_add_u32 s92, s12, {ST_OFF + kern*0x100000}")
    e(f"  s_addc_u32 s93, s13, 0")
    e(f"  s_mov_b32 s94, 0x100000")
    e(f"  s_mov_b32 s95, 0x00020000")
    e(f"  s_lshl_b32 s96, s2, 3")
    e(f"  s_add_u32 s96, s96, {s_wv}")
    e(f"  s_lshl_b32 s96, s96, 7")
nst = [0]
def stamp(idx):
    if not STAMP: return
    e(f"  s_memrealtime s[{60+2*idx}:{61+2*idx}]")
def stamp_flush(n):
    if not STAMP: return
    e("  s_waitcnt lgkmcnt(0)")
    e("  v_mov_b32 v250, 0")
    for i in range(n):
        e(f"  v_mov_b32 v252, s{60+2*i}")
        e(f"  v_mov_b32 v253, s{61+2*i}")
        e(f"  buffer_store_dwordx2 v[252:253], v250, s[92:95], s96 offen offset:{i*8}")
        e("  s_nop 1")

def interleave(mfmas, others, lead=0):
    n = len(mfmas)
    o = list(others)
    per = 3
    for i, m in enumerate(mfmas):
        e(m)
        for _ in range(per):
            if o: e(o.pop(0))
    while o: e(o.pop(0))

def gemm1():
    name = "gemm1_kernel"
    kstart(name)
    SLOT = 53376; UPOFF = 18432+128; XOFF = 18432*2+128
    e("  s_cmp_ge_u32 s2, 256")
    e("  s_cbranch_scc1 g1_end")
    stamp(0)
    e("  s_load_dwordx4 s[4:7], s[0:1], 0")
    e("  s_load_dwordx4 s[8:11], s[0:1], 16")
    e("  s_load_dwordx2 s[12:13], s[0:1], 48")
    e("  v_lshrrev_b32 v1, 6, v0")
    e("  v_and_b32 v0, 63, v0")
    e("  v_readfirstlane_b32 s14, v1")
    e("  s_and_b32 s15, s2, 7")
    e("  s_lshr_b32 s16, s2, 3")
    e("  s_lshr_b32 s17, s16, 2")
    e("  s_and_b32 s16, s16, 3")
    e("  s_lshl_b32 s15, s15, 2")
    e("  s_add_u32 s15, s15, s16")
    e("  s_and_b32 s18, s14, 3")
    e("  s_lshr_b32 s19, s14, 2")
    e("  s_waitcnt lgkmcnt(0)")
    stamp_setup(0, "s14")
    srd(20, "s4", "s5", X_BYTES)
    e("  s_bitcmp1_b32 s14, 1")
    e("  s_cselect_b32 s24, s8, s6")
    e("  s_cselect_b32 s25, s9, s7")
    e(f"  s_mov_b32 s26, {W_BYTES}")
    e("  s_mov_b32 s27, 0x00020000")
    e(f"  s_cselect_b32 s32, {UPOFF}, 0")
    srd(28, "s12", "s13", H_BYTES)
    e("  s_and_b32 s33, s14, 1")
    e("  s_mul_i32 s34, s33, 7")
    e("  s_add_u32 s34, s34, 4")
    e("  s_lshl_b32 s33, s33, 1")
    e("  s_cmp_eq_u32 s19, 0")
    e("  s_cselect_b32 s33, s33, s34")
    e("  s_lshl_b32 s34, s33, 10")
    e("  s_add_u32 s32, s32, s34")
    e("  s_mul_i32 s35, s15, 288")
    e("  s_lshl_b32 s34, s33, 6")
    e("  s_movk_i32 s36, 3641")
    e("  s_movk_i32 s37, 9216")
    for i in range(7):
        e(f"  v_add_u32 v10, s34, v0")
        if i: e(f"  v_add_u32 v10, {64*i}, v10")
        e("  v_mul_lo_u32 v11, v10, s36")
        e("  v_lshrrev_b32 v11, 16, v11")
        e("  v_mul_u32_u24 v12, 18, v11")
        e("  v_sub_u32 v12, v10, v12")
        e("  v_mul_lo_u32 v11, v11, s37")
        e("  v_lshl_add_u32 v11, v12, 4, v11")
        e(f"  v_add_u32 v{2+i}, s35, v11")
    e("  s_lshl_b32 s38, s17, 7")
    e("  s_lshl_b32 s39, s18, 5")
    e("  s_add_u32 s38, s38, s39")
    e("  s_movk_i32 s37, 1152")
    for q in range(4):
        e("  v_lshrrev_b32 v10, 3, v0")
        e(f"  v_add_u32 v10, {8*q}, v10")
        e("  v_lshrrev_b32 v11, 1, v10")
        e("  v_xor_b32 v11, v11, v0")
        e("  v_and_b32 v11, 7, v11")
        e("  v_add_u32 v10, s38, v10")
        e("  v_mul_lo_u32 v10, v10, s37")
        e(f"  v_lshl_add_u32 v{14+q}, v11, 4, v10")
    e("  s_lshl_b32 s40, s18, 12")
    e(f"  s_add_u32 s40, s40, {XOFF}")
    e("  v_lshrrev_b32 v10, 5, v0")
    e("  v_lshlrev_b32 v10, 3, v10")
    e("  v_bfe_u32 v11, v0, 2, 2")
    e("  v_add_u32 v10, v10, v11")
    e("  v_mul_u32_u24 v10, 288, v10")
    e("  v_and_b32 v11, 3, v0")
    e("  v_lshl_add_u32 v10, v11, 3, v10")
    e("  v_bfe_u32 v11, v0, 4, 1")
    e(f"  v_mul_u32_u24 v11, {UPOFF}, v11")
    e("  v_add_u32 v10, v10, v11")
    e("  s_mul_i32 s41, s19, 160")
    e("  v_add_u32 v18, s41, v10")
    e("  v_and_b32 v10, 31, v0")
    e("  v_lshrrev_b32 v11, 1, v10")
    e("  v_lshrrev_b32 v12, 5, v0")
    e("  v_xor_b32 v11, v11, v12")
    e("  v_and_b32 v11, 7, v11")
    e("  v_lshlrev_b32 v11, 4, v11")
    e("  v_lshl_add_u32 v10, v10, 7, v11")
    for ks in range(4):
        e(f"  v_xor_b32 v11, {ks<<5}, v10")
        e(f"  v_add_u32 v{20+ks}, s40, v11")
    e("  s_lshl_b32 s42, s17, 2")
    e("  s_add_u32 s42, s42, s18")
    e("  s_mul_i32 s42, s42, 288")
    e("  s_mul_i32 s43, s15, 9")
    e("  s_add_u32 s42, s42, s43")
    e("  s_mul_i32 s43, s19, 5")
    e("  s_add_u32 s42, s42, s43")
    e("  s_lshl_b32 s42, s42, 10")
    e("  v_lshlrev_b32 v24, 4, v0")
    e("  s_cmp_eq_u32 s19, 0")
    e("  s_cbranch_scc0 g1_pathB")
    for path, T, NW, NX in (("A", 5, 2, 4), ("B", 4, 7, 0)):
        if path == "B": e("g1_pathB:")
        ND = NW + NX
        ACC = 64
        SET = [160, 160+24]
        def dma_list():
            l = []
            for i in range(NX):
                l.append([f"  s_add_u32 m0, s49, {i*1024}", "  s_nop 0", f"  buffer_load_dwordx4 v{14+i}, s[20:23], s46 offen lds"])
            for i in range(NW):
                l.append([f"  s_add_u32 m0, s50, {i*1024}", "  s_nop 0", f"  buffer_load_dwordx4 v{2+i}, s[24:27], s45 offen lds"])
            return l
        def dma_adv():
            return [f"  s_add_u32 s45, s45, {64*9216}", "  s_add_u32 s46, s46, 128",
                    f"  s_add_u32 s47, s47, {SLOT}", f"  s_cmp_eq_u32 s47, {3*SLOT}", "  s_cselect_b32 s47, 0, s47",
                    "  s_add_u32 s49, s47, s40", "  s_add_u32 s50, s47, s32"]
        e("  s_mov_b32 s45, 0"); e("  s_mov_b32 s46, 0"); e("  s_mov_b32 s47, 0")
        e("  s_mov_b32 s49, s40"); e("  s_mov_b32 s50, s32")
        for s in range(3):
            for d in dma_list():
                for x in d: e(x)
            for x in dma_adv(): e(x)
        for i in range(T*16): e(f"  v_mov_b32 v{ACC+i}, 0")
        stamp(1)
        e(f"  s_waitcnt vmcnt({2*ND})")
        e("  s_barrier")
        stamp(2)
        def reads(ks, st):
            b = SET[st]
            l = [f"  ds_read_b128 v[{b}:{b+3}], v{20+ks}"]
            for t in range(T):
                o = ks*16*288 + t*32
                l.append(f"  ds_read_b64_tr_b16 v[{b+4+4*t}:{b+5+4*t}], v18 offset:{o}")
                l.append(f"  ds_read_b64_tr_b16 v[{b+6+4*t}:{b+7+4*t}], v18 offset:{o+1152}")
            return l
        def mfmas(st):
            b = SET[st]
            return [f"  v_mfma_f32_32x32x16_bf16 v[{ACC+16*t}:{ACC+16*t+15}], v[{b+4+4*t}:{b+7+4*t}], v[{b}:{b+3}], v[{ACC+16*t}:{ACC+16*t+15}]" for t in range(T)]
        for x in reads(0, 0): e(x)
        e("  s_mov_b32 s48, 0")
        e(f"  s_mov_b32 s51, 0")
        e(f"g1_loop{path}:")
        for ks in range(3):
            e("  s_waitcnt lgkmcnt(0)")
            interleave(mfmas(ks & 1), reads(ks+1, (ks+1) & 1))
        e("  s_waitcnt lgkmcnt(0)")
        e("  s_cmp_eq_u32 s48, 8")
        e(f"  s_cbranch_scc1 g1_last{path}")
        e("  s_cmp_ge_u32 s48, 7")
        e(f"  s_cbranch_scc1 g1_w0{path}")
        e(f"  s_waitcnt vmcnt({ND})")
        e(f"  s_branch g1_w1{path}")
        e(f"g1_w0{path}:")
        e("  s_waitcnt vmcnt(0)")
        e(f"g1_w1{path}:")
        e("  s_barrier")
        e(f"  s_add_u32 s51, s51, {SLOT}")
        e(f"  s_cmp_eq_u32 s51, {3*SLOT}")
        e(f"  s_mov_b32 s52, {SLOT}")
        e(f"  s_cmov_b32 s52, {(-2*SLOT) & 0xffffffff}")
        e(f"  s_cselect_b32 s51, 0, s51")
        for r in (18, 20, 21, 22, 23): e(f"  v_add_u32 v{r}, s52, v{r}")
        m = mfmas(1)
        interleave(m, reads(0, 0))
        e("  s_cmp_ge_u32 s48, 6")
        e(f"  s_cbranch_scc1 g1_nodma{path}")
        for d in dma_list():
            for x in d: e(x)
        for x in dma_adv(): e(x)
        e(f"g1_nodma{path}:")
        e("  s_add_u32 s48, s48, 1")
        e(f"  s_branch g1_loop{path}")
        e(f"g1_last{path}:")
        for x in mfmas(1): e(x)
        stamp(3)
        K1 = -2*0.7978845608028654*1.4426950408889634
        K3 = K1*0.044715
        e(f"  s_mov_b32 s54, {f2u(K3)}")
        e(f"  s_mov_b32 s55, {f2u(K3)}")
        e(f"  v_mov_b32 v26, {f2u(K1)}")
        e(f"  v_mov_b32 v27, {f2u(K1)}")
        e("  s_nop 7"); e("  s_nop 7")
        for t in range(T):
            a = ACC + 16*t
            tmp = 160 + (t & 1)*24
            for p in range(4):
                g = a + 2*p
                e(f"  v_pk_mul_f32 v[{tmp+2*p}:{tmp+2*p+1}], v[{g}:{g+1}], v[{g}:{g+1}]")
            for p in range(4):
                e(f"  v_pk_fma_f32 v[{tmp+2*p}:{tmp+2*p+1}], v[{tmp+2*p}:{tmp+2*p+1}], s[54:55], v[26:27]")
            for p in range(4):
                g = a + 2*p
                e(f"  v_pk_mul_f32 v[{tmp+2*p}:{tmp+2*p+1}], v[{tmp+2*p}:{tmp+2*p+1}], v[{g}:{g+1}]")
            for i in range(8): e(f"  v_exp_f32 v{tmp+i}, v{tmp+i}")
            for p in range(4):
                g = a + 2*p
                e(f"  v_pk_mul_f32 v[{g}:{g+1}], v[{g}:{g+1}], v[{g+8}:{g+9}]")
            for p in range(4):
                e(f"  v_pk_add_f32 v[{tmp+2*p}:{tmp+2*p+1}], v[{tmp+2*p}:{tmp+2*p+1}], 1.0 op_sel_hi:[1,0]")
            for i in range(8): e(f"  v_rcp_f32 v{tmp+i}, v{tmp+i}")
            e("  s_nop 0")
            for p in range(4):
                g = a + 2*p
                e(f"  v_pk_mul_f32 v[{g}:{g+1}], v[{g}:{g+1}], v[{tmp+2*p}:{tmp+2*p+1}]")
            for p in range(4):
                g = a + 2*p
                e(f"  v_cvt_pk_bf16_f32 v{tmp+8+p}, v{g}, v{g+1}")
            e(f"  buffer_store_dwordx4 v[{tmp+8}:{tmp+11}], v24, s[28:31], s42 offen offset:{(t*1024) % 4096}")
            if t == 3: e("  s_add_u32 s42, s42, 4096")
        stamp(4)
        if STAMP:
            e("  s_waitcnt vmcnt(0)")
            stamp(5)
            stamp_flush(6)
        e("  s_endpgm")
    e("g1_end:")
    e("  s_endpgm")
    kdesc(name, 256)

def gemm2():
    name = "gemm2_kernel"
    kstart(name)
    SLOT = 36864; HOFF = 20480; NS = 4
    e("  s_cmp_ge_u32 s2, 256")
    e("  s_cbranch_scc1 g2_end")
    stamp(0)
    e("  s_load_dwordx2 s[10:11], s[0:1], 24")
    e("  s_load_dwordx2 s[12:13], s[0:1], 48")
    e("  v_lshrrev_b32 v1, 6, v0")
    e("  v_and_b32 v0, 63, v0")
    e("  v_readfirstlane_b32 s14, v1")
    e("  s_and_b32 s15, s2, 7")
    e("  s_lshr_b32 s16, s2, 3")
    e("  s_lshr_b32 s17, s16, 2")
    e("  s_and_b32 s16, s16, 3")
    e("  s_and_b32 s18, s14, 3")
    e("  s_lshr_b32 s19, s14, 2")
    e("  s_waitcnt lgkmcnt(0)")
    stamp_setup(1, "s14")
    srd(20, "s12", "s13", H_BYTES)
    srd(24, "s10", "s11", W_BYTES)
    e(f"  s_add_u32 s28, s12, {P_OFF}")
    e(f"  s_addc_u32 s29, s13, 0")
    e(f"  s_mov_b32 s30, {8*P_STRIDE}")
    e("  s_mov_b32 s31, 0x00020000")
    e("  s_mul_i32 s33, s18, 5")
    e("  s_lshl_b32 s32, s33, 10")
    e("  s_lshl_b32 s34, s33, 6")
    e("  s_movk_i32 s36, 3641")
    e("  s_movk_i32 s37, 1152")
    e(f"  s_mul_i32 s35, s15, {576*1152}")
    e("  s_mul_i32 s38, s16, 288")
    e("  s_add_u32 s35, s35, s38")
    for i in range(5):
        e(f"  v_add_u32 v10, s34, v0")
        if i: e(f"  v_add_u32 v10, {64*i}, v10")
        e("  v_mul_lo_u32 v11, v10, s36")
        e("  v_lshrrev_b32 v11, 16, v11")
        e("  v_mul_u32_u24 v12, 18, v11")
        e("  v_sub_u32 v12, v10, v12")
        e("  v_mul_lo_u32 v11, v11, s37")
        e("  v_lshl_add_u32 v11, v12, 4, v11")
        e(f"  v_add_u32 v{2+i}, s35, v11")
    e("  s_lshl_b32 s38, s17, 2")
    e("  s_add_u32 s38, s38, s18")
    e("  s_mul_i32 s38, s38, 288")
    e("  s_mul_i32 s39, s15, 36")
    e("  s_add_u32 s38, s38, s39")
    e("  s_lshl_b32 s38, s38, 10")
    e("  v_lshlrev_b32 v24, 4, v0")
    e("  v_add_u32 v14, s38, v24")
    e("  s_lshl_b32 s40, s18, 12")
    e(f"  s_add_u32 s40, s40, {HOFF}")
    e("  v_lshrrev_b32 v10, 5, v0")
    e("  v_lshlrev_b32 v10, 4, v10")
    e("  v_bfe_u32 v11, v0, 4, 1")
    e("  v_lshl_add_u32 v10, v11, 2, v10")
    e("  v_bfe_u32 v11, v0, 2, 2")
    e("  v_add_u32 v10, v10, v11")
    e("  v_mul_u32_u24 v10, 288, v10")
    e("  v_and_b32 v11, 3, v0")
    e("  v_lshl_add_u32 v10, v11, 3, v10")
    e("  s_mul_i32 s41, s19, 160")
    e("  v_add_u32 v18, s41, v10")
    e("  v_lshrrev_b32 v10, 4, v0")
    e("  v_lshlrev_b32 v10, 9, v10")
    e("  v_and_b32 v11, 15, v0")
    e("  v_lshl_add_u32 v10, v11, 4, v10")
    e("  v_add_u32 v20, s40, v10")
    e("  s_lshl_b32 s42, s17, 3")
    e("  s_lshl_b32 s43, s18, 1")
    e("  s_add_u32 s42, s42, s43")
    e("  s_mul_i32 s42, s42, 36")
    e("  s_mul_i32 s43, s16, 9")
    e("  s_add_u32 s42, s42, s43")
    e("  s_mul_i32 s43, s19, 5")
    e("  s_add_u32 s42, s42, s43")
    e("  s_lshl_b32 s42, s42, 10")
    e(f"  s_mul_i32 s43, s15, {P_STRIDE}")
    e("  s_add_u32 s42, s42, s43")
    e("  s_cmp_eq_u32 s19, 0")
    e("  s_cbranch_scc0 g2_pathB")
    for path, T, NW, NX in (("A", 5, 0, 4), ("B", 4, 5, 0)):
        if path == "B": e("g2_pathB:")
        ND = NW + NX
        ACC = 64
        SET = [160, 160+28]
        def dma_list():
            l = []
            if NX:
                l.append(["  s_mov_b32 m0, s49", "  s_nop 0"])
            for i in range(NX):
                l.append([f"  buffer_load_dwordx4 v14, s[20:23], s46 offen offset:{i*1024} lds"])
            for i in range(NW):
                l.append([f"  s_add_u32 m0, s50, {i*1024}", "  s_nop 0", f"  buffer_load_dwordx4 v{2+i}, s[24:27], s45 offen lds"])
            return l
        def dma_adv():
            return [f"  s_add_u32 s45, s45, {64*1152}", "  s_add_u32 s46, s46, 4096",
                    f"  s_add_u32 s47, s47, {SLOT}", f"  s_cmp_eq_u32 s47, {NS*SLOT}", "  s_cselect_b32 s47, 0, s47",
                    "  s_add_u32 s49, s47, s40", "  s_add_u32 s50, s47, s32"]
        e("  s_mov_b32 s45, 0"); e("  s_mov_b32 s46, 0"); e("  s_mov_b32 s47, 0")
        e("  s_mov_b32 s49, s40"); e("  s_mov_b32 s50, s32")
        for s in range(NS):
            for d in dma_list():
                for x in d: e(x)
            for x in dma_adv(): e(x)
        for i in range(T*8): e(f"  v_mov_b32 v{ACC+i}, 0")
        stamp(1)
        e(f"  s_waitcnt vmcnt({(NS-1)*ND})")
        e("  s_barrier")
        stamp(2)
        def reads(kk, st):
            b = SET[st]
            l = [f"  ds_read_b128 v[{b}:{b+3}], v20 offset:{kk*2048}",
                 f"  ds_read_b128 v[{b+4}:{b+7}], v20 offset:{kk*2048+256}"]
            for t in range(T):
                o = kk*32*288 + t*32
                l.append(f"  ds_read_b64_tr_b16 v[{b+8+4*t}:{b+9+4*t}], v18 offset:{o}")
                l.append(f"  ds_read_b64_tr_b16 v[{b+10+4*t}:{b+11+4*t}], v18 offset:{o+8*288}")
            return l
        def mfmas(st):
            b = SET[st]
            l = []
            for t in range(T):
                for mh in range(2):
                    a = ACC + (mh*T + t)*4
                    l.append(f"  v_mfma_f32_16x16x32_bf16 v[{a}:{a+3}], v[{b+8+4*t}:{b+11+4*t}], v[{b+4*mh}:{b+4*mh+3}], v[{a}:{a+3}]")
            return l
        def inter2(m, o):
            o = list(o)
            for x in m:
                e(x)
                for _ in range(2):
                    if o: e(o.pop(0))
            for x in o: e(x)
        for x in reads(0, 0): e(x)
        e("  s_mov_b32 s48, 0")
        e(f"  s_mov_b32 s51, 0")
        e(f"g2_loop{path}:")
        e("  s_waitcnt lgkmcnt(0)")
        inter2(mfmas(0), reads(1, 1))
        e("  s_waitcnt lgkmcnt(0)")
        e("  s_cmp_eq_u32 s48, 8")
        e(f"  s_cbranch_scc1 g2_last{path}")
        e("  s_cmp_ge_u32 s48, 6")
        e(f"  s_cbranch_scc1 g2_w0{path}")
        e(f"  s_waitcnt vmcnt({2*ND})")
        e(f"  s_branch g2_w1{path}")
        e(f"g2_w0{path}:")
        e("  s_cmp_eq_u32 s48, 7")
        e(f"  s_cbranch_scc1 g2_w2{path}")
        e(f"  s_waitcnt vmcnt({ND})")
        e(f"  s_branch g2_w1{path}")
        e(f"g2_w2{path}:")
        e("  s_waitcnt vmcnt(0)")
        e(f"g2_w1{path}:")
        e("  s_barrier")
        e(f"  s_add_u32 s51, s51, {SLOT}")
        e(f"  s_cmp_eq_u32 s51, {NS*SLOT}")
        e(f"  s_mov_b32 s52, {SLOT}")
        e(f"  s_cmov_b32 s52, {(-(NS-1)*SLOT) & 0xffffffff}")
        e(f"  s_cselect_b32 s51, 0, s51")
        for r in (18, 20): e(f"  v_add_u32 v{r}, s52, v{r}")
        inter2(mfmas(1), reads(0, 0))
        e(f"  s_cmp_ge_u32 s48, {9-NS}")
        e(f"  s_cbranch_scc1 g2_nodma{path}")
        for d in dma_list():
            for x in d: e(x)
        for x in dma_adv(): e(x)
        e(f"g2_nodma{path}:")
        e("  s_add_u32 s48, s48, 1")
        e(f"  s_branch g2_loop{path}")
        e(f"g2_last{path}:")
        for x in mfmas(1): e(x)
        stamp(3)
        e("  s_nop 7"); e("  s_nop 1")
        e(f"  s_add_u32 s43, s42, {36*1024}")
        e(f"  s_add_u32 s44, s42, 4096")
        e(f"  s_add_u32 s53, s43, 4096")
        for mh in range(2):
            for t in range(T):
                a = ACC + (mh*T + t)*4
                so = ("s42", "s43")[mh] if t < 4 else ("s44", "s53")[mh]
                e(f"  buffer_store_dwordx4 v[{a}:{a+3}], v24, s[28:31], {so} offen offset:{(t*1024) % 4096}")
        stamp(4)
        if STAMP:
            e("  s_waitcnt vmcnt(0)")
            stamp(5)
            stamp_flush(6)
        e("  s_endpgm")
    e("g2_end:")
    e("  s_endpgm")
    kdesc(name, 256)

def reduce_k():
    name = "reduce_kernel"
    kstart(name)
    e("  s_cmp_ge_u32 s2, 576")
    e("  s_cbranch_scc1 r_end")
    stamp(0)
    e("  s_load_dwordx2 s[10:11], s[0:1], 32")
    e("  s_load_dwordx2 s[12:13], s[0:1], 48")
    e("  v_lshrrev_b32 v1, 6, v0")
    e("  v_and_b32 v0, 63, v0")
    e("  v_readfirstlane_b32 s14, v1")
    e("  s_lshl_b32 s15, s2, 2")
    e("  s_add_u32 s15, s15, s14")
    e("  s_lshl_b32 s16, s15, 10")
    e("  v_lshlrev_b32 v2, 4, v0")
    e("  s_waitcnt lgkmcnt(0)")
    stamp_setup(2, "s14")
    e(f"  s_add_u32 s28, s12, {P_OFF}")
    e(f"  s_addc_u32 s29, s13, 0")
    e(f"  s_mov_b32 s30, {8*P_STRIDE}")
    e("  s_mov_b32 s31, 0x00020000")
    srd(20, "s10", "s11", X_BYTES)
    for k in range(8):
        e(f"  buffer_load_dwordx4 v[{8+4*k}:{11+4*k}], v2, s[28:31], s16 offen")
        e(f"  s_add_u32 s16, s16, {P_STRIDE}")
    e("  s_mul_i32 s17, s15, 1821")
    e("  s_lshr_b32 s17, s17, 16")
    e("  s_mul_i32 s18, s17, 36")
    e("  s_sub_u32 s18, s15, s18")
    e(f"  s_mul_i32 s17, s17, {16*1152}")
    e("  s_lshl_b32 s18, s18, 5")
    e("  s_add_u32 s17, s17, s18")
    e("  v_and_b32 v3, 15, v0")
    e("  v_mul_u32_u24 v3, 1152, v3")
    e("  v_lshrrev_b32 v4, 4, v0")
    e("  v_lshl_add_u32 v3, v4, 3, v3")
    for k in range(1, 8):
        e(f"  s_waitcnt vmcnt({7-k})")
        e(f"  v_pk_add_f32 v[8:9], v[8:9], v[{8+4*k}:{9+4*k}]")
        e(f"  v_pk_add_f32 v[10:11], v[10:11], v[{10+4*k}:{11+4*k}]")
    e("  v_cvt_pk_bf16_f32 v4, v8, v9")
    e("  v_cvt_pk_bf16_f32 v5, v10, v11")
    e("  buffer_store_dwordx2 v[4:5], v3, s[20:23], s17 offen")
    if STAMP:
        e("  s_waitcnt vmcnt(0)")
        stamp(1)
        stamp_flush(2)
    e("r_end:")
    e("  s_endpgm")
    kdesc(name, 256 if STAMP else 40)

header()
gemm1()
gemm2()
reduce_k()
print("\n".join(out))
```

```python
import sys, struct
STAMP = "--stamp" in sys.argv
out = []
def e(s=""): out.append(s)
def f2u(x): return "0x%08x" % struct.unpack("<I", struct.pack("<f", x))[0]

X_BYTES = 1024*576*2
W_BYTES = 576*4608*2
H_OFF = 0
H_BYTES = 1024*4608*2
P_OFF = 0x1000000
P_STRIDE = 1024*576*4
ST_OFF = 0x4000000

def header():
    e("; @launch kernel=gemm1_kernel grid=(256,1,1) block=(512,1,1) lds=160128")
    e("; @launch kernel=gemm2_kernel grid=(256,1,1) block=(512,1,1) lds=147456")
    e("; @launch kernel=reduce_kernel grid=(576,1,1) block=(256,1,1) lds=0")
    e('.amdgcn_target "amdgcn-amd-amdhsa--gfx950"')
    e(".text")

def kstart(name):
    e(f".globl {name}")
    e(".p2align 8")
    e(f".type {name},@function")
    e(f"{name}:")

def kdesc(name, vgpr, sgpr=102):
    e('.section .rodata,"a"')
    e(".p2align 6")
    e(f".amdhsa_kernel {name}")
    e(f"  .amdhsa_next_free_vgpr {vgpr}")
    e(f"  .amdhsa_next_free_sgpr {sgpr}")
    e(f"  .amdhsa_accum_offset {(vgpr+3)//4*4}")
    e("  .amdhsa_group_segment_fixed_size 0")
    e("  .amdhsa_kernarg_size 56")
    e("  .amdhsa_user_sgpr_count 2")
    e("  .amdhsa_user_sgpr_kernarg_segment_ptr 1")
    e("  .amdhsa_system_sgpr_workgroup_id_x 1")
    e(".end_amdhsa_kernel")
    e(".text")

def srd(d, lo, hi, nbytes):
    e(f"  s_mov_b32 s{d}, {lo}")
    e(f"  s_mov_b32 s{d+1}, {hi}")
    e(f"  s_mov_b32 s{d+2}, {nbytes}")
    e(f"  s_mov_b32 s{d+3}, 0x00020000")

def stamp_setup(kern, s_wv):
    if not STAMP: return
    e(f"  s_add_u32 s92, s12, {ST_OFF + kern*0x100000}")
    e(f"  s_addc_u32 s93, s13, 0")
    e(f"  s_mov_b32 s94, 0x100000")
    e(f"  s_mov_b32 s95, 0x00020000")
    e(f"  s_lshl_b32 s96, s2, 3")
    e(f"  s_add_u32 s96, s96, {s_wv}")
    e(f"  s_lshl_b32 s96, s96, 7")
nst = [0]
def stamp(idx):
    if not STAMP: return
    e(f"  s_memrealtime s[{60+2*idx}:{61+2*idx}]")
def stamp_flush(n):
    if not STAMP: return
    e("  s_waitcnt lgkmcnt(0)")
    e("  v_mov_b32 v250, 0")
    for i in range(n):
        e(f"  v_mov_b32 v252, s{60+2*i}")
        e(f"  v_mov_b32 v253, s{61+2*i}")
        e(f"  buffer_store_dwordx2 v[252:253], v250, s[92:95], s96 offen offset:{i*8}")
        e("  s_nop 1")

def interleave(mfmas, others, lead=0):
    n = len(mfmas)
    o = list(others)
    per = 3
    for i, m in enumerate(mfmas):
        e(m)
        for _ in range(per):
            if o: e(o.pop(0))
    while o: e(o.pop(0))

def gemm1():
    name = "gemm1_kernel"
    kstart(name)
    SLOT = 53376; UPOFF = 18432+128; XOFF = 18432*2+128
    e("  s_cmp_ge_u32 s2, 256")
    e("  s_cbranch_scc1 g1_end")
    stamp(0)
    e("  s_load_dwordx4 s[4:7], s[0:1], 0")
    e("  s_load_dwordx4 s[8:11], s[0:1], 16")
    e("  s_load_dwordx2 s[12:13], s[0:1], 48")
    e("  v_lshrrev_b32 v1, 6, v0")
    e("  v_and_b32 v0, 63, v0")
    e("  v_readfirstlane_b32 s14, v1")
    e("  s_and_b32 s15, s2, 7")
    e("  s_lshr_b32 s16, s2, 3")
    e("  s_lshr_b32 s17, s16, 2")
    e("  s_and_b32 s16, s16, 3")
    e("  s_lshl_b32 s15, s15, 2")
    e("  s_add_u32 s15, s15, s16")
    e("  s_and_b32 s18, s14, 3")
    e("  s_lshr_b32 s19, s14, 2")
    e("  s_waitcnt lgkmcnt(0)")
    stamp_setup(0, "s14")
    srd(20, "s4", "s5", X_BYTES)
    e("  s_bitcmp1_b32 s14, 1")
    e("  s_cselect_b32 s24, s8, s6")
    e("  s_cselect_b32 s25, s9, s7")
    e(f"  s_mov_b32 s26, {W_BYTES}")
    e("  s_mov_b32 s27, 0x00020000")
    e(f"  s_cselect_b32 s32, {UPOFF}, 0")
    srd(28, "s12", "s13", H_BYTES)
    e("  s_and_b32 s33, s14, 1")
    e("  s_mul_i32 s34, s33, 7")
    e("  s_add_u32 s34, s34, 4")
    e("  s_lshl_b32 s33, s33, 1")
    e("  s_cmp_eq_u32 s19, 0")
    e("  s_cselect_b32 s33, s33, s34")
    e("  s_lshl_b32 s34, s33, 10")
    e("  s_add_u32 s32, s32, s34")
    e("  s_mul_i32 s35, s15, 288")
    e("  s_lshl_b32 s34, s33, 6")
    e("  s_movk_i32 s36, 3641")
    e("  s_movk_i32 s37, 9216")
    for i in range(7):
        e(f"  v_add_u32 v10, s34, v0")
        if i: e(f"  v_add_u32 v10, {64*i}, v10")
        e("  v_mul_lo_u32 v11, v10, s36")
        e("  v_lshrrev_b32 v11, 16, v11")
        e("  v_mul_u32_u24 v12, 18, v11")
        e("  v_sub_u32 v12, v10, v12")
        e("  v_mul_lo_u32 v11, v11, s37")
        e("  v_lshl_add_u32 v11, v12, 4, v11")
        e(f"  v_add_u32 v{2+i}, s35, v11")
    e("  s_lshl_b32 s38, s17, 7")
    e("  s_lshl_b32 s39, s18, 5")
    e("  s_add_u32 s38, s38, s39")
    e("  s_movk_i32 s37, 1152")
    for q in range(4):
        e("  v_lshrrev_b32 v10, 3, v0")
        e(f"  v_add_u32 v10, {8*q}, v10")
        e("  v_lshrrev_b32 v11, 1, v10")
        e("  v_xor_b32 v11, v11, v0")
        e("  v_and_b32 v11, 7, v11")
        e("  v_add_u32 v10, s38, v10")
        e("  v_mul_lo_u32 v10, v10, s37")
        e(f"  v_lshl_add_u32 v{14+q}, v11, 4, v10")
    e("  s_lshl_b32 s40, s18, 12")
    e(f"  s_add_u32 s40, s40, {XOFF}")
    e("  v_lshrrev_b32 v10, 5, v0")
    e("  v_lshlrev_b32 v10, 3, v10")
    e("  v_bfe_u32 v11, v0, 2, 2")
    e("  v_add_u32 v10, v10, v11")
    e("  v_mul_u32_u24 v10, 288, v10")
    e("  v_and_b32 v11, 3, v0")
    e("  v_lshl_add_u32 v10, v11, 3, v10")
    e("  v_bfe_u32 v11, v0, 4, 1")
    e(f"  v_mul_u32_u24 v11, {UPOFF}, v11")
    e("  v_add_u32 v10, v10, v11")
    e("  s_mul_i32 s41, s19, 160")
    e("  v_add_u32 v18, s41, v10")
    e("  v_and_b32 v10, 31, v0")
    e("  v_lshrrev_b32 v11, 1, v10")
    e("  v_lshrrev_b32 v12, 5, v0")
    e("  v_xor_b32 v11, v11, v12")
    e("  v_and_b32 v11, 7, v11")
    e("  v_lshlrev_b32 v11, 4, v11")
    e("  v_lshl_add_u32 v10, v10, 7, v11")
    for ks in range(4):
        e(f"  v_xor_b32 v11, {ks<<5}, v10")
        e(f"  v_add_u32 v{20+ks}, s40, v11")
    e("  s_lshl_b32 s42, s17, 2")
    e("  s_add_u32 s42, s42, s18")
    e("  s_mul_i32 s42, s42, 288")
    e("  s_mul_i32 s43, s15, 9")
    e("  s_add_u32 s42, s42, s43")
    e("  s_mul_i32 s43, s19, 5")
    e("  s_add_u32 s42, s42, s43")
    e("  s_lshl_b32 s42, s42, 10")
    e("  v_lshlrev_b32 v24, 4, v0")
    e("  s_cmp_eq_u32 s19, 0")
    e("  s_cbranch_scc0 g1_pathB")
    for path, T, NW, NX in (("A", 5, 2, 4), ("B", 4, 7, 0)):
        if path == "B": e("g1_pathB:")
        ND = NW + NX
        ACC = 64
        SET = [160, 160+24]
        def dma_list():
            l = []
            for i in range(NX):
                l.append([f"  s_add_u32 m0, s49, {i*1024}", "  s_nop 0", f"  buffer_load_dwordx4 v{14+i}, s[20:23], s46 offen lds"])
            for i in range(NW):
                l.append([f"  s_add_u32 m0, s50, {i*1024}", "  s_nop 0", f"  buffer_load_dwordx4 v{2+i}, s[24:27], s45 offen lds"])
            return l
        def dma_adv():
            return [f"  s_add_u32 s45, s45, {64*9216}", "  s_add_u32 s46, s46, 128",
                    f"  s_add_u32 s47, s47, {SLOT}", f"  s_cmp_eq_u32 s47, {3*SLOT}", "  s_cselect_b32 s47, 0, s47",
                    "  s_add_u32 s49, s47, s40", "  s_add_u32 s50, s47, s32"]
        e("  s_mov_b32 s45, 0"); e("  s_mov_b32 s46, 0"); e("  s_mov_b32 s47, 0")
        e("  s_mov_b32 s49, s40"); e("  s_mov_b32 s50, s32")
        for s in range(3):
            for d in dma_list():
                for x in d: e(x)
            for x in dma_adv(): e(x)
        for i in range(T*16): e(f"  v_mov_b32 v{ACC+i}, 0")
        stamp(1)
        e(f"  s_waitcnt vmcnt({2*ND})")
        e("  s_barrier")
        stamp(2)
        def reads(ks, st):
            b = SET[st]
            l = [f"  ds_read_b128 v[{b}:{b+3}], v{20+ks}"]
            for t in range(T):
                o = ks*16*288 + t*32
                l.append(f"  ds_read_b64_tr_b16 v[{b+4+4*t}:{b+5+4*t}], v18 offset:{o}")
                l.append(f"  ds_read_b64_tr_b16 v[{b+6+4*t}:{b+7+4*t}], v18 offset:{o+1152}")
            return l
        def mfmas(st):
            b = SET[st]
            return [f"  v_mfma_f32_32x32x16_bf16 v[{ACC+16*t}:{ACC+16*t+15}], v[{b+4+4*t}:{b+7+4*t}], v[{b}:{b+3}], v[{ACC+16*t}:{ACC+16*t+15}]" for t in range(T)]
        for x in reads(0, 0): e(x)
        e("  s_mov_b32 s48, 0")
        e(f"  s_mov_b32 s51, 0")
        e(f"g1_loop{path}:")
        for ks in range(3):
            e("  s_waitcnt lgkmcnt(0)")
            interleave(mfmas(ks & 1), reads(ks+1, (ks+1) & 1))
        e("  s_waitcnt lgkmcnt(0)")
        e("  s_cmp_eq_u32 s48, 8")
        e(f"  s_cbranch_scc1 g1_last{path}")
        e("  s_cmp_ge_u32 s48, 7")
        e(f"  s_cbranch_scc1 g1_w0{path}")
        e(f"  s_waitcnt vmcnt({ND})")
        e(f"  s_branch g1_w1{path}")
        e(f"g1_w0{path}:")
        e("  s_waitcnt vmcnt(0)")
        e(f"g1_w1{path}:")
        e("  s_barrier")
        e(f"  s_add_u32 s51, s51, {SLOT}")
        e(f"  s_cmp_eq_u32 s51, {3*SLOT}")
        e(f"  s_mov_b32 s52, {SLOT}")
        e(f"  s_cmov_b32 s52, {(-2*SLOT) & 0xffffffff}")
        e(f"  s_cselect_b32 s51, 0, s51")
        for r in (18, 20, 21, 22, 23): e(f"  v_add_u32 v{r}, s52, v{r}")
        m = mfmas(1)
        interleave(m, reads(0, 0))
        e("  s_cmp_ge_u32 s48, 6")
        e(f"  s_cbranch_scc1 g1_nodma{path}")
        for d in dma_list():
            for x in d: e(x)
        for x in dma_adv(): e(x)
        e(f"g1_nodma{path}:")
        e("  s_add_u32 s48, s48, 1")
        e(f"  s_branch g1_loop{path}")
        e(f"g1_last{path}:")
        for x in mfmas(1): e(x)
        stamp(3)
        K1 = -2*0.7978845608028654*1.4426950408889634
        K3 = K1*0.044715
        e(f"  s_mov_b32 s54, {f2u(K3)}")
        e(f"  s_mov_b32 s55, {f2u(K3)}")
        e(f"  v_mov_b32 v26, {f2u(K1)}")
        e(f"  v_mov_b32 v27, {f2u(K1)}")
        e("  s_nop 7"); e("  s_nop 7")
        for t in range(T):
            a = ACC + 16*t
            tmp = 160 + (t & 1)*24
            for p in range(4):
                g = a + 2*p
                e(f"  v_pk_mul_f32 v[{tmp+2*p}:{tmp+2*p+1}], v[{g}:{g+1}], v[{g}:{g+1}]")
            for p in range(4):
                e(f"  v_pk_fma_f32 v[{tmp+2*p}:{tmp+2*p+1}], v[{tmp+2*p}:{tmp+2*p+1}], s[54:55], v[26:27]")
            for p in range(4):
                g = a + 2*p
                e(f"  v_pk_mul_f32 v[{tmp+2*p}:{tmp+2*p+1}], v[{tmp+2*p}:{tmp+2*p+1}], v[{g}:{g+1}]")
            for i in range(8): e(f"  v_exp_f32 v{tmp+i}, v{tmp+i}")
            for p in range(4):
                g = a + 2*p
                e(f"  v_pk_mul_f32 v[{g}:{g+1}], v[{g}:{g+1}], v[{g+8}:{g+9}]")
            for p in range(4):
                e(f"  v_pk_add_f32 v[{tmp+2*p}:{tmp+2*p+1}], v[{tmp+2*p}:{tmp+2*p+1}], 1.0 op_sel_hi:[1,0]")
            for i in range(8): e(f"  v_rcp_f32 v{tmp+i}, v{tmp+i}")
            e("  s_nop 0")
            for p in range(4):
                g = a + 2*p
                e(f"  v_pk_mul_f32 v[{g}:{g+1}], v[{g}:{g+1}], v[{tmp+2*p}:{tmp+2*p+1}]")
            for p in range(4):
                g = a + 2*p
                e(f"  v_cvt_pk_bf16_f32 v{tmp+8+p}, v{g}, v{g+1}")
            e(f"  buffer_store_dwordx4 v[{tmp+8}:{tmp+11}], v24, s[28:31], s42 offen offset:{(t*1024) % 4096}")
            if t == 3: e("  s_add_u32 s42, s42, 4096")
        stamp(4)
        if STAMP:
            e("  s_waitcnt vmcnt(0)")
            stamp(5)
            stamp_flush(6)
        e("  s_endpgm")
    e("g1_end:")
    e("  s_endpgm")
    kdesc(name, 256)

def gemm2():
    name = "gemm2_kernel"
    kstart(name)
    SLOT = 36864; HOFF = 20480; NS = 4
    e("  s_cmp_ge_u32 s2, 256")
    e("  s_cbranch_scc1 g2_end")
    stamp(0)
    e("  s_load_dwordx2 s[10:11], s[0:1], 24")
    e("  s_load_dwordx2 s[12:13], s[0:1], 48")
    e("  v_lshrrev_b32 v1, 6, v0")
    e("  v_and_b32 v0, 63, v0")
    e("  v_readfirstlane_b32 s14, v1")
    e("  s_and_b32 s15, s2, 7")
    e("  s_lshr_b32 s16, s2, 3")
    e("  s_lshr_b32 s17, s16, 2")
    e("  s_and_b32 s16, s16, 3")
    e("  s_and_b32 s18, s14, 3")
    e("  s_lshr_b32 s19, s14, 2")
    e("  s_waitcnt lgkmcnt(0)")
    stamp_setup(1, "s14")
    srd(20, "s12", "s13", H_BYTES)
    srd(24, "s10", "s11", W_BYTES)
    e(f"  s_add_u32 s28, s12, {P_OFF}")
    e(f"  s_addc_u32 s29, s13, 0")
    e(f"  s_mov_b32 s30, {8*P_STRIDE}")
    e("  s_mov_b32 s31, 0x00020000")
    e("  s_mul_i32 s33, s18, 5")
    e("  s_lshl_b32 s32, s33, 10")
    e("  s_lshl_b32 s34, s33, 6")
    e("  s_movk_i32 s36, 3641")
    e("  s_movk_i32 s37, 1152")
    e(f"  s_mul_i32 s35, s15, {576*1152}")
    e("  s_mul_i32 s38, s16, 288")
    e("  s_add_u32 s35, s35, s38")
    for i in range(5):
        e(f"  v_add_u32 v10, s34, v0")
        if i: e(f"  v_add_u32 v10, {64*i}, v10")
        e("  v_mul_lo_u32 v11, v10, s36")
        e("  v_lshrrev_b32 v11, 16, v11")
        e("  v_mul_u32_u24 v12, 18, v11")
        e("  v_sub_u32 v12, v10, v12")
        e("  v_mul_lo_u32 v11, v11, s37")
        e("  v_lshl_add_u32 v11, v12, 4, v11")
        e(f"  v_add_u32 v{2+i}, s35, v11")
    e("  s_lshl_b32 s38, s17, 2")
    e("  s_add_u32 s38, s38, s18")
    e("  s_mul_i32 s38, s38, 288")
    e("  s_mul_i32 s39, s15, 36")
    e("  s_add_u32 s38, s38, s39")
    e("  s_lshl_b32 s38, s38, 10")
    e("  v_lshlrev_b32 v24, 4, v0")
    e("  v_add_u32 v14, s38, v24")
    e("  s_lshl_b32 s40, s18, 12")
    e(f"  s_add_u32 s40, s40, {HOFF}")
    e("  v_lshrrev_b32 v10, 5, v0")
    e("  v_lshlrev_b32 v10, 4, v10")
    e("  v_bfe_u32 v11, v0, 4, 1")
    e("  v_lshl_add_u32 v10, v11, 2, v10")
    e("  v_bfe_u32 v11, v0, 2, 2")
    e("  v_add_u32 v10, v10, v11")
    e("  v_mul_u32_u24 v10, 288, v10")
    e("  v_and_b32 v11, 3, v0")
    e("  v_lshl_add_u32 v10, v11, 3, v10")
    e("  s_mul_i32 s41, s19, 160")
    e("  v_add_u32 v18, s41, v10")
    e("  v_lshrrev_b32 v10, 4, v0")
    e("  v_lshlrev_b32 v10, 9, v10")
    e("  v_and_b32 v11, 15, v0")
    e("  v_lshl_add_u32 v10, v11, 4, v10")
    e("  v_add_u32 v20, s40, v10")
    e("  s_lshl_b32 s42, s17, 3")
    e("  s_lshl_b32 s43, s18, 1")
    e("  s_add_u32 s42, s42, s43")
    e("  s_mul_i32 s42, s42, 36")
    e("  s_mul_i32 s43, s16, 9")
    e("  s_add_u32 s42, s42, s43")
    e("  s_mul_i32 s43, s19, 5")
    e("  s_add_u32 s42, s42, s43")
    e("  s_lshl_b32 s42, s42, 10")
    e(f"  s_mul_i32 s43, s15, {P_STRIDE}")
    e("  s_add_u32 s42, s42, s43")
    e("  s_cmp_eq_u32 s19, 0")
    e("  s_cbranch_scc0 g2_pathB")
    for path, T, NW, NX in (("A", 5, 0, 4), ("B", 4, 5, 0)):
        if path == "B": e("g2_pathB:")
        ND = NW + NX
        ACC = 64
        SET = [160, 160+28]
        def dma_list():
            l = []
            if NX:
                l.append(["  s_mov_b32 m0, s49", "  s_nop 0"])
            for i in range(NX):
                l.append([f"  buffer_load_dwordx4 v14, s[20:23], s46 offen offset:{i*1024} lds"])
            for i in range(NW):
                l.append([f"  s_add_u32 m0, s50, {i*1024}", "  s_nop 0", f"  buffer_load_dwordx4 v{2+i}, s[24:27], s45 offen lds"])
            return l
        def dma_adv():
            return [f"  s_add_u32 s45, s45, {64*1152}", "  s_add_u32 s46, s46, 4096",
                    f"  s_add_u32 s47, s47, {SLOT}", f"  s_cmp_eq_u32 s47, {NS*SLOT}", "  s_cselect_b32 s47, 0, s47",
                    "  s_add_u32 s49, s47, s40", "  s_add_u32 s50, s47, s32"]
        e("  s_mov_b32 s45, 0"); e("  s_mov_b32 s46, 0"); e("  s_mov_b32 s47, 0")
        e("  s_mov_b32 s49, s40"); e("  s_mov_b32 s50, s32")
        for s in range(NS):
            for d in dma_list():
                for x in d: e(x)
            for x in dma_adv(): e(x)
        for i in range(T*8): e(f"  v_mov_b32 v{ACC+i}, 0")
        stamp(1)
        e(f"  s_waitcnt vmcnt({(NS-1)*ND})")
        e("  s_barrier")
        stamp(2)
        def reads(kk, st):
            b = SET[st]
            l = [f"  ds_read_b128 v[{b}:{b+3}], v20 offset:{kk*2048}",
                 f"  ds_read_b128 v[{b+4}:{b+7}], v20 offset:{kk*2048+256}"]
            for t in range(T):
                o = kk*32*288 + t*32
                l.append(f"  ds_read_b64_tr_b16 v[{b+8+4*t}:{b+9+4*t}], v18 offset:{o}")
                l.append(f"  ds_read_b64_tr_b16 v[{b+10+4*t}:{b+11+4*t}], v18 offset:{o+8*288}")
            return l
        def mfmas(st):
            b = SET[st]
            l = []
            for t in range(T):
                for mh in range(2):
                    a = ACC + (mh*T + t)*4
                    l.append(f"  v_mfma_f32_16x16x32_bf16 v[{a}:{a+3}], v[{b+8+4*t}:{b+11+4*t}], v[{b+4*mh}:{b+4*mh+3}], v[{a}:{a+3}]")
            return l
        def inter2(m, o):
            o = list(o)
            for x in m:
                e(x)
                for _ in range(2):
                    if o: e(o.pop(0))
            for x in o: e(x)
        for x in reads(0, 0): e(x)
        e("  s_mov_b32 s48, 0")
        e(f"  s_mov_b32 s51, 0")
        e(f"g2_loop{path}:")
        e("  s_waitcnt lgkmcnt(0)")
        inter2(mfmas(0), reads(1, 1))
        e("  s_waitcnt lgkmcnt(0)")
        e("  s_cmp_eq_u32 s48, 8")
        e(f"  s_cbranch_scc1 g2_last{path}")
        e("  s_cmp_ge_u32 s48, 6")
        e(f"  s_cbranch_scc1 g2_w0{path}")
        e(f"  s_waitcnt vmcnt({2*ND})")
        e(f"  s_branch g2_w1{path}")
        e(f"g2_w0{path}:")
        e("  s_cmp_eq_u32 s48, 7")
        e(f"  s_cbranch_scc1 g2_w2{path}")
        e(f"  s_waitcnt vmcnt({ND})")
        e(f"  s_branch g2_w1{path}")
        e(f"g2_w2{path}:")
        e("  s_waitcnt vmcnt(0)")
        e(f"g2_w1{path}:")
        e("  s_barrier")
        e(f"  s_add_u32 s51, s51, {SLOT}")
        e(f"  s_cmp_eq_u32 s51, {NS*SLOT}")
        e(f"  s_mov_b32 s52, {SLOT}")
        e(f"  s_cmov_b32 s52, {(-(NS-1)*SLOT) & 0xffffffff}")
        e(f"  s_cselect_b32 s51, 0, s51")
        for r in (18, 20): e(f"  v_add_u32 v{r}, s52, v{r}")
        inter2(mfmas(1), reads(0, 0))
        e(f"  s_cmp_ge_u32 s48, {9-NS}")
        e(f"  s_cbranch_scc1 g2_nodma{path}")
        for d in dma_list():
            for x in d: e(x)
        for x in dma_adv(): e(x)
        e(f"g2_nodma{path}:")
        e("  s_add_u32 s48, s48, 1")
        e(f"  s_branch g2_loop{path}")
        e(f"g2_last{path}:")
        for x in mfmas(1): e(x)
        stamp(3)
        e("  s_nop 7"); e("  s_nop 1")
        e(f"  s_add_u32 s43, s42, {36*1024}")
        e(f"  s_add_u32 s44, s42, 4096")
        e(f"  s_add_u32 s53, s43, 4096")
        for mh in range(2):
            for t in range(T):
                a = ACC + (mh*T + t)*4
                so = ("s42", "s43")[mh] if t < 4 else ("s44", "s53")[mh]
                e(f"  buffer_store_dwordx4 v[{a}:{a+3}], v24, s[28:31], {so} offen offset:{(t*1024) % 4096}")
        stamp(4)
        if STAMP:
            e("  s_waitcnt vmcnt(0)")
            stamp(5)
            stamp_flush(6)
        e("  s_endpgm")
    e("g2_end:")
    e("  s_endpgm")
    kdesc(name, 256)

def reduce_k():
    name = "reduce_kernel"
    kstart(name)
    e("  s_cmp_ge_u32 s2, 576")
    e("  s_cbranch_scc1 r_end")
    stamp(0)
    e("  s_load_dwordx2 s[10:11], s[0:1], 32")
    e("  s_load_dwordx2 s[12:13], s[0:1], 48")
    e("  v_lshrrev_b32 v1, 6, v0")
    e("  v_and_b32 v0, 63, v0")
    e("  v_readfirstlane_b32 s14, v1")
    e("  s_lshl_b32 s15, s2, 2")
    e("  s_add_u32 s15, s15, s14")
    e("  s_lshl_b32 s16, s15, 10")
    e("  v_lshlrev_b32 v2, 4, v0")
    e("  s_waitcnt lgkmcnt(0)")
    stamp_setup(2, "s14")
    e(f"  s_add_u32 s28, s12, {P_OFF}")
    e(f"  s_addc_u32 s29, s13, 0")
    e(f"  s_mov_b32 s30, {8*P_STRIDE}")
    e("  s_mov_b32 s31, 0x00020000")
    srd(20, "s10", "s11", X_BYTES)
    for k in range(8):
        e(f"  buffer_load_dwordx4 v[{8+4*k}:{11+4*k}], v2, s[28:31], s16 offen")
        e(f"  s_add_u32 s16, s16, {P_STRIDE}")
    e("  s_mul_i32 s17, s15, 1821")
    e("  s_lshr_b32 s17, s17, 16")
    e("  s_mul_i32 s18, s17, 36")
    e("  s_sub_u32 s18, s15, s18")
    e(f"  s_mul_i32 s17, s17, {16*1152}")
    e("  s_lshl_b32 s18, s18, 5")
    e("  s_add_u32 s17, s17, s18")
    e("  v_and_b32 v3, 15, v0")
    e("  v_mul_u32_u24 v3, 1152, v3")
    e("  v_lshrrev_b32 v4, 4, v0")
    e("  v_lshl_add_u32 v3, v4, 3, v3")
    for k in range(1, 8):
        e(f"  s_waitcnt vmcnt({7-k})")
        e(f"  v_pk_add_f32 v[8:9], v[8:9], v[{8+4*k}:{9+4*k}]")
        e(f"  v_pk_add_f32 v[10:11], v[10:11], v[{10+4*k}:{11+4*k}]")
    e("  v_cvt_pk_bf16_f32 v4, v8, v9")
    e("  v_cvt_pk_bf16_f32 v5, v10, v11")
    e("  buffer_store_dwordx2 v[4:5], v3, s[20:23], s17 offen")
    if STAMP:
        e("  s_waitcnt vmcnt(0)")
        stamp(1)
        stamp_flush(2)
    e("r_end:")
    e("  s_endpgm")
    kdesc(name, 256 if STAMP else 40)
```

```python
import sys, struct
import gen1lib as L
from gen1lib import e, f2u, srd, stamp, stamp_setup, stamp_flush, kstart, kdesc, X_BYTES, W_BYTES, H_BYTES
OPT = dict(rot=1, nb=6, prio=0)
for a in sys.argv[1:]:
    if "=" in a:
        k, v = a.split("="); OPT[k] = int(v)

WIMG = 9216
UPOFF = WIMG + 128
WSLOT = 2*WIMG + 128
XBASE = 6*WSLOT
XSLOT = 16384
LDS_TOTAL = XBASE + 3*XSLOT

def gemm1():
    name = "gemm1_kernel"
    kstart(name)
    e("  s_cmp_ge_u32 s2, 256")
    e("  s_cbranch_scc1 g1_end")
    stamp(0)
    e("  s_load_dwordx4 s[4:7], s[0:1], 0")
    e("  s_load_dwordx4 s[8:11], s[0:1], 16")
    e("  s_load_dwordx2 s[12:13], s[0:1], 48")
    e("  v_lshrrev_b32 v1, 6, v0")
    e("  v_and_b32 v0, 63, v0")
    e("  v_readfirstlane_b32 s14, v1")
    e("  s_and_b32 s15, s2, 7")
    e("  s_lshr_b32 s16, s2, 3")
    e("  s_lshr_b32 s17, s16, 2")
    e("  s_and_b32 s16, s16, 3")
    if OPT["rot"]:
        e("  s_lshl_b32 s18, s16, 1")
        e("  s_add_u32 s18, s18, s17")
        e("  s_add_u32 s18, s18, s15")
        for _ in range(2):
            e("  s_cmp_ge_u32 s18, 9")
            e("  s_cselect_b32 s19, 9, 0")
            e("  s_sub_u32 s18, s18, s19")
    else:
        e("  s_mov_b32 s18, 0")
    e("  s_lshl_b32 s19, s15, 2")
    e("  s_add_u32 s19, s19, s16")
    e("  s_cmp_lt_u32 s14, 4")
    e("  s_cbranch_scc1 g1_compute")
    e("  s_cmp_lt_u32 s14, 6")
    e("  s_cbranch_scc0 g1_xload")
    e("  s_mul_i32 s35, s19, 288")
    e("  s_movk_i32 s36, 3641")
    e("  s_movk_i32 s37, 9216")
    for i in range(9):
        e(f"  v_add_u32 v20, {64*i}, v0")
        e("  v_mul_lo_u32 v21, v20, s36")
        e("  v_lshrrev_b32 v21, 16, v21")
        e("  v_mul_u32_u24 v22, 18, v21")
        e("  v_sub_u32 v22, v20, v22")
        e("  v_mul_lo_u32 v21, v21, s37")
        e("  v_lshl_add_u32 v21, v22, 4, v21")
        e(f"  v_add_u32 v21, s35, v21")
        e(f"  v_subrev_u32 v{2+i}, {(i%4)*1024}, v21")
    e(f"  s_mul_i32 s45, s18, {64*9216}")
    e("  s_cmp_eq_u32 s14, 5")
    e(f"  s_cselect_b32 s32, {UPOFF}, 0")
    e("  s_waitcnt lgkmcnt(0)")
    e("  s_cselect_b32 s24, s8, s6")
    e("  s_cselect_b32 s25, s9, s7")
    e(f"  s_mov_b32 s26, {W_BYTES}")
    e("  s_mov_b32 s27, 0x00020000")
    stamp_setup(0, "s14")
    e("  s_mov_b32 s47, s32")
    e(f"  s_add_u32 s33, s32, {6*WSLOT}")
    def w_issue():
        for i in range(9):
            if i % 4 == 0:
                e(f"  s_add_u32 m0, s47, {i*1024}")
                e("  s_nop 0")
            e(f"  buffer_load_dwordx4 v{2+i}, s[24:27], s45 offen offset:{(i%4)*1024} lds")
        e(f"  s_add_u32 s45, s45, {32*9216}")
        e(f"  s_cmp_eq_u32 s45, {576*9216}")
        e("  s_cselect_b32 s45, 0, s45")
        e(f"  s_add_u32 s47, s47, {WSLOT}")
        e("  s_cmp_eq_u32 s47, s33")
        e("  s_cselect_b32 s47, s32, s47")
    e("  s_mov_b32 s48, 0")
    e("g1_wpro:")
    w_issue()
    e("  s_add_u32 s48, s48, 1")
    e("  s_cmp_lt_u32 s48, 6")
    e("  s_cbranch_scc1 g1_wpro")
    stamp(1)
    e("  s_waitcnt vmcnt(36)")
    e("  s_barrier")
    stamp(2)
    e("  s_waitcnt vmcnt(27)")
    e("  s_barrier")
    e("  s_mov_b32 s48, 1")
    e("g1_wloop:")
    w_issue()
    e("  s_waitcnt vmcnt(27)")
    e("  s_barrier")
    e("  s_add_u32 s48, s48, 1")
    e("  s_cmp_lt_u32 s48, 13")
    e("  s_cbranch_scc1 g1_wloop")
    e("  s_waitcnt vmcnt(18)"); e("  s_barrier")
    e("  s_waitcnt vmcnt(9)"); e("  s_barrier")
    e("  s_waitcnt vmcnt(0)"); stamp(3); e("  s_barrier")
    e("  s_barrier")
    stamp(4); stamp(5)
    stamp_flush(6)
    e("  s_endpgm")
    e("g1_xload:")
    e("  s_sub_u32 s34, s14, 6")
    e("  s_lshl_b32 s38, s17, 7")
    e("  s_lshl_b32 s39, s34, 6")
    e("  s_add_u32 s38, s38, s39")
    e("  s_movk_i32 s37, 1152")
    for q in range(8):
        e("  v_lshrrev_b32 v20, 3, v0")
        e(f"  v_add_u32 v20, {8*q}, v20")
        e("  v_lshrrev_b32 v21, 1, v20")
        e("  v_xor_b32 v21, v21, v0")
        e("  v_and_b32 v21, 7, v21")
        e("  v_add_u32 v20, s38, v20")
        e("  v_mul_lo_u32 v20, v20, s37")
        e(f"  v_lshl_add_u32 v21, v21, 4, v20")
        e(f"  v_subrev_u32 v{2+q}, {(q%4)*1024}, v21")
    e("  s_lshl_b32 s45, s18, 7")
    e("  s_lshl_b32 s32, s34, 13")
    e(f"  s_add_u32 s32, s32, {XBASE}")
    e("  s_mov_b32 s47, s32")
    e(f"  s_add_u32 s33, s32, {3*XSLOT}")
    e("  s_waitcnt lgkmcnt(0)")
    srd(24, "s4", "s5", X_BYTES)
    stamp_setup(0, "s14")
    def x_issue():
        for i in range(8):
            if i % 4 == 0:
                e(f"  s_add_u32 m0, s47, {i*1024}")
                e("  s_nop 0")
            e(f"  buffer_load_dwordx4 v{2+i}, s[24:27], s45 offen offset:{(i%4)*1024} lds")
        e(f"  s_add_u32 s45, s45, 128")
        e(f"  s_cmp_eq_u32 s45, 1152")
        e("  s_cselect_b32 s45, 0, s45")
        e(f"  s_add_u32 s47, s47, {XSLOT}")
        e("  s_cmp_eq_u32 s47, s33")
        e("  s_cselect_b32 s47, s32, s47")
    e("  s_mov_b32 s48, 0")
    e("g1_xpro:")
    x_issue()
    e("  s_add_u32 s48, s48, 1")
    e("  s_cmp_lt_u32 s48, 3")
    e("  s_cbranch_scc1 g1_xpro")
    stamp(1)
    e("  s_waitcnt vmcnt(16)")
    e("  s_barrier")
    stamp(2)
    e("  s_waitcnt vmcnt(8)")
    e("  s_barrier")
    e("  s_barrier")
    e("  s_mov_b32 s48, 1")
    e("g1_xloop:")
    x_issue()
    e("  s_waitcnt vmcnt(8)")
    e("  s_barrier")
    e("  s_barrier")
    e("  s_add_u32 s48, s48, 1")
    e("  s_cmp_lt_u32 s48, 7")
    e("  s_cbranch_scc1 g1_xloop")
    e("  s_waitcnt vmcnt(0)")
    stamp(3)
    e("  s_barrier")
    e("  s_barrier")
    e("  s_barrier")
    stamp(4); stamp(5)
    stamp_flush(6)
    e("  s_endpgm")
    e("g1_compute:")
    if OPT["prio"]: e(f"  s_setprio {OPT['prio']}")
    NB = OPT["nb"]; D = NB - 1
    ACC = 112
    AB = 40
    XB = 32
    e("  v_lshrrev_b32 v10, 5, v0")
    e("  v_lshlrev_b32 v10, 3, v10")
    e("  v_bfe_u32 v11, v0, 2, 2")
    e("  v_add_u32 v10, v10, v11")
    e("  v_mul_u32_u24 v10, 288, v10")
    e("  v_and_b32 v11, 3, v0")
    e("  v_lshl_add_u32 v10, v11, 3, v10")
    e("  v_bfe_u32 v11, v0, 4, 1")
    e(f"  v_mul_u32_u24 v11, {UPOFF}, v11")
    e("  v_add_u32 v18, v10, v11")
    e("  s_lshl_b32 s40, s14, 12")
    e(f"  s_add_u32 s40, s40, {XBASE}")
    e("  v_and_b32 v10, 31, v0")
    e("  v_lshrrev_b32 v11, 1, v10")
    e("  v_lshrrev_b32 v12, 5, v0")
    e("  v_xor_b32 v11, v11, v12")
    e("  v_and_b32 v11, 7, v11")
    e("  v_lshlrev_b32 v11, 4, v11")
    e("  v_lshl_add_u32 v10, v10, 7, v11")
    for ks in range(4):
        e(f"  v_xor_b32 v11, {ks<<5}, v10")
        e(f"  v_add_u32 v{20+ks}, s40, v11")
    e("  s_lshl_b32 s42, s17, 2")
    e("  s_add_u32 s42, s42, s14")
    e("  s_mul_i32 s42, s42, 288")
    e("  s_mul_i32 s43, s19, 9")
    e("  s_add_u32 s42, s42, s43")
    e("  s_lshl_b32 s42, s42, 10")
    e("  v_lshlrev_b32 v24, 4, v0")
    for i in range(144): e(f"  v_mov_b32 v{ACC+i}, 0")
    e("  s_waitcnt lgkmcnt(0)")
    srd(28, "s12", "s13", H_BYTES)
    stamp_setup(0, "s14")
    def aread(j):
        ks, t = j // 9, j % 9
        o = (ks >> 1)*WSLOT + (ks & 1)*16*288 + t*32
        b = AB + 4*(j % NB)
        return [f"  ds_read_b64_tr_b16 v[{b}:{b+1}], v18 offset:{o}",
                f"  ds_read_b64_tr_b16 v[{b+2}:{b+3}], v18 offset:{o+1152}"]
    def xread(ks):
        b = XB + 4*(ks & 1)
        return f"  ds_read_b128 v[{b}:{b+3}], v{20+ks}"
    def mfma(j):
        ks, t = j // 9, j % 9
        b = AB + 4*(j % NB); xb = XB + 4*(ks & 1)
        return f"  v_mfma_f32_32x32x16_bf16 v[{ACC+16*t}:{ACC+16*t+15}], v[{b}:{b+3}], v[{xb}:{xb+3}], v[{ACC+16*t}:{ACC+16*t+15}]"
    stamp(1)
    e("  s_barrier")
    stamp(2)
    e("  s_waitcnt lgkmcnt(0)")
    e(xread(0))
    for j in range(D):
        for x in aread(j): e(x)
    e("  s_mov_b32 s48, 0")
    e("  s_mov_b32 s51, 0")
    XPOS = 2
    def body(last):
        q = []
        ent = []
        for jp in range(27, 36):
            if jp + D >= 36: ent += [("a", jp + D - 36)]*2
            if jp == 27 + XPOS: ent.append(("x", 0))
        q = ent
        for j in range(36):
            ks, t = j // 9, j % 9
            if j == 18: e("  s_barrier")
            need = [i for i, it in enumerate(q) if it == ("a", j) or it == ("x", ks)]
            if need:
                n = len(q) - 1 - max(need)
                e(f"  s_waitcnt lgkmcnt({n})")
                q = q[max(need)+1:]
            e(mfma(j))
            if j + D == 36 and not last:
                e("  v_add_u32 v18, s52, v18")
            if j + D < 36 or not last:
                for x in aread((j + D) % 36): e(x)
                q += [("a", (j+D) % 36 if j + D < 36 else -1)]*2
            if t == XPOS:
                if ks < 3:
                    e(xread(ks+1)); q.append(("x", ks+1))
                    if not last: e(f"  v_add_u32 v{20+ks+1}, s53, v{20+ks+1}")
                elif not last:
                    e(f"  v_add_u32 v20, s53, v20")
                    e(xread(0)); q.append(("x", -1))
    e("g1_loop:")
    e(f"  s_add_u32 s51, s51, 1")
    e(f"  s_cmp_eq_u32 s51, 3")
    e(f"  s_mov_b32 s52, {2*WSLOT}")
    e(f"  s_cmov_b32 s52, {(-4*WSLOT) & 0xffffffff}")
    e(f"  s_mov_b32 s53, {XSLOT}")
    e(f"  s_cmov_b32 s53, {(-2*XSLOT) & 0xffffffff}")
    e(f"  s_cselect_b32 s51, 0, s51")
    body(False)
    e("  s_add_u32 s48, s48, 1")
    e("  s_cmp_lt_u32 s48, 8")
    e("  s_barrier")
    e("  s_cbranch_scc1 g1_loop")
    body(True)
    stamp(3)
    K1 = -2*0.7978845608028654*1.4426950408889634
    K3 = K1*0.044715
    e(f"  s_mov_b32 s54, {f2u(K3)}")
    e(f"  s_mov_b32 s55, {f2u(K3)}")
    e(f"  v_mov_b32 v26, {f2u(K1)}")
    e(f"  v_mov_b32 v27, {f2u(K1)}")
    e("  s_nop 7"); e("  s_nop 7")
    for t in range(9):
        a = ACC + 16*t
        tmp = 64 + (t & 1)*16
        for p in range(4):
            g = a + 2*p
            e(f"  v_pk_mul_f32 v[{tmp+2*p}:{tmp+2*p+1}], v[{g}:{g+1}], v[{g}:{g+1}]")
        for p in range(4):
            e(f"  v_pk_fma_f32 v[{tmp+2*p}:{tmp+2*p+1}], v[{tmp+2*p}:{tmp+2*p+1}], s[54:55], v[26:27]")
        for p in range(4):
            g = a + 2*p
            e(f"  v_pk_mul_f32 v[{tmp+2*p}:{tmp+2*p+1}], v[{tmp+2*p}:{tmp+2*p+1}], v[{g}:{g+1}]")
        for i in range(8): e(f"  v_exp_f32 v{tmp+i}, v{tmp+i}")
        for p in range(4):
            g = a + 2*p
            e(f"  v_pk_mul_f32 v[{g}:{g+1}], v[{g}:{g+1}], v[{g+8}:{g+9}]")
        for p in range(4):
            e(f"  v_pk_add_f32 v[{tmp+2*p}:{tmp+2*p+1}], v[{tmp+2*p}:{tmp+2*p+1}], 1.0 op_sel_hi:[1,0]")
        for i in range(8): e(f"  v_rcp_f32 v{tmp+i}, v{tmp+i}")
        e("  s_nop 0")
        for p in range(4):
            g = a + 2*p
            e(f"  v_pk_mul_f32 v[{g}:{g+1}], v[{g}:{g+1}], v[{tmp+2*p}:{tmp+2*p+1}]")
        for p in range(4):
            g = a + 2*p
            e(f"  v_cvt_pk_bf16_f32 v{tmp+8+p}, v{g}, v{g+1}")
        e(f"  buffer_store_dwordx4 v[{tmp+8}:{tmp+11}], v24, s[28:31], s42 offen offset:{(t*1024) % 4096}")
        if t % 4 == 3: e("  s_add_u32 s42, s42, 4096")
    stamp(4)
    if L.STAMP:
        e("  s_waitcnt vmcnt(0)")
        stamp(5)
        L.STV = 4
        stamp_flush(6)
    e("g1_end:")
    e("  s_endpgm")
    kdesc(name, 256)

e(f"; @launch kernel=gemm1_kernel grid=(256,1,1) block=(512,1,1) lds={LDS_TOTAL}")
e("; @launch kernel=gemm2_kernel grid=(256,1,1) block=(512,1,1) lds=147456")
e("; @launch kernel=reduce_kernel grid=(576,1,1) block=(256,1,1) lds=0")
e('.amdgcn_target "amdgcn-amd-amdhsa--gfx950"')
e(".text")
gemm1()
L.gemm2()
L.reduce_k()
print("\n".join(L.out))
```

```python
import sys, struct
OPT = dict(stamp=0, rot=1, delta=4, d0=2, pf=0, prio=0, spin=400000)
for a in sys.argv[1:]:
    k, v = a.split("="); OPT[k] = int(v)
STAMP = OPT["stamp"]
out = []
def e(s=""): out.append(s)
def f2u(x): return "0x%08x" % struct.unpack("<I", struct.pack("<f", x))[0]

X_BYTES = 1024*576*2
W_BYTES = 576*4608*2
P_OFF = 0x1000000
FH_OFF = 0x2000000
FP_OFF = 0x2010000
WS_USE = 0x2020000
ST_OFF = 0x4000000
IMG = 9216
WSLOT = 2*IMG
XBASE = 6*WSLOT
XSLOT = 16384
NONCE_LDS = XBASE + 3*XSLOT
LDS_TOTAL = NONCE_LDS + 64
M16 = "v_mfma_f32_16x16x32_bf16"
NAME = "standalone__geglu_ffn__sampling_kernel"

def srd(d, lo, hi, nbytes):
    e(f"  s_mov_b32 s{d}, {lo}")
    e(f"  s_mov_b32 s{d+1}, {hi}")
    e(f"  s_mov_b32 s{d+2}, {nbytes}")
    e(f"  s_mov_b32 s{d+3}, 0x00020000")
NST = 12
def stamp(i):
    if STAMP: e(f"  s_memrealtime s[{64+2*i}:{65+2*i}]")
def stamp_init():
    if STAMP:
        for i in range(1, NST): e(f"  s_mov_b64 s[{64+2*i}:{65+2*i}], 0")
def stamp_flush():
    if not STAMP: return
    e("  s_waitcnt lgkmcnt(0)")
    e(f"  s_add_u32 s92, s16, {ST_OFF}")
    e(f"  s_addc_u32 s93, s17, 0")
    e(f"  s_mov_b32 s94, 0x100000")
    e(f"  s_mov_b32 s95, 0x00020000")
    e(f"  s_lshl_b32 s96, s2, 3")
    e(f"  s_add_u32 s96, s96, s18")
    e(f"  s_lshl_b32 s96, s96, 7")
    e("  v_mov_b32 v250, 0")
    for i in range(NST):
        e(f"  v_mov_b32 v252, s{64+2*i}")
        e(f"  v_mov_b32 v253, s{65+2*i}")
        e(f"  buffer_store_dwordx2 v[252:253], v250, s[92:95], s96 offen offset:{i*8}")
        e("  s_nop 1")

e(f"; @launch grid=(256,1,1) block=(512,1,1) lds={LDS_TOTAL}")
e('.amdgcn_target "amdgcn-amd-amdhsa--gfx950"')
e(".text")
e(f".globl {NAME}\n.p2align 8\n.type {NAME},@function\n{NAME}:")
e("  s_cmp_ge_u32 s2, 256")
e("  s_cbranch_scc1 L_end")
stamp(0)
e("  s_load_dwordx8 s[4:11], s[0:1], 0")
e("  s_load_dwordx4 s[12:15], s[0:1], 32")
e("  s_load_dwordx2 s[16:17], s[0:1], 48")
e("  v_lshrrev_b32 v1, 6, v0")
e("  v_and_b32 v0, 63, v0")
e("  v_readfirstlane_b32 s18, v1")
stamp_init()
e("  s_and_b32 s19, s2, 7")
e("  s_lshr_b32 s20, s2, 3")
e("  s_lshr_b32 s21, s20, 2")
e("  s_and_b32 s20, s20, 3")
e("  s_add_u32 s22, s20, s21")
e("  s_and_b32 s22, s22, 3")
if OPT["rot"]:
    e("  s_lshl_b32 s23, s20, 1")
    e("  s_add_u32 s23, s23, s21")
    e("  s_add_u32 s23, s23, s19")
    for _ in range(2):
        e("  s_cmp_ge_u32 s23, 9"); e("  s_cselect_b32 s24, 9, 0"); e("  s_sub_u32 s23, s23, s24")
else:
    e("  s_mov_b32 s23, 0")
e("  s_cmp_lt_u32 s18, 4")
e("  s_cbranch_scc1 L_compute")

def piece_rc(i):
    e(f"  v_add_u32 v30, {64*i}, v0")
    e("  v_mul_lo_u32 v31, v30, s36")
    e("  v_lshrrev_b32 v31, 16, v31")
    e("  v_mul_u32_u24 v32, 18, v31")
    e("  v_sub_u32 v32, v30, v32")
def wd_setup():
    e("  s_movk_i32 s36, 3641")
    e("  s_mul_i32 s35, s22, 288")
    for i in range(9):
        piece_rc(i)
        e("  v_mul_u32_u24 v31, 1152, v31")
        e("  v_lshl_add_u32 v31, v32, 4, v31")
        e("  v_add_u32 v31, s35, v31")
        e(f"  v_subrev_u32 v{12+i}, {(i%4)*1024}, v31")
    srd(44, "s10", "s11", W_BYTES)
    e(f"  s_mul_i32 s50, s19, {576*1152}")
def wd_issue(eidx, ldsaddr):
    if eidx < 16:
        e(f"  s_lshl_b32 s51, s20, 2")
        if isinstance(eidx, int): e(f"  s_add_u32 s51, s51, {eidx}")
        e(f"  s_add_u32 s51, s51, s34")
        e(f"  s_and_b32 s51, s51, 15")
    else:
        e(f"  s_mov_b32 s51, {eidx}")
    e(f"  s_mul_i32 s51, s51, {32*1152}")
    e(f"  s_add_u32 s51, s51, s50")
    for i in range(9):
        if i % 4 == 0:
            e(f"  s_add_u32 m0, s32, {ldsaddr + i*1024}")
            e("  s_nop 0")
        e(f"  buffer_load_dwordx4 v{12+i}, s[44:47], s51 offen offset:{(i%4)*1024} lds")

e("  s_cmp_lt_u32 s18, 6")
e("  s_cbranch_scc0 L_xload")
e("  s_sub_u32 s34, s18, 4")
e("  s_movk_i32 s36, 3641")
e("  s_movk_i32 s37, 9216")
e("  s_mul_i32 s35, s19, 1152")
e("  s_lshl_b32 s38, s20, 8")
e("  s_add_u32 s38, s38, s35")
e("  s_lshl_b32 s39, s20, 5")
e("  s_add_u32 s39, s39, s35")
e("  s_add_u32 s39, s39, 768")
e("  v_mov_b32 v34, s38")
e("  v_mov_b32 v35, s39")
for i in range(9):
    piece_rc(i)
    e("  v_and_b32 v33, 0x13, v31")
    e("  v_bfe_u32 v36, v31, 2, 1")
    e("  v_lshl_or_b32 v33, v36, 3, v33")
    e("  v_bfe_u32 v36, v31, 3, 1")
    e("  v_lshl_or_b32 v33, v36, 2, v33")
    e("  v_mul_lo_u32 v33, v33, s37")
    e("  v_cmp_lt_u32 vcc, 15, v32")
    e("  v_lshl_add_u32 v33, v32, 4, v33")
    e("  v_cndmask_b32 v36, v34, v35, vcc") if False else None
    e("  s_nop 0")
    e("  v_cndmask_b32 v36, v34, v35, vcc")
    e("  v_add_u32 v33, v36, v33")
    e(f"  v_subrev_u32 v{2+i}, {(i%4)*1024}, v33")
e(f"  s_mul_i32 s48, s23, {64*9216}")
e(f"  s_mul_i32 s32, s34, {IMG}")
e("  s_cmp_eq_u32 s34, 1")
e("  s_waitcnt lgkmcnt(0)")
e("  s_cselect_b32 s40, s8, s6")
e("  s_cselect_b32 s41, s9, s7")
e(f"  s_mov_b32 s42, {W_BYTES}")
e("  s_mov_b32 s43, 0x00020000")
e("  s_mov_b32 s49, s32")
e(f"  s_add_u32 s33, s32, {6*WSLOT}")
def w_issue():
    for i in range(9):
        if i % 4 == 0:
            e(f"  s_add_u32 m0, s49, {i*1024}")
            e("  s_nop 0")
        e(f"  buffer_load_dwordx4 v{2+i}, s[40:43], s48 offen offset:{(i%4)*1024} lds")
    e(f"  s_add_u32 s48, s48, {32*9216}")
    e(f"  s_cmp_eq_u32 s48, {576*9216}")
    e("  s_cselect_b32 s48, 0, s48")
    e(f"  s_add_u32 s49, s49, {WSLOT}")
    e("  s_cmp_eq_u32 s49, s33")
    e("  s_cselect_b32 s49, s32, s49")
DL, D0 = OPT["delta"], OPT["d0"]
issued = 0
for _ in range(D0): w_issue(); issued += 1
stamp(1)
s = 0
first = True
while issued - s < DL:
    e(f"  s_waitcnt vmcnt({9*(issued-1-s)})")
    e("  s_barrier")
    if first: stamp(2); first = False
    w_issue(); w_issue(); issued += 2
    if s == 0: wd_setup()
    s += 1
assert issued - s == DL
nloop = 18 - issued
e(f"  s_mov_b32 s52, {nloop}")
e("L_wloop:")
e(f"  s_waitcnt vmcnt({9*(DL-1)})")
e("  s_barrier")
w_issue()
e("  s_sub_u32 s52, s52, 1")
e("  s_cmp_lg_u32 s52, 0")
e("  s_cbranch_scc1 L_wloop")
s += nloop; issued = 18
sig = 0
while s <= 19:
    if s <= 17:
        e(f"  s_waitcnt vmcnt({9*(issued-1-s)})")
    if s == 17: stamp(3)
    e("  s_barrier")
    while sig < 6 and 18 + sig - 6 <= s - 2 and (18 + sig <= s + DL or s >= 18):
        wd_issue(2*sig, sig*WSLOT); sig += 1; issued += 1
    s += 1
assert sig == 6
e(f"  s_waitcnt vmcnt({9*4})")
e("  s_barrier")
e("  s_waitcnt vmcnt(0)")
stamp(4)
e("  s_barrier")
e("  s_cmp_eq_u32 s34, 0")
e("  s_cbranch_scc0 L_w17skip")
wd_issue(17, 0)
e("L_w17skip:")
e("  s_waitcnt vmcnt(0)")
e("  s_barrier")
e("  s_mov_b32 s53, s34")
e("  s_branch L_reduce")

e("L_xload:")
e("  s_sub_u32 s34, s18, 6")
e("  s_lshl_b32 s38, s21, 7")
e("  s_lshl_b32 s39, s34, 6")
e("  s_add_u32 s38, s38, s39")
for q in range(8):
    e("  v_lshrrev_b32 v30, 3, v0")
    e(f"  v_add_u32 v30, {8*q}, v30")
    e("  v_lshrrev_b32 v31, 1, v30")
    e("  v_xor_b32 v31, v31, v0")
    e("  v_and_b32 v31, 7, v31")
    e("  v_add_u32 v30, s38, v30")
    e("  v_mul_u32_u24 v30, 1152, v30")
    e(f"  v_lshl_add_u32 v31, v31, 4, v30")
    e(f"  v_subrev_u32 v{2+q}, {(q%4)*1024}, v31")
e("  s_lshl_b32 s48, s23, 7")
e("  s_lshl_b32 s33, s34, 13")
e("  s_waitcnt lgkmcnt(0)")
srd(40, "s4", "s5", X_BYTES)
def x_issue(u):
    for i in range(8):
        if i % 4 == 0:
            e(f"  s_add_u32 m0, s33, {XBASE + (u%3)*XSLOT + i*1024}")
            e("  s_nop 0")
        e(f"  buffer_load_dwordx4 v{2+i}, s[40:43], s48 offen offset:{(i%4)*1024} lds")
    e(f"  s_add_u32 s48, s48, 128")
    e(f"  s_cmp_eq_u32 s48, 1152")
    e("  s_cselect_b32 s48, 0, s48")
x_issue(0)
stamp(1)
xi = 1
pend = [8]
labels = ["x0"]
def xwait(lbl):
    global pend, labels
    if lbl in labels:
        k = labels.index(lbl)
        e(f"  s_waitcnt vmcnt({sum(pend[k+1:])})")
        pend = pend[k+1:]; labels = labels[k+1:]
for s in range(20):
    if s % 2 == 0 and s <= 16: xwait(f"x{s//2}")
    e("  s_barrier")
    if s == 0:
        stamp(2)
        x_issue(1); pend.append(8); labels.append("x1"); xi = 2
        wd_setup()
        e(f"  s_mul_i32 s32, s34, {IMG}")
    elif s == 1:
        x_issue(2); pend.append(8); labels.append("x2"); xi = 3
    elif s % 2 == 1 and xi <= 8 and s >= 2*(xi-3)+3:
        x_issue(xi); pend.append(8); labels.append(f"x{xi}"); xi += 1
    if s == 17:
        wd_issue(12, XBASE); pend.append(9); labels.append("d12")
    if s == 19:
        wd_issue(14, XBASE + 2*IMG); pend.append(9); labels.append("d14")
        e("  s_cmp_eq_u32 s34, 0")
        e("  s_cbranch_scc0 L_x16skip")
        wd_issue(16, XBASE + 4*IMG)
        e("L_x16skip:")
assert xi == 9
e("  s_barrier")
e("  s_waitcnt vmcnt(0)")
stamp(4)
e("  s_barrier")
e("  s_barrier")
e("  s_add_u32 s53, s34, 2")
e("  s_branch L_reduce")

e("L_compute:")
if OPT["prio"]: e(f"  s_setprio {OPT['prio']}")
NB = 6; D = 5
AB = 16; XB = 40; HOWN = 56; TMP = 88; ACC = 112
e("  v_lshrrev_b32 v10, 5, v0")
e("  v_lshlrev_b32 v10, 4, v10")
e("  v_bfe_u32 v11, v0, 2, 3")
e("  v_add_u32 v10, v10, v11")
e("  v_mul_u32_u24 v10, 288, v10")
e("  v_and_b32 v11, 3, v0")
e("  v_lshl_add_u32 v2, v11, 3, v10")
e("  v_lshrrev_b32 v10, 2, v0")
e("  v_mul_u32_u24 v10, 288, v10")
e("  v_lshl_add_u32 v6, v11, 3, v10")
e(f"  v_add_u32 v7, {6*IMG}, v6")
e(f"  v_add_u32 v8, {12*IMG}, v6")
e("  s_lshl_b32 s40, s18, 12")
e(f"  s_add_u32 s40, s40, {XBASE}")
e("  v_and_b32 v10, 15, v0")
e("  v_lshrrev_b32 v11, 1, v10")
e("  v_lshrrev_b32 v12, 4, v0")
e("  v_xor_b32 v11, v11, v12")
e("  v_lshlrev_b32 v11, 4, v11")
e("  v_lshl_add_u32 v10, v10, 7, v11")
e("  v_add_u32 v3, s40, v10")
e("  v_xor_b32 v10, 64, v10")
e("  v_add_u32 v4, s40, v10")
e("  v_lshlrev_b32 v5, 4, v0")
e("  v_lshlrev_b32 v9, 3, v0")
e("  v_and_b32 v10, 3, v0")
e("  v_lshlrev_b32 v10, 2, v10")
e("  s_waitcnt lgkmcnt(0)")
srd(28, "s16", "s17", WS_USE)
e("  s_cmp_eq_u32 s18, 0")
e("  s_cbranch_scc0 L_nononce")
e("  s_memrealtime s[56:57]")
srd(44, "s14", "s15", 256)
e("  s_lshl_b32 s58, s21, 2")
e("  v_mov_b32 v13, 0")
e("  v_mov_b32 v15, 0")
e("  s_waitcnt lgkmcnt(0)")
e("  s_or_b32 s56, s56, 1")
e("  v_mov_b32 v12, s56")
e("  v_mov_b32 v14, s56")
e("  s_mov_b64 exec, 1")
e("  buffer_atomic_cmpswap v[12:13], v15, s[44:47], s58 offen sc0")
e("  s_mov_b64 exec, -1")
e("L_nononce:")
for i in range(144): e(f"  v_mov_b32 v{ACC+i}, 0")

def acc1(t, mat, mh): return ACC + t*16 + mat*8 + mh*4
def a1read(j, d):
    kk, r = j // 18, j % 18
    t, mat = r // 2, r % 2
    o = kk*WSLOT + mat*IMG + d*8*288 + t*32
    b = AB + 4*(j % NB) + 2*d
    return f"  ds_read_b64_tr_b16 v[{b}:{b+1}], v2 offset:{o}"
def x1read(kk, mh):
    b = XB + 8*kk + 4*mh
    return f"  ds_read_b128 v[{b}:{b+3}], v{3+kk} offset:{mh*2048}"
stamp(1)
e("  s_barrier")
stamp(2)
if STAMP: e("  s_waitcnt lgkmcnt(0)")
e(x1read(0, 0)); e(x1read(0, 1))
for j in range(D):
    e(a1read(j, 0)); e(a1read(j, 1))
e("  s_mov_b32 s48, 9")
e("  s_mov_b32 s51, 0")
e("L_loop:")
e(f"  s_add_u32 s51, s51, 1")
e(f"  s_cmp_eq_u32 s51, 3")
e(f"  s_mov_b32 s52, {2*WSLOT}")
e(f"  s_cmov_b32 s52, {(-4*WSLOT) & 0xffffffff}")
e(f"  s_mov_b32 s53, {XSLOT}")
e(f"  s_cmov_b32 s53, {(-2*XSLOT) & 0xffffffff}")
e(f"  s_cselect_b32 s51, 0, s51")
q = [("x", 0), ("x", 0)] + [("a", j) for j in range(D) for _ in range(2)]
for j in range(36):
    kk, r = j // 18, j % 18
    t, mat = r // 2, r % 2
    if r == 18 - D:
        e("  s_barrier")
        if kk == 1:
            e("  v_add_u32 v2, s52, v2")
            e("  v_add_u32 v3, s53, v3")
        nk = 1 - kk
        e(x1read(nk, 0)); e(x1read(nk, 1)); q += [("x", kk+1)]*2
        if kk == 0: e("  v_add_u32 v4, s53, v4")
    need = [i for i, it in enumerate(q) if it == ("a", j) or it == ("x", kk)]
    if need:
        e(f"  s_waitcnt lgkmcnt({len(q)-1-max(need)})")
        q = q[max(need)+1:]
    b = AB + 4*(j % NB)
    for mh in range(2):
        a = acc1(t, mat, mh); xb = XB + 8*kk + 4*mh
        e(f"  {M16} v[{a}:{a+3}], v[{b}:{b+3}], v[{xb}:{xb+3}], v[{a}:{a+3}]")
        e(a1read((j + D) % 36, mh)); q.append(("a", j + D))
e("  s_sub_u32 s48, s48, 1")
e("  s_cmp_lg_u32 s48, 0")
e("  s_cbranch_scc1 L_loop")
stamp(3)
e("  s_cmp_eq_u32 s18, 0")
e("  s_cbranch_scc0 L_nononce2")
e("  s_waitcnt vmcnt(0)")
e("  v_cmp_eq_u32 vcc, 0, v12")
e(f"  v_mov_b32 v13, {NONCE_LDS}")
e("  s_nop 0")
e("  v_cndmask_b32 v12, v12, v14, vcc")
e("  s_mov_b64 exec, 1")
e("  ds_write_b32 v13, v12")
e("  s_mov_b64 exec, -1")
e("L_nononce2:")
e("  s_waitcnt lgkmcnt(0)")
e("  s_barrier")
e(f"  v_mov_b32 v13, {NONCE_LDS}")
e("  ds_read_b32 v11, v13")
K1 = -2*0.7978845608028654*1.4426950408889634
K3 = K1*0.044715
e(f"  s_mov_b32 s54, {f2u(K3)}")
e(f"  s_mov_b32 s55, {f2u(K3)}")
e(f"  v_mov_b32 v14, {f2u(K1)}")
e(f"  v_mov_b32 v15, {f2u(K1)}")
e("  s_lshl_b32 s36, s21, 3")
e("  s_lshl_b32 s37, s18, 1")
e("  s_add_u32 s36, s36, s37")
e("  s_mul_i32 s36, s36, 144")
e("  s_mul_i32 s37, s19, 18")
e("  s_add_u32 s36, s36, s37")
e("  s_lshl_b32 s36, s36, 10")
e(f"  s_add_u32 s37, s36, {144*1024}")
e("  s_lshl_b32 s38, s20, 12")
e("  s_add_u32 s39, s37, s38")
e("  s_add_u32 s38, s36, s38")
e("  s_lshl_b32 s40, s20, 9")
e("  s_add_u32 s40, s40, 16384")
e("  s_add_u32 s41, s37, s40")
e("  s_add_u32 s40, s36, s40")
def gelu_unit(gs, us, dst, tmp):
    for p in range(4): e(f"  v_pk_mul_f32 v[{tmp+2*p}:{tmp+2*p+1}], v[{gs[p]}:{gs[p]+1}], v[{gs[p]}:{gs[p]+1}]")
    for p in range(4): e(f"  v_pk_fma_f32 v[{tmp+2*p}:{tmp+2*p+1}], v[{tmp+2*p}:{tmp+2*p+1}], s[54:55], v[14:15]")
    for p in range(4): e(f"  v_pk_mul_f32 v[{tmp+2*p}:{tmp+2*p+1}], v[{tmp+2*p}:{tmp+2*p+1}], v[{gs[p]}:{gs[p]+1}]")
    for i in range(8): e(f"  v_exp_f32 v{tmp+i}, v{tmp+i}")
    for p in range(4): e(f"  v_pk_mul_f32 v[{gs[p]}:{gs[p]+1}], v[{gs[p]}:{gs[p]+1}], v[{us[p]}:{us[p]+1}]")
    for p in range(4): e(f"  v_pk_add_f32 v[{tmp+2*p}:{tmp+2*p+1}], v[{tmp+2*p}:{tmp+2*p+1}], 1.0 op_sel_hi:[1,0]")
    for i in range(8): e(f"  v_rcp_f32 v{tmp+i}, v{tmp+i}")
    e("  s_nop 0")
    for p in range(4): e(f"  v_pk_mul_f32 v[{gs[p]}:{gs[p]+1}], v[{gs[p]}:{gs[p]+1}], v[{tmp+2*p}:{tmp+2*p+1}]")
    for p in range(4): e(f"  v_cvt_pk_bf16_f32 v{dst+p}, v{gs[p]}, v{gs[p]+1}")
for i in range(4):
    for mh in range(2):
        gs = [acc1(2*i, 0, mh), acc1(2*i, 0, mh)+2, acc1(2*i+1, 0, mh), acc1(2*i+1, 0, mh)+2]
        us = [g + 8 for g in gs]
        dst = HOWN + i*8 + mh*4
        gelu_unit(gs, us, dst, TMP + 8*((2*i+mh) & 1))
        e(f"  buffer_store_dwordx4 v[{dst}:{dst+3}], v5, s[28:31], s{38+mh} offen offset:{i*1024} sc1")
gs = [acc1(8, 0, 0), acc1(8, 0, 0)+2, acc1(8, 0, 1), acc1(8, 0, 1)+2]
gelu_unit(gs, [g + 8 for g in gs], TMP + 16, TMP)
e(f"  buffer_store_dwordx2 v[{TMP+16}:{TMP+17}], v9, s[28:31], s40 offen sc1")
e(f"  buffer_store_dwordx2 v[{TMP+18}:{TMP+19}], v9, s[28:31], s41 offen sc1")
stamp(4)
e("  s_lshl_b32 s42, s21, 3")
e("  s_add_u32 s42, s42, s19")
e("  s_lshl_b32 s42, s42, 2")
e("  s_add_u32 s42, s42, s18")
e("  s_lshl_b32 s42, s42, 7")
e(f"  s_add_u32 s42, s42, {FH_OFF}")
e("  s_lshl_b32 s43, s20, 2")
e("  s_add_u32 s43, s43, s42")
e("  v_mov_b32 v12, 0")
ACC2 = ACC
for i in range(72): e(f"  v_mov_b32 v{ACC2+i}, 0")
e("  s_waitcnt vmcnt(0) lgkmcnt(0)")
e("  buffer_store_dword v11, v12, s[28:31], s43 offen sc1")
stamp(5)
e("  s_barrier")
def hreg(ei, mh):
    if ei < 4: return HOWN + ei*8 + mh*4
    if ei < 13: return 184 + (ei-4)*8 + mh*4
    if ei < 16: return TMP + (ei-13)*8 + mh*4
    return XB + (ei-16)*8 + mh*4
def a2read(j, d):
    ei, t = j // 9, j % 9
    img = ei if ei < 17 else 0
    base = 6 + img // 6
    o = (img % 6)*IMG + d*16*288 + t*32
    b = AB + 4*(j % NB) + 2*d
    return f"  ds_read_b64_tr_b16 v[{b}:{b+1}], v{base} offset:{o}"
def gemm2_range(e0, e1, pre=None):
    j0, j1 = e0*9, e1*9
    q = []
    for j in range(j0, min(j0 + D, j1)):
        e(a2read(j, 0)); e(a2read(j, 1)); q += [j, j]
    for j in range(j0, j1):
        ei, t = j // 9, j % 9
        if pre: pre(j)
        need = [i for i, it in enumerate(q) if it == j]
        e(f"  s_waitcnt lgkmcnt({len(q)-1-max(need)})")
        q = q[max(need)+1:]
        b = AB + 4*(j % NB)
        for mh in range(2):
            a = ACC2 + t*8 + mh*4; hb = hreg(ei, mh)
            e(f"  {M16} v[{a}:{a+3}], v[{b}:{b+3}], v[{hb}:{hb+3}], v[{a}:{a+3}]")
            if j + D < j1:
                e(a2read(j + D, mh)); q.append(j + D)
if STAMP: e("  s_waitcnt lgkmcnt(0)")
gemm2_range(0, 4)
stamp(6)
e(f"  s_mov_b32 s48, {OPT['spin']}")
e("L_poll1:")
e("  buffer_load_dword v12, v10, s[28:31], s42 offen sc1")
e("  s_sub_u32 s48, s48, 1")
e("  s_waitcnt vmcnt(0)")
e("  v_cmp_ne_u32 vcc, v12, v11")
e("  s_cmp_eq_u32 s48, 0")
e("  s_cbranch_scc1 L_poll1done")
e("  s_cbranch_vccnz L_poll1")
e("L_poll1done:")
stamp(7)
nld = 0
for p in range(1, 4):
    e(f"  s_add_u32 s44, s20, {p}")
    e("  s_and_b32 s44, s44, 3")
    e("  s_lshl_b32 s44, s44, 12")
    e("  s_add_u32 s45, s37, s44")
    e("  s_add_u32 s44, s36, s44")
    for i in range(4):
        for mh in range(2):
            h = hreg(4*p + i, mh)
            e(f"  buffer_load_dwordx4 v[{h}:{h+3}], v5, s[28:31], s{44+mh} offen offset:{i*1024} sc1")
e("  s_add_u32 s44, s36, 16384")
e("  s_add_u32 s45, s37, 16384")
for k in range(2):
    for mh in range(2):
        h = hreg(16 + k, mh)
        for hf in range(2):
            e(f"  buffer_load_dwordx2 v[{h+2*hf}:{h+2*hf+1}], v9, s[28:31], s{44+mh} offen offset:{k*1024+hf*512} sc1")
e("  s_barrier")
if STAMP: e("  s_waitcnt lgkmcnt(0)")
def pre2(j):
    ei, t = j // 9, j % 9
    if t == 0:
        done = 2*(ei - 4 + 1) if ei < 16 else 24 + 4*(ei - 15)
        e(f"  s_waitcnt vmcnt({32 - done})")
        if ei == 4: stamp(8)
    if j == 17*9 - D: e("  s_barrier")
def pre2s(j):
    pre2(j)
gemm2_range(4, 18, pre2)
stamp(9)
e("  s_lshl_b32 s44, s21, 2")
e("  s_add_u32 s44, s44, s22")
e("  s_lshl_b32 s44, s44, 2")
e("  s_add_u32 s44, s44, s18")
e("  s_lshl_b32 s46, s44, 7")
e(f"  s_add_u32 s46, s46, {FP_OFF}")
e("  s_lshl_b32 s47, s19, 2")
e("  s_add_u32 s46, s46, s47")
e("  s_mul_i32 s44, s44, 72")
e("  s_add_u32 s44, s44, s19")
e("  s_lshl_b32 s44, s44, 10")
e(f"  s_add_u32 s44, s44, {P_OFF}")
e("  v_mov_b32 v12, 0")
for t in range(9):
    a = ACC2 + t*8; d = HOWN + 4*t
    for p in range(4): e(f"  v_cvt_pk_bf16_f32 v{d+p}, v{a+2*p}, v{a+2*p+1}")
    e(f"  buffer_store_dwordx4 v[{d}:{d+3}], v5, s[28:31], s44 offen sc1")
    e("  s_add_u32 s44, s44, 8192")
e("  s_waitcnt vmcnt(0)")
e("  buffer_store_dword v11, v12, s[28:31], s46 offen sc1")
stamp(10)
e("  s_cmp_eq_u32 s18, 0")
e("  s_cbranch_scc0 L_fin")
e("  s_cmp_lt_u32 s19, 4")
e("  s_cbranch_scc0 L_fin")
e("  s_mov_b32 s53, 4")
e("L_reduce:")
srd(28, "s16", "s17", WS_USE)
srd(24, "s12", "s13", X_BYTES)
e(f"  v_mov_b32 v13, {NONCE_LDS}")
e("  ds_read_b32 v11, v13")
e("  s_lshl_b32 s53, s53, 3")
e("  s_add_u32 s53, s53, s19")
e("  s_mul_i32 s54, s53, 57")
e("  s_lshr_b32 s54, s54, 9")
e("  s_mul_i32 s55, s54, 9")
e("  s_sub_u32 s55, s53, s55")
e("  s_lshl_b32 s44, s21, 2")
e("  s_add_u32 s44, s44, s22")
e("  s_lshl_b32 s46, s44, 2")
e("  s_add_u32 s46, s46, s54")
e("  s_lshl_b32 s46, s46, 7")
e(f"  s_add_u32 s46, s46, {FP_OFF}")
e("  s_mul_i32 s44, s44, 36")
e("  s_add_u32 s44, s44, s53")
e("  s_lshl_b32 s44, s44, 13")
e(f"  s_add_u32 s44, s44, {P_OFF}")
e("  s_add_u32 s45, s44, 4096")
e("  s_lshl_b32 s47, s21, 7")
e("  s_lshl_b32 s49, s54, 5")
e("  s_add_u32 s47, s47, s49")
e("  s_mul_i32 s47, s47, 1152")
e("  s_mul_i32 s49, s22, 288")
e("  s_add_u32 s47, s47, s49")
e("  s_lshl_b32 s49, s55, 5")
e("  s_add_u32 s47, s47, s49")
e(f"  s_add_u32 s49, s47, {16*1152}")
e("  v_and_b32 v1, 15, v0")
e("  v_mul_u32_u24 v1, 1152, v1")
e("  v_lshrrev_b32 v2, 4, v0")
e("  v_lshl_add_u32 v1, v2, 3, v1")
e("  v_lshlrev_b32 v5, 4, v0")
e("  v_and_b32 v10, 7, v0")
e("  v_lshlrev_b32 v10, 2, v10")
e(f"  s_mov_b32 s48, {OPT['spin']}")
e("  s_waitcnt lgkmcnt(0)")
e("L_poll2:")
e("  buffer_load_dword v12, v10, s[28:31], s46 offen sc1")
e("  s_sub_u32 s48, s48, 1")
e("  s_waitcnt vmcnt(0)")
e("  v_cmp_ne_u32 vcc, v12, v11")
e("  s_cmp_eq_u32 s48, 0")
e("  s_cbranch_scc1 L_poll2done")
e("  s_cbranch_vccnz L_poll2")
e("L_poll2done:")
if STAMP: e(f"  s_memrealtime s[{64+2*7}:{65+2*7}]") if False else None
stamp(6) if False else None
for k in range(8):
    e(f"  buffer_load_dwordx4 v[{16+4*k}:{19+4*k}], v5, s[28:31], s{44 + k//4} offen offset:{(k%4)*1024} sc1")
e("  s_mov_b32 s50, 0xffff0000")
for k in range(8):
    e(f"  s_waitcnt vmcnt({7-k})")
    for p in range(4):
        src = 16 + 4*k + p
        if k == 0:
            e(f"  v_lshlrev_b32 v{48+2*p}, 16, v{src}")
            e(f"  v_and_b32 v{49+2*p}, s50, v{src}")
        else:
            e(f"  v_lshlrev_b32 v{56+2*p}, 16, v{src}")
            e(f"  v_and_b32 v{57+2*p}, s50, v{src}")
    if k:
        for p in range(4): e(f"  v_pk_add_f32 v[{48+2*p}:{49+2*p}], v[{48+2*p}:{49+2*p}], v[{56+2*p}:{57+2*p}]")
for p in range(4): e(f"  v_cvt_pk_bf16_f32 v{16+p}, v{48+2*p}, v{49+2*p}")
e("  buffer_store_dwordx2 v[16:17], v1, s[24:27], s47 offen")
e("  buffer_store_dwordx2 v[18:19], v1, s[24:27], s49 offen")
if STAMP: e("  s_waitcnt vmcnt(0)")
stamp(11)
e("L_fin:")
stamp_flush()
e("L_end:")
e("  s_endpgm")
e('.section .rodata,"a"\n.p2align 6')
e(f".amdhsa_kernel {NAME}")
e("  .amdhsa_next_free_vgpr 256\n  .amdhsa_next_free_sgpr 102\n  .amdhsa_accum_offset 256")
e("  .amdhsa_group_segment_fixed_size 0\n  .amdhsa_kernarg_size 56\n  .amdhsa_user_sgpr_count 2\n  .amdhsa_user_sgpr_kernarg_segment_ptr 1\n  .amdhsa_system_sgpr_workgroup_id_x 1\n.end_amdhsa_kernel")
print("\n".join(out))
```

```python
import sys, struct
OPT = dict(stamp=0, rot=1, delta=4, d0=2, pf=0, prio=0, spin=400000)
for a in sys.argv[1:]:
    k, v = a.split("="); OPT[k] = int(v)
STAMP = OPT["stamp"]
out = []
def e(s=""): out.append(s)
def f2u(x): return "0x%08x" % struct.unpack("<I", struct.pack("<f", x))[0]

X_BYTES = 1024*576*2
W_BYTES = 576*4608*2
P_OFF = 0x1000000
FH_OFF = 0x2000000
FP_OFF = 0x2010000
WS_USE = 0x2020000
ST_OFF = 0x4000000
IMG = 9216
WSLOT = 2*IMG
XBASE = 6*WSLOT
XSLOT = 16384
NONCE_LDS = XBASE + 3*XSLOT
LDS_TOTAL = NONCE_LDS + 64
M16 = "v_mfma_f32_16x16x32_bf16"
NAME = "standalone__geglu_ffn__sampling_kernel"

def srd(d, lo, hi, nbytes):
    e(f"  s_mov_b32 s{d}, {lo}")
    e(f"  s_mov_b32 s{d+1}, {hi}")
    e(f"  s_mov_b32 s{d+2}, {nbytes}")
    e(f"  s_mov_b32 s{d+3}, 0x00020000")
NST = 12
def stamp(i):
    if STAMP: e(f"  s_memrealtime s[{64+2*i}:{65+2*i}]")
def stamp_init():
    if STAMP:
        for i in range(1, NST): e(f"  s_mov_b64 s[{64+2*i}:{65+2*i}], 0")
def stamp_flush():
    if not STAMP: return
    e("  s_waitcnt lgkmcnt(0)")
    if STAMP == 2:
        srd(92, "s14", "s15", 256)
        e("  v_mov_b32 v250, 0")
        e("  s_mov_b64 exec, 1")
        for n, i in enumerate((0, 2, 3, 5, 8, 9, 10, 11)):
            e(f"  v_mov_b32 v252, s{64+2*i}")
            e(f"  buffer_atomic_umax v252, v250, s[92:95], 0 offen offset:{32+n*4}")
            e("  s_nop 1")
        return
    e(f"  s_add_u32 s92, s16, {ST_OFF}")
    e(f"  s_addc_u32 s93, s17, 0")
    e(f"  s_mov_b32 s94, 0x100000")
    e(f"  s_mov_b32 s95, 0x00020000")
    e(f"  s_lshl_b32 s96, s2, 3")
    e(f"  s_add_u32 s96, s96, s18")
    e(f"  s_lshl_b32 s96, s96, 7")
    e("  v_mov_b32 v250, 0")
    for i in range(NST):
        e(f"  v_mov_b32 v252, s{64+2*i}")
        e(f"  v_mov_b32 v253, s{65+2*i}")
        e(f"  buffer_store_dwordx2 v[252:253], v250, s[92:95], s96 offen offset:{i*8}")
        e("  s_nop 1")

e(f"; @launch grid=(256,1,1) block=(512,1,1) lds={LDS_TOTAL}")
e('.amdgcn_target "amdgcn-amd-amdhsa--gfx950"')
e(".text")
e(f".globl {NAME}\n.p2align 8\n.type {NAME},@function\n{NAME}:")
e("  s_cmp_ge_u32 s2, 256")
e("  s_cbranch_scc1 L_end")
stamp(0)
e("  s_load_dwordx8 s[4:11], s[0:1], 0")
e("  s_load_dwordx4 s[12:15], s[0:1], 32")
e("  s_load_dwordx2 s[16:17], s[0:1], 48")
e("  v_lshrrev_b32 v1, 6, v0")
e("  v_and_b32 v0, 63, v0")
e("  v_readfirstlane_b32 s18, v1")
stamp_init()
e("  s_and_b32 s19, s2, 7")
e("  s_lshr_b32 s20, s2, 3")
e("  s_lshr_b32 s21, s20, 2")
e("  s_and_b32 s20, s20, 3")
e("  s_add_u32 s22, s20, s21")
e("  s_and_b32 s22, s22, 3")
if OPT["rot"]:
    e("  s_lshl_b32 s23, s20, 1")
    e("  s_add_u32 s23, s23, s21")
    e("  s_add_u32 s23, s23, s19")
    for _ in range(2):
        e("  s_cmp_ge_u32 s23, 9"); e("  s_cselect_b32 s24, 9, 0"); e("  s_sub_u32 s23, s23, s24")
else:
    e("  s_mov_b32 s23, 0")
e("  s_cmp_lt_u32 s18, 4")
e("  s_cbranch_scc1 L_compute")

def piece_rc(i):
    e(f"  v_add_u32 v30, {64*i}, v0")
    e("  v_mul_lo_u32 v31, v30, s36")
    e("  v_lshrrev_b32 v31, 16, v31")
    e("  v_mul_u32_u24 v32, 18, v31")
    e("  v_sub_u32 v32, v30, v32")
def wd_setup():
    e("  s_movk_i32 s36, 3641")
    e("  s_mul_i32 s35, s22, 288")
    for i in range(9):
        piece_rc(i)
        e("  v_mul_u32_u24 v31, 1152, v31")
        e("  v_lshl_add_u32 v31, v32, 4, v31")
        e("  v_add_u32 v31, s35, v31")
        e(f"  v_subrev_u32 v{12+i}, {(i%4)*1024}, v31")
    srd(44, "s10", "s11", W_BYTES)
    e(f"  s_mul_i32 s50, s19, {576*1152}")
def wd_issue(eidx, ldsaddr):
    if eidx < 16:
        e(f"  s_lshl_b32 s51, s20, 2")
        if isinstance(eidx, int): e(f"  s_add_u32 s51, s51, {eidx}")
        e(f"  s_add_u32 s51, s51, s34")
        e(f"  s_and_b32 s51, s51, 15")
    else:
        e(f"  s_mov_b32 s51, {eidx}")
    e(f"  s_mul_i32 s51, s51, {32*1152}")
    e(f"  s_add_u32 s51, s51, s50")
    for i in range(9):
        if i % 4 == 0:
            e(f"  s_add_u32 m0, s32, {ldsaddr + i*1024}")
            e("  s_nop 0")
        e(f"  buffer_load_dwordx4 v{12+i}, s[44:47], s51 offen offset:{(i%4)*1024} lds")

e("  s_cmp_lt_u32 s18, 6")
e("  s_cbranch_scc0 L_xload")
e("  s_sub_u32 s34, s18, 4")
e("  s_movk_i32 s36, 3641")
e("  s_movk_i32 s37, 9216")
e("  s_mul_i32 s35, s19, 1152")
e("  s_lshl_b32 s38, s20, 8")
e("  s_add_u32 s38, s38, s35")
e("  s_lshl_b32 s39, s20, 5")
e("  s_add_u32 s39, s39, s35")
e("  s_add_u32 s39, s39, 768")
e("  v_mov_b32 v34, s38")
e("  v_mov_b32 v35, s39")
for i in range(9):
    piece_rc(i)
    e("  v_and_b32 v33, 0x13, v31")
    e("  v_bfe_u32 v36, v31, 2, 1")
    e("  v_lshl_or_b32 v33, v36, 3, v33")
    e("  v_bfe_u32 v36, v31, 3, 1")
    e("  v_lshl_or_b32 v33, v36, 2, v33")
    e("  v_mul_lo_u32 v33, v33, s37")
    e("  v_cmp_lt_u32 vcc, 15, v32")
    e("  v_lshl_add_u32 v33, v32, 4, v33")
    e("  v_cndmask_b32 v36, v34, v35, vcc") if False else None
    e("  s_nop 0")
    e("  v_cndmask_b32 v36, v34, v35, vcc")
    e("  v_add_u32 v33, v36, v33")
    e(f"  v_subrev_u32 v{2+i}, {(i%4)*1024}, v33")
e(f"  s_mul_i32 s48, s23, {64*9216}")
e(f"  s_mul_i32 s32, s34, {IMG}")
e("  s_cmp_eq_u32 s34, 1")
e("  s_waitcnt lgkmcnt(0)")
e("  s_cselect_b32 s40, s8, s6")
e("  s_cselect_b32 s41, s9, s7")
e(f"  s_mov_b32 s42, {W_BYTES}")
e("  s_mov_b32 s43, 0x00020000")
e("  s_mov_b32 s49, s32")
e(f"  s_add_u32 s33, s32, {6*WSLOT}")
def w_issue():
    for i in range(9):
        if i % 4 == 0:
            e(f"  s_add_u32 m0, s49, {i*1024}")
            e("  s_nop 0")
        e(f"  buffer_load_dwordx4 v{2+i}, s[40:43], s48 offen offset:{(i%4)*1024} lds")
    e(f"  s_add_u32 s48, s48, {32*9216}")
    e(f"  s_cmp_eq_u32 s48, {576*9216}")
    e("  s_cselect_b32 s48, 0, s48")
    e(f"  s_add_u32 s49, s49, {WSLOT}")
    e("  s_cmp_eq_u32 s49, s33")
    e("  s_cselect_b32 s49, s32, s49")
DL, D0 = OPT["delta"], OPT["d0"]
issued = 0
for _ in range(D0): w_issue(); issued += 1
stamp(1)
s = 0
first = True
while issued - s < DL:
    e(f"  s_waitcnt vmcnt({9*(issued-1-s)})")
    e("  s_barrier")
    if first: stamp(2); first = False
    w_issue(); w_issue(); issued += 2
    if s == 0: wd_setup()
    s += 1
assert issued - s == DL
nloop = 18 - issued
e(f"  s_mov_b32 s52, {nloop}")
e("L_wloop:")
e(f"  s_waitcnt vmcnt({9*(DL-1)})")
e("  s_barrier")
w_issue()
e("  s_sub_u32 s52, s52, 1")
e("  s_cmp_lg_u32 s52, 0")
e("  s_cbranch_scc1 L_wloop")
s += nloop; issued = 18
sig = 0
while s <= 19:
    if s <= 17:
        e(f"  s_waitcnt vmcnt({9*(issued-1-s)})")
    if s == 17: stamp(3)
    e("  s_barrier")
    while sig < 6 and 18 + sig - 6 <= s - 2 and (18 + sig <= s + DL or s >= 18):
        wd_issue(2*sig, sig*WSLOT); sig += 1; issued += 1
    s += 1
assert sig == 6
e(f"  s_waitcnt vmcnt({9*4})")
e("  s_barrier")
e("  s_waitcnt vmcnt(0)")
stamp(4)
e("  s_barrier")
e("  s_cmp_eq_u32 s34, 0")
e("  s_cbranch_scc0 L_w17skip")
wd_issue(17, 0)
e("L_w17skip:")
e("  s_waitcnt vmcnt(0)")
e("  s_barrier")
e("  s_mov_b32 s53, s34")
e("  s_branch L_reduce")

e("L_xload:")
e("  s_sub_u32 s34, s18, 6")
e("  s_lshl_b32 s38, s21, 7")
e("  s_lshl_b32 s39, s34, 6")
e("  s_add_u32 s38, s38, s39")
for q in range(8):
    e("  v_lshrrev_b32 v30, 3, v0")
    e(f"  v_add_u32 v30, {8*q}, v30")
    e("  v_lshrrev_b32 v31, 1, v30")
    e("  v_xor_b32 v31, v31, v0")
    e("  v_and_b32 v31, 7, v31")
    e("  v_add_u32 v30, s38, v30")
    e("  v_mul_u32_u24 v30, 1152, v30")
    e(f"  v_lshl_add_u32 v31, v31, 4, v30")
    e(f"  v_subrev_u32 v{2+q}, {(q%4)*1024}, v31")
e("  s_lshl_b32 s48, s23, 7")
e("  s_lshl_b32 s33, s34, 13")
e("  s_waitcnt lgkmcnt(0)")
srd(40, "s4", "s5", X_BYTES)
def x_issue(u):
    for i in range(8):
        if i % 4 == 0:
            e(f"  s_add_u32 m0, s33, {XBASE + (u%3)*XSLOT + i*1024}")
            e("  s_nop 0")
        e(f"  buffer_load_dwordx4 v{2+i}, s[40:43], s48 offen offset:{(i%4)*1024} lds")
    e(f"  s_add_u32 s48, s48, 128")
    e(f"  s_cmp_eq_u32 s48, 1152")
    e("  s_cselect_b32 s48, 0, s48")
x_issue(0)
stamp(1)
xi = 1
pend = [8]
labels = ["x0"]
def xwait(lbl):
    global pend, labels
    if lbl in labels:
        k = labels.index(lbl)
        e(f"  s_waitcnt vmcnt({sum(pend[k+1:])})")
        pend = pend[k+1:]; labels = labels[k+1:]
for s in range(20):
    if s % 2 == 0 and s <= 16: xwait(f"x{s//2}")
    e("  s_barrier")
    if s == 0:
        stamp(2)
        x_issue(1); pend.append(8); labels.append("x1"); xi = 2
        wd_setup()
        e(f"  s_mul_i32 s32, s34, {IMG}")
    elif s == 1:
        x_issue(2); pend.append(8); labels.append("x2"); xi = 3
    elif s % 2 == 1 and xi <= 8 and s >= 2*(xi-3)+3:
        x_issue(xi); pend.append(8); labels.append(f"x{xi}"); xi += 1
    if s == 17:
        wd_issue(12, XBASE); pend.append(9); labels.append("d12")
    if s == 19:
        wd_issue(14, XBASE + 2*IMG); pend.append(9); labels.append("d14")
        e("  s_cmp_eq_u32 s34, 0")
        e("  s_cbranch_scc0 L_x16skip")
        wd_issue(16, XBASE + 4*IMG)
        e("L_x16skip:")
assert xi == 9
e("  s_barrier")
e("  s_waitcnt vmcnt(0)")
stamp(4)
e("  s_barrier")
e("  s_barrier")
e("  s_add_u32 s53, s34, 2")
e("  s_branch L_reduce")

e("L_compute:")
if OPT["prio"]: e(f"  s_setprio {OPT['prio']}")
NB = 6; D = 5
AB = 16; XB = 40; HOWN = 56; TMP = 88; ACC = 112
e("  v_lshrrev_b32 v10, 5, v0")
e("  v_lshlrev_b32 v10, 4, v10")
e("  v_bfe_u32 v11, v0, 2, 3")
e("  v_add_u32 v10, v10, v11")
e("  v_mul_u32_u24 v10, 288, v10")
e("  v_and_b32 v11, 3, v0")
e("  v_lshl_add_u32 v2, v11, 3, v10")
e("  v_lshrrev_b32 v10, 2, v0")
e("  v_mul_u32_u24 v10, 288, v10")
e("  v_lshl_add_u32 v6, v11, 3, v10")
e(f"  v_add_u32 v7, {6*IMG}, v6")
e(f"  v_add_u32 v8, {12*IMG}, v6")
e("  s_lshl_b32 s40, s18, 12")
e(f"  s_add_u32 s40, s40, {XBASE}")
e("  v_and_b32 v10, 15, v0")
e("  v_lshrrev_b32 v11, 1, v10")
e("  v_lshrrev_b32 v12, 4, v0")
e("  v_xor_b32 v11, v11, v12")
e("  v_lshlrev_b32 v11, 4, v11")
e("  v_lshl_add_u32 v10, v10, 7, v11")
e("  v_add_u32 v3, s40, v10")
e("  v_xor_b32 v10, 64, v10")
e("  v_add_u32 v4, s40, v10")
e("  v_lshlrev_b32 v5, 4, v0")
e("  v_lshlrev_b32 v9, 3, v0")
e("  v_and_b32 v10, 3, v0")
e("  v_lshlrev_b32 v10, 2, v10")
e("  s_waitcnt lgkmcnt(0)")
srd(28, "s16", "s17", WS_USE)
e("  s_cmp_eq_u32 s18, 0")
e("  s_cbranch_scc0 L_nononce")
e("  s_memrealtime s[56:57]")
srd(44, "s14", "s15", 256)
e("  s_lshl_b32 s58, s21, 2")
e("  v_mov_b32 v13, 0")
e("  v_mov_b32 v15, 0")
e("  s_waitcnt lgkmcnt(0)")
e("  s_or_b32 s56, s56, 1")
e("  v_mov_b32 v12, s56")
e("  v_mov_b32 v14, s56")
e("  s_mov_b64 exec, 1")
e("  buffer_atomic_cmpswap v[12:13], v15, s[44:47], s58 offen sc0")
e("  s_mov_b64 exec, -1")
e("L_nononce:")
for i in range(144): e(f"  v_mov_b32 v{ACC+i}, 0")

def acc1(t, mat, mh): return ACC + t*16 + mat*8 + mh*4
def a1read(j, d):
    kk, r = j // 18, j % 18
    t, mat = r // 2, r % 2
    o = kk*WSLOT + mat*IMG + d*8*288 + t*32
    b = AB + 4*(j % NB) + 2*d
    return f"  ds_read_b64_tr_b16 v[{b}:{b+1}], v2 offset:{o}"
def x1read(kk, mh):
    b = XB + 8*kk + 4*mh
    return f"  ds_read_b128 v[{b}:{b+3}], v{3+kk} offset:{mh*2048}"
stamp(1)
e("  s_barrier")
stamp(2)
if STAMP: e("  s_waitcnt lgkmcnt(0)")
e(x1read(0, 0)); e(x1read(0, 1))
for j in range(D):
    e(a1read(j, 0)); e(a1read(j, 1))
e("  s_mov_b32 s48, 9")
e("  s_mov_b32 s51, 0")
e("L_loop:")
e(f"  s_add_u32 s51, s51, 1")
e(f"  s_cmp_eq_u32 s51, 3")
e(f"  s_mov_b32 s52, {2*WSLOT}")
e(f"  s_cmov_b32 s52, {(-4*WSLOT) & 0xffffffff}")
e(f"  s_mov_b32 s53, {XSLOT}")
e(f"  s_cmov_b32 s53, {(-2*XSLOT) & 0xffffffff}")
e(f"  s_cselect_b32 s51, 0, s51")
q = [("x", 0), ("x", 0)] + [("a", j) for j in range(D) for _ in range(2)]
for j in range(36):
    kk, r = j // 18, j % 18
    t, mat = r // 2, r % 2
    if r == 18 - D:
        e("  s_barrier")
        if kk == 1:
            e("  v_add_u32 v2, s52, v2")
            e("  v_add_u32 v3, s53, v3")
        nk = 1 - kk
        e(x1read(nk, 0)); e(x1read(nk, 1)); q += [("x", kk+1)]*2
        if kk == 0: e("  v_add_u32 v4, s53, v4")
    need = [i for i, it in enumerate(q) if it == ("a", j) or it == ("x", kk)]
    if need:
        e(f"  s_waitcnt lgkmcnt({len(q)-1-max(need)})")
        q = q[max(need)+1:]
    b = AB + 4*(j % NB)
    for mh in range(2):
        a = acc1(t, mat, mh); xb = XB + 8*kk + 4*mh
        e(f"  {M16} v[{a}:{a+3}], v[{b}:{b+3}], v[{xb}:{xb+3}], v[{a}:{a+3}]")
        e(a1read((j + D) % 36, mh)); q.append(("a", j + D))
e("  s_sub_u32 s48, s48, 1")
e("  s_cmp_lg_u32 s48, 0")
e("  s_cbranch_scc1 L_loop")
stamp(3)
e("  s_cmp_eq_u32 s18, 0")
e("  s_cbranch_scc0 L_nononce2")
e("  s_waitcnt vmcnt(0)")
e("  v_cmp_eq_u32 vcc, 0, v12")
e(f"  v_mov_b32 v13, {NONCE_LDS}")
e("  s_nop 0")
e("  v_cndmask_b32 v12, v12, v14, vcc")
e("  s_mov_b64 exec, 1")
e("  ds_write_b32 v13, v12")
e("  s_mov_b64 exec, -1")
e("L_nononce2:")
e("  s_waitcnt lgkmcnt(0)")
e("  s_barrier")
e(f"  v_mov_b32 v13, {NONCE_LDS}")
e("  ds_read_b32 v11, v13")
K1 = -2*0.7978845608028654*1.4426950408889634
K3 = K1*0.044715
e(f"  s_mov_b32 s54, {f2u(K3)}")
e(f"  s_mov_b32 s55, {f2u(K3)}")
e(f"  v_mov_b32 v14, {f2u(K1)}")
e(f"  v_mov_b32 v15, {f2u(K1)}")
e("  s_lshl_b32 s36, s21, 3")
e("  s_lshl_b32 s37, s18, 1")
e("  s_add_u32 s36, s36, s37")
e("  s_mul_i32 s36, s36, 144")
e("  s_mul_i32 s37, s19, 18")
e("  s_add_u32 s36, s36, s37")
e("  s_lshl_b32 s36, s36, 10")
e(f"  s_add_u32 s37, s36, {144*1024}")
e("  s_lshl_b32 s38, s20, 12")
e("  s_add_u32 s39, s37, s38")
e("  s_add_u32 s38, s36, s38")
e("  s_lshl_b32 s40, s20, 9")
e("  s_add_u32 s40, s40, 16384")
e("  s_add_u32 s41, s37, s40")
e("  s_add_u32 s40, s36, s40")
def gelu_unit(gs, us, dst, tmp):
    for p in range(4): e(f"  v_pk_mul_f32 v[{tmp+2*p}:{tmp+2*p+1}], v[{gs[p]}:{gs[p]+1}], v[{gs[p]}:{gs[p]+1}]")
    for p in range(4): e(f"  v_pk_fma_f32 v[{tmp+2*p}:{tmp+2*p+1}], v[{tmp+2*p}:{tmp+2*p+1}], s[54:55], v[14:15]")
    for p in range(4): e(f"  v_pk_mul_f32 v[{tmp+2*p}:{tmp+2*p+1}], v[{tmp+2*p}:{tmp+2*p+1}], v[{gs[p]}:{gs[p]+1}]")
    for i in range(8): e(f"  v_exp_f32 v{tmp+i}, v{tmp+i}")
    for p in range(4): e(f"  v_pk_mul_f32 v[{gs[p]}:{gs[p]+1}], v[{gs[p]}:{gs[p]+1}], v[{us[p]}:{us[p]+1}]")
    for p in range(4): e(f"  v_pk_add_f32 v[{tmp+2*p}:{tmp+2*p+1}], v[{tmp+2*p}:{tmp+2*p+1}], 1.0 op_sel_hi:[1,0]")
    for i in range(8): e(f"  v_rcp_f32 v{tmp+i}, v{tmp+i}")
    e("  s_nop 0")
    for p in range(4): e(f"  v_pk_mul_f32 v[{gs[p]}:{gs[p]+1}], v[{gs[p]}:{gs[p]+1}], v[{tmp+2*p}:{tmp+2*p+1}]")
    for p in range(4): e(f"  v_cvt_pk_bf16_f32 v{dst+p}, v{gs[p]}, v{gs[p]+1}")
for i in range(4):
    for mh in range(2):
        gs = [acc1(2*i, 0, mh), acc1(2*i, 0, mh)+2, acc1(2*i+1, 0, mh), acc1(2*i+1, 0, mh)+2]
        us = [g + 8 for g in gs]
        dst = HOWN + i*8 + mh*4
        gelu_unit(gs, us, dst, TMP + 8*((2*i+mh) & 1))
        e(f"  buffer_store_dwordx4 v[{dst}:{dst+3}], v5, s[28:31], s{38+mh} offen offset:{i*1024} sc1")
gs = [acc1(8, 0, 0), acc1(8, 0, 0)+2, acc1(8, 0, 1), acc1(8, 0, 1)+2]
gelu_unit(gs, [g + 8 for g in gs], TMP + 16, TMP)
e(f"  buffer_store_dwordx2 v[{TMP+16}:{TMP+17}], v9, s[28:31], s40 offen sc1")
e(f"  buffer_store_dwordx2 v[{TMP+18}:{TMP+19}], v9, s[28:31], s41 offen sc1")
stamp(4)
e("  s_lshl_b32 s42, s21, 3")
e("  s_add_u32 s42, s42, s19")
e("  s_lshl_b32 s42, s42, 2")
e("  s_add_u32 s42, s42, s18")
e("  s_lshl_b32 s42, s42, 7")
e(f"  s_add_u32 s42, s42, {FH_OFF}")
e("  s_lshl_b32 s43, s20, 2")
e("  s_add_u32 s43, s43, s42")
e("  v_mov_b32 v12, 0")
ACC2 = ACC
for i in range(72): e(f"  v_mov_b32 v{ACC2+i}, 0")
e("  s_waitcnt vmcnt(0) lgkmcnt(0)")
e("  buffer_store_dword v11, v12, s[28:31], s43 offen sc1")
stamp(5)
e("  s_barrier")
def hreg(ei, mh):
    if ei < 4: return HOWN + ei*8 + mh*4
    if ei < 13: return 184 + (ei-4)*8 + mh*4
    if ei < 16: return TMP + (ei-13)*8 + mh*4
    return XB + (ei-16)*8 + mh*4
def a2read(j, d):
    ei, t = j // 9, j % 9
    img = ei if ei < 17 else 0
    base = 6 + img // 6
    o = (img % 6)*IMG + d*16*288 + t*32
    b = AB + 4*(j % NB) + 2*d
    return f"  ds_read_b64_tr_b16 v[{b}:{b+1}], v{base} offset:{o}"
def gemm2_range(e0, e1, pre=None):
    j0, j1 = e0*9, e1*9
    q = []
    for j in range(j0, min(j0 + D, j1)):
        e(a2read(j, 0)); e(a2read(j, 1)); q += [j, j]
    for j in range(j0, j1):
        ei, t = j // 9, j % 9
        if pre: pre(j)
        need = [i for i, it in enumerate(q) if it == j]
        e(f"  s_waitcnt lgkmcnt({len(q)-1-max(need)})")
        q = q[max(need)+1:]
        b = AB + 4*(j % NB)
        for mh in range(2):
            a = ACC2 + t*8 + mh*4; hb = hreg(ei, mh)
            e(f"  {M16} v[{a}:{a+3}], v[{b}:{b+3}], v[{hb}:{hb+3}], v[{a}:{a+3}]")
            if j + D < j1:
                e(a2read(j + D, mh)); q.append(j + D)
if STAMP: e("  s_waitcnt lgkmcnt(0)")
gemm2_range(0, 4)
stamp(6)
e(f"  s_mov_b32 s48, {OPT['spin']}")
e("L_poll1:")
e("  buffer_load_dword v12, v10, s[28:31], s42 offen sc1")
e("  s_sub_u32 s48, s48, 1")
e("  s_waitcnt vmcnt(0)")
e("  v_cmp_ne_u32 vcc, v12, v11")
e("  s_cmp_eq_u32 s48, 0")
e("  s_cbranch_scc1 L_poll1done")
e("  s_cbranch_vccnz L_poll1")
e("L_poll1done:")
stamp(7)
nld = 0
for p in range(1, 4):
    e(f"  s_add_u32 s44, s20, {p}")
    e("  s_and_b32 s44, s44, 3")
    e("  s_lshl_b32 s44, s44, 12")
    e("  s_add_u32 s45, s37, s44")
    e("  s_add_u32 s44, s36, s44")
    for i in range(4):
        for mh in range(2):
            h = hreg(4*p + i, mh)
            e(f"  buffer_load_dwordx4 v[{h}:{h+3}], v5, s[28:31], s{44+mh} offen offset:{i*1024} sc1")
e("  s_add_u32 s44, s36, 16384")
e("  s_add_u32 s45, s37, 16384")
for k in range(2):
    for mh in range(2):
        h = hreg(16 + k, mh)
        for hf in range(2):
            e(f"  buffer_load_dwordx2 v[{h+2*hf}:{h+2*hf+1}], v9, s[28:31], s{44+mh} offen offset:{k*1024+hf*512} sc1")
e("  s_barrier")
if STAMP: e("  s_waitcnt lgkmcnt(0)")
def pre2(j):
    ei, t = j // 9, j % 9
    if t == 0:
        done = 2*(ei - 4 + 1) if ei < 16 else 24 + 4*(ei - 15)
        e(f"  s_waitcnt vmcnt({32 - done})")
        if ei == 4: stamp(8)
    if j == 17*9 - D: e("  s_barrier")
def pre2s(j):
    pre2(j)
gemm2_range(4, 18, pre2)
stamp(9)
e("  s_lshl_b32 s44, s21, 2")
e("  s_add_u32 s44, s44, s22")
e("  s_lshl_b32 s44, s44, 2")
e("  s_add_u32 s44, s44, s18")
e("  s_lshl_b32 s46, s44, 7")
e(f"  s_add_u32 s46, s46, {FP_OFF}")
e("  s_lshl_b32 s47, s19, 2")
e("  s_add_u32 s46, s46, s47")
e("  s_mul_i32 s44, s44, 72")
e("  s_add_u32 s44, s44, s19")
e("  s_lshl_b32 s44, s44, 10")
e(f"  s_add_u32 s44, s44, {P_OFF}")
e("  v_mov_b32 v12, 0")
for t in range(9):
    a = ACC2 + t*8; d = HOWN + 4*t
    for p in range(4): e(f"  v_cvt_pk_bf16_f32 v{d+p}, v{a+2*p}, v{a+2*p+1}")
    e(f"  buffer_store_dwordx4 v[{d}:{d+3}], v5, s[28:31], s44 offen sc1")
    e("  s_add_u32 s44, s44, 8192")
e("  s_waitcnt vmcnt(0)")
e("  buffer_store_dword v11, v12, s[28:31], s46 offen sc1")
stamp(10)
e("  s_cmp_eq_u32 s18, 0")
e("  s_cbranch_scc0 L_fin")
e("  s_cmp_lt_u32 s19, 4")
e("  s_cbranch_scc0 L_fin")
e("  s_mov_b32 s53, 4")
e("L_reduce:")
srd(28, "s16", "s17", WS_USE)
srd(24, "s12", "s13", X_BYTES)
e(f"  v_mov_b32 v13, {NONCE_LDS}")
e("  ds_read_b32 v11, v13")
e("  s_lshl_b32 s53, s53, 3")
e("  s_add_u32 s53, s53, s19")
e("  s_mul_i32 s54, s53, 57")
e("  s_lshr_b32 s54, s54, 9")
e("  s_mul_i32 s55, s54, 9")
e("  s_sub_u32 s55, s53, s55")
e("  s_lshl_b32 s44, s21, 2")
e("  s_add_u32 s44, s44, s22")
e("  s_lshl_b32 s46, s44, 2")
e("  s_add_u32 s46, s46, s54")
e("  s_lshl_b32 s46, s46, 7")
e(f"  s_add_u32 s46, s46, {FP_OFF}")
e("  s_mul_i32 s44, s44, 36")
e("  s_add_u32 s44, s44, s53")
e("  s_lshl_b32 s44, s44, 13")
e(f"  s_add_u32 s44, s44, {P_OFF}")
e("  s_add_u32 s45, s44, 4096")
e("  s_lshl_b32 s47, s21, 7")
e("  s_lshl_b32 s49, s54, 5")
e("  s_add_u32 s47, s47, s49")
e("  s_mul_i32 s47, s47, 1152")
e("  s_mul_i32 s49, s22, 288")
e("  s_add_u32 s47, s47, s49")
e("  s_lshl_b32 s49, s55, 5")
e("  s_add_u32 s47, s47, s49")
e(f"  s_add_u32 s49, s47, {16*1152}")
e("  v_and_b32 v1, 15, v0")
e("  v_mul_u32_u24 v1, 1152, v1")
e("  v_lshrrev_b32 v2, 4, v0")
e("  v_lshl_add_u32 v1, v2, 3, v1")
e("  v_lshlrev_b32 v5, 4, v0")
e("  v_and_b32 v10, 7, v0")
e("  v_lshlrev_b32 v10, 2, v10")
e(f"  s_mov_b32 s48, {OPT['spin']}")
e("  s_waitcnt lgkmcnt(0)")
e("L_poll2:")
e("  buffer_load_dword v12, v10, s[28:31], s46 offen sc1")
e("  s_sub_u32 s48, s48, 1")
e("  s_waitcnt vmcnt(0)")
e("  v_cmp_ne_u32 vcc, v12, v11")
e("  s_cmp_eq_u32 s48, 0")
e("  s_cbranch_scc1 L_poll2done")
e("  s_cbranch_vccnz L_poll2")
e("L_poll2done:")
if STAMP: e(f"  s_memrealtime s[{64+2*7}:{65+2*7}]") if False else None
stamp(6) if False else None
for k in range(8):
    e(f"  buffer_load_dwordx4 v[{16+4*k}:{19+4*k}], v5, s[28:31], s{44 + k//4} offen offset:{(k%4)*1024} sc1")
e("  s_mov_b32 s50, 0xffff0000")
for k in range(8):
    e(f"  s_waitcnt vmcnt({7-k})")
    for p in range(4):
        src = 16 + 4*k + p
        if k == 0:
            e(f"  v_lshlrev_b32 v{48+2*p}, 16, v{src}")
            e(f"  v_and_b32 v{49+2*p}, s50, v{src}")
        else:
            e(f"  v_lshlrev_b32 v{56+2*p}, 16, v{src}")
            e(f"  v_and_b32 v{57+2*p}, s50, v{src}")
    if k:
        for p in range(4): e(f"  v_pk_add_f32 v[{48+2*p}:{49+2*p}], v[{48+2*p}:{49+2*p}], v[{56+2*p}:{57+2*p}]")
for p in range(4): e(f"  v_cvt_pk_bf16_f32 v{16+p}, v{48+2*p}, v{49+2*p}")
e("  buffer_store_dwordx2 v[16:17], v1, s[24:27], s47 offen")
e("  buffer_store_dwordx2 v[18:19], v1, s[24:27], s49 offen")
if STAMP: e("  s_waitcnt vmcnt(0)")
stamp(11)
e("L_fin:")
stamp_flush()
e("L_end:")
e("  s_endpgm")
e('.section .rodata,"a"\n.p2align 6')
e(f".amdhsa_kernel {NAME}")
e("  .amdhsa_next_free_vgpr 256\n  .amdhsa_next_free_sgpr 102\n  .amdhsa_accum_offset 256")
e("  .amdhsa_group_segment_fixed_size 0\n  .amdhsa_kernarg_size 56\n  .amdhsa_user_sgpr_count 2\n  .amdhsa_user_sgpr_kernarg_segment_ptr 1\n  .amdhsa_system_sgpr_workgroup_id_x 1\n.end_amdhsa_kernel")
print("\n".join(out))
```

```python
import sys, struct
OPT = dict(stamp=0, rot=0, grp=3, nt=9, prio=0, spin=400000, slp=1, cpf=1, spf=0, tm=10,
           f1=6, f2=0, f3=14, la=14, lb=40, lc=70, warmf=1, kst=0x100000, xstop=0, spoll=1, vpf=8, wdw=6, wdpre=4, ue=8, wsl=0, ea=-1)
for a in sys.argv[1:]:
    k, v = a.split("="); assert k in OPT, k; OPT[k] = int(v, 0)
STAMP = OPT["stamp"]
out = []
def e(s=""): out.append(s)
def f2u(x): return "0x%08x" % struct.unpack("<I", struct.pack("<f", x))[0]

X_BYTES = 1024*576*2
W_BYTES = 576*4608*2
P_OFF = 0x1000000
FH_OFF = 0x2000000
WS_USE = 0x2040000
ST_OFF = 0x4000000
IMG = 9216
WSLOT = 2*IMG
XBASE = 6*WSLOT
XSLOT = 16384
SY = XBASE + 3*XSLOT
O_G1, O_CONS, O_TG, O_SIG, O_M = 4, 8, 16, 32, 64
LDS_TOTAL = SY + 128
NTS = " nt" if OPT["nt"] & 1 else ""
NTX = " nt" if OPT["nt"] & 2 else ""
NTD = " nt" if OPT["nt"] & 4 else ""
NTP = " nt" if OPT["nt"] & 8 else ""
M16 = "v_mfma_f32_16x16x32_bf16"
NAME = "standalone__geglu_ffn__sampling_kernel"
KST = OPT["kst"]
ORDER = [(0, 0), (0, 1), (0, 2), (0, 3), (1, 0), (2, 0), (3, 0), (1, 1), (1, 2), (2, 1), (2, 2), (3, 1), (3, 2),
         (1, 3), (2, 3), (3, 3), ("S", 0), ("S", 1)]
uid = [0]
def lab(p):
    uid[0] += 1
    return f"L_{p}{uid[0]}"
def srd(d, lo, hi, nbytes):
    e(f"  s_mov_b32 s{d}, {lo}"); e(f"  s_mov_b32 s{d+1}, {hi}")
    e(f"  s_mov_b32 s{d+2}, {nbytes}"); e(f"  s_mov_b32 s{d+3}, 0x00020000")
NST, SB = 14, 64
LMODE = [False]
def stamp(i, force=False):
    if STAMP == 3 and LMODE[0] and not force: return
    if STAMP: e(f"  s_memrealtime s[{SB+2*i}:{SB+1+2*i}]")
def stamp_init():
    if STAMP:
        for i in range(1, NST): e(f"  s_mov_b64 s[{SB+2*i}:{SB+1+2*i}], 0")
def stamp_flush():
    if not STAMP: return
    e("  s_waitcnt lgkmcnt(0)")
    e(f"  s_add_u32 s92, s16, {ST_OFF}"); e("  s_addc_u32 s93, s17, 0")
    e("  s_mov_b32 s94, 0x100000"); e("  s_mov_b32 s95, 0x00020000")
    e("  s_lshl_b32 s96, s2, 3"); e("  s_add_u32 s96, s96, s18"); e("  s_lshl_b32 s96, s96, 7")
    e("  v_mov_b32 v250, 0")
    for i in range(NST):
        e(f"  v_mov_b32 v252, s{SB+2*i}"); e(f"  v_mov_b32 v253, s{SB+1+2*i}")
        e(f"  buffer_store_dwordx2 v[252:253], v250, s[92:95], s96 offen offset:{i*8}")
        e("  s_nop 1")
def lds_spin(vaddr, off, val, vt):
    l = lab("sp"); d = lab("spd")
    e(f"  s_mov_b32 s61, {OPT['spin']*8}")
    e(f"{l}:")
    e(f"  ds_read_b32 v{vt}, v{vaddr} offset:{off}")
    e("  s_sub_u32 s61, s61, 1")
    e("  s_waitcnt lgkmcnt(0)")
    e(f"  v_readfirstlane_b32 s60, v{vt}")
    e("  s_cmp_eq_u32 s61, 0")
    e(f"  s_cbranch_scc1 {d}")
    e(f"  s_cmp_ge_u32 s60, {val}")
    e(f"  s_cbranch_scc0 {l}")
    e(f"{d}:")
def lds_inc(vaddr, off, vone):
    e("  s_mov_b64 exec, 1")
    e(f"  ds_add_u32 v{vaddr}, v{vone} offset:{off}")
    e("  s_mov_b64 exec, -1")

e(f"; @launch grid=(256,1,1) block=(512,1,1) lds={LDS_TOTAL}")
e('.amdgcn_target "amdgcn-amd-amdhsa--gfx950"')
e(".text")
e(f".globl {NAME}\n.p2align 8\n.type {NAME},@function\n{NAME}:")
e("  s_cmp_ge_u32 s2, 256")
e("  s_cbranch_scc1 L_end")
e("  s_load_dwordx8 s[4:11], s[0:1], 0")
e("  s_load_dwordx4 s[12:15], s[0:1], 32")
e("  s_load_dwordx2 s[16:17], s[0:1], 48")
stamp(0)
e("  v_lshrrev_b32 v1, 6, v0")
e("  v_and_b32 v0, 63, v0")
e("  v_readfirstlane_b32 s18, v1")
stamp_init()
e("  s_and_b32 s19, s2, 7")
e("  s_lshr_b32 s20, s2, 3")
e("  s_lshr_b32 s21, s20, 2")
e("  s_and_b32 s20, s20, 3")
e("  s_add_u32 s23, s20, s21")
e("  s_and_b32 s22, s23, 3")
e("  s_cmp_lt_u32 s18, 4")
e("  s_cbranch_scc1 L_compute")

LMODE[0] = True
if OPT["grp"]:
    G = OPT["grp"]
    tab = 0
    for v in range(11): tab |= ((v % G)*9//G) << (4*v)
    e(f"  s_mov_b32 s24, {tab & 0xffffffff}"); e(f"  s_mov_b32 s25, {tab >> 32}")
    e("  s_lshl_b32 s23, s23, 2")
    e("  s_lshr_b64 s[24:25], s[24:25], s23")
    e("  s_and_b32 s23, s24, 15")
elif OPT["rot"]:
    e("  s_add_u32 s23, s23, s20"); e("  s_add_u32 s23, s23, s19")
    for _ in range(2):
        e("  s_cmp_ge_u32 s23, 9"); e("  s_cselect_b32 s24, 9, 0"); e("  s_sub_u32 s23, s23, s24")
else:
    e("  s_mov_b32 s23, 0")
e("  s_sub_u32 s34, s18, 4")
e("  s_lshl_b32 s38, s21, 7"); e("  s_lshl_b32 s39, s34, 5"); e("  s_add_u32 s38, s38, s39")
e("  v_lshrrev_b32 v30, 3, v0")
e("  v_add_u32 v30, s38, v30")
e("  v_mul_u32_u24 v30, 1152, v30")
e("  v_lshrrev_b32 v31, 4, v0")
e("  v_xor_b32 v31, v31, v0")
e("  v_and_b32 v31, 7, v31")
e("  v_lshl_add_u32 v5, v31, 4, v30")
e("  v_xor_b32 v31, 4, v31")
e("  v_lshl_add_u32 v6, v31, 4, v30")
e(f"  v_add_u32 v6, {8*1152-1024}, v6")
e(f"  v_add_u32 v7, {16*1152-2048}, v5")
e(f"  v_add_u32 v8, {16*1152-2048}, v6")
e("  s_mul_i32 s35, s19, 1152")
e("  s_mul_i32 s38, s20, 288")
e("  s_add_u32 s38, s38, s35")
e("  s_and_b32 s39, s20, 1")
e("  s_lshl_b32 s33, s39, 8")
e("  s_lshl_b32 s32, s39, 5")
e("  s_sub_u32 s39, s38, s33")
e("  s_add_u32 s38, s38, s32")
e("  v_mov_b32 v34, s38"); e("  v_mov_b32 v35, s39")
e("  s_lshl_b32 s36, s34, 6")
for n in range(3):
    r, c = 12 + 2*n, 13 + 2*n
    e(["  v_add_u32 v30, s36, v0", "  v_add_u32 v30, 256, v30", "  v_add_u32 v30, 512, v0"][n])
    e("  v_mul_u32_u24 v31, 3641, v30")
    e(f"  v_lshrrev_b32 v{r}, 16, v31")
    e(f"  v_mul_u32_u24 v31, 18, v{r}")
    e(f"  v_sub_u32 v{c}, v30, v31")
    e(f"  v_and_b32 v33, 0x13, v{r}")
    e(f"  v_bfe_u32 v36, v{r}, 2, 1")
    e("  v_lshl_or_b32 v33, v36, 3, v33")
    e(f"  v_bfe_u32 v36, v{r}, 3, 1")
    e(f"  v_cmp_lt_u32 vcc, 15, v{c}")
    e("  v_lshl_or_b32 v33, v36, 2, v33")
    e("  v_mul_u32_u24 v33, 9216, v33")
    e("  v_cndmask_b32 v36, v34, v35, vcc")
    e(f"  v_lshl_add_u32 v33, v{c}, 4, v33")
    e(f"  v_add_u32 v{2+n}, v36, v33")
e(f"  s_mul_i32 s48, s23, {64*9216}")
e("  s_lshl_b32 s49, s23, 7")
e("  s_lshl_b32 s32, s34, 10")
e("  s_and_b32 s33, s34, 1")
e(f"  s_mul_i32 s33, s33, {IMG}")
e("  s_add_u32 s33, s33, 8192")
e("  s_lshr_b32 s35, s34, 1")
e("  s_lshl_b32 s36, s34, 12")
e(f"  s_add_u32 s36, s36, {XBASE}")
e("  s_mov_b32 s50, 0")
e("  s_mov_b32 s51, s36")
e(f"  s_add_u32 s37, s36, {3*XSLOT}")
e("  s_bitcmp1_b32 s34, 0")
e("  s_waitcnt lgkmcnt(0)")
e("  s_cselect_b32 s56, s8, s6"); e("  s_cselect_b32 s57, s9, s7")
e(f"  s_mov_b32 s58, {W_BYTES}"); e("  s_mov_b32 s59, 0x00020000")
srd(24, "s4", "s5", X_BYTES)
srd(40, "s6", "s7", W_BYTES)
srd(44, "s8", "s9", W_BYTES)
def g_issue(par):
    if par == 0:
        e("  s_mov_b32 m0, s51")
        e(f"  s_add_u32 s51, s51, {XSLOT}")
        for q in range(4): e(f"  buffer_load_dwordx4 v{5+q}, s[24:27], s49 offen offset:{q*1024}{NTX} lds")
        e("  s_cmp_eq_u32 s51, s37"); e("  s_cselect_b32 s51, s36, s51")
        e("  s_add_u32 s49, s49, 128"); e("  s_cmp_eq_u32 s49, 1152"); e("  s_cselect_b32 s49, 0, s49")
    e("  s_add_u32 s52, s50, s32")
    for mat in range(2):
        for n in range(2):
            e(f"  s_add_u32 m0, s52, {mat*IMG + n*4096}")
            e("  s_nop 0")
            e(f"  buffer_load_dwordx4 v{2+n}, s[{40+4*mat}:{43+4*mat}], s48 offen{NTS} lds")
    l = lab("p8")
    e(f"  s_cmp_eq_u32 s35, {par}")
    e(f"  s_cbranch_scc0 {l}")
    e("  s_add_u32 m0, s50, s33")
    e("  s_nop 0")
    e(f"  buffer_load_dwordx4 v4, s[56:59], s48 offen{NTS} lds")
    e(f"{l}:")
    e(f"  s_add_u32 s48, s48, {32*9216}"); e(f"  s_cmp_eq_u32 s48, {576*9216}"); e("  s_cselect_b32 s48, 0, s48")
    e(f"  s_add_u32 s50, s50, {WSLOT}"); e(f"  s_cmp_eq_u32 s50, {6*WSLOT}"); e("  s_cselect_b32 s50, 0, s50")
stamp(1)
g_issue(0); g_issue(1)
e("  s_mul_i32 s53, s22, 288")
e("  s_lshl_b32 s62, s34, 6")
for n in range(3):
    r = 12 + 2*n
    e("  v_add_u32 v30, s62, v0" if n == 0 else "  v_add_u32 v30, 192, v30")
    e("  v_mul_u32_u24 v31, 3641, v30")
    e(f"  v_lshrrev_b32 v{r}, 16, v31")
    e(f"  v_mul_u32_u24 v31, 18, v{r}")
    e("  v_sub_u32 v32, v30, v31")
    e(f"  v_mul_u32_u24 v31, 1152, v{r}")
    e("  v_lshl_add_u32 v31, v32, 4, v31")
    e(f"  v_add_u32 v{9+n}, s53, v31")
e(f"  v_mov_b32 v20, {SY}"); e("  v_mov_b32 v21, 1"); e("  v_mov_b32 v22, 0")
e("  s_lshl_b32 s53, s34, 2")
e("  v_add_u32 v26, s53, v20")
srd(28, "s14", "s15", 256)
e("  s_or_b32 s53, s2, s34")
e("  s_cmp_eq_u32 s53, 0")
e("  s_cbranch_scc0 L_nononce")
e("  s_memrealtime s[60:61]")
e("  s_waitcnt lgkmcnt(0)")
e("  s_lshl_b32 s60, s60, 3")
e("  s_max_u32 s60, s60, 8")
e("  v_mov_b32 v23, s60")
e("  s_waitcnt vmcnt(0)")
e("  buffer_store_dword v23, v22, s[28:31], 0 offen sc1")
e("L_nononce:")
e("  s_lshr_b32 s62, s2, 3"); e("  s_lshl_b32 s62, s62, 2"); e("  s_add_u32 s62, s62, s34")
if OPT["cpf"]:
    e("  s_getpc_b64 s[60:61]")
    e("L_pc:")
    e(f"  s_sub_u32 s60, s60, L_pc-{NAME}")
    e("  s_subb_u32 s61, s61, 0")
    e("  s_lshl_b32 s53, s62, 6")
    e("  s_load_dword s63, s[60:61], s53")
    e("  s_load_dword s63, s[60:61], s53 offset:8192")
    e("  s_add_u32 s53, s53, 16384")
    e(f"  s_min_u32 s53, s53, L_codeend-{NAME}-4")
    e("  s_load_dword s63, s[60:61], s53")
if OPT["spf"]:
    e("  s_mul_i32 s62, s62, 5184")
    e(f"  s_mul_i32 s53, s19, {576*1152}")
    e("  s_add_u32 s62, s62, s53")
if OPT["vpf"] >= 0:
    e("  s_mul_i32 s55, s62, 5184")
    e(f"  s_mul_i32 s53, s19, {576*1152}")
    e("  s_add_u32 s55, s55, s53")
    e("  v_min_u32 v18, 41, v0")
    e("  v_lshlrev_b32 v18, 7, v18")
    e("  v_add_u32 v18, s55, v18")
    srd(96, "s10", "s11", W_BYTES)
def spf():
    if OPT["spf"]:
        for k in range(5): e(f"  s_load_dword s63, s[10:11], s62 offset:{k*64}")
        e("  s_add_u32 s62, s62, 320")
def lbody(it):
    e("  s_waitcnt vmcnt(4)")
    e("  s_barrier")
    if STAMP == 3: stamp(1 + it, True)
    if 0 <= OPT["vpf"] < 8:
        if STAMP == 3:
            if it == OPT["vpf"]: e(f"  buffer_load_dword v17, v18, s[96:99], 0 offen{NTP}")
        else:
            e(f"  s_cmp_eq_u32 s53, {8 - OPT['vpf']}")
            e("  s_cbranch_scc0 L_novpf")
            e(f"  buffer_load_dword v17, v18, s[96:99], 0 offen{NTP}")
            e("L_novpf:")
    g_issue(0); spf()
    e("  s_waitcnt vmcnt(8)")
    e("  s_barrier")
    g_issue(1); spf()
if STAMP == 3:
    for it in range(8): lbody(it)
else:
    e("  s_mov_b32 s53, 8")
    e("L_lloop:")
    lbody(0)
    e("  s_sub_u32 s53, s53, 1"); e("  s_cmp_lg_u32 s53, 0"); e("  s_cbranch_scc1 L_lloop")
if OPT["spf"]: e("  s_load_dword s63, s[10:11], s62")
srd(40, "s10", "s11", W_BYTES)
e(f"  s_mul_i32 s49, s19, {576*1152}")
def piece_row(dst, p):
    e(f"  s_add_u32 s52, s20, {p}"); e("  s_and_b32 s52, s52, 3")
    e(f"  s_lshr_b32 {dst}, s52, 1"); e(f"  s_mul_i32 {dst}, {dst}, 288")
    e("  s_and_b32 s52, s52, 1"); e("  s_lshl_b32 s52, s52, 4")
    e(f"  s_add_u32 {dst}, {dst}, s52"); e(f"  s_add_u32 {dst}, {dst}, 128")
def d_issue(sig):
    so = ["s48", "s54"]; vb = [9, 9]
    if sig < 8:
        for im in range(2):
            p, i = ORDER[2*sig + im]
            e(f"  s_add_u32 s52, s20, {p}"); e("  s_and_b32 s52, s52, 3"); e("  s_mul_i32 s52, s52, 9")
            e(f"  s_add_u32 s52, s52, {1 + 2*i}"); e("  s_lshr_b32 s52, s52, 1")
            e(f"  s_mul_i32 {so[im]}, s52, {32*1152}"); e(f"  s_add_u32 {so[im]}, {so[im]}, s49")
        la = [2*sig*IMG, (2*sig+1)*IMG]
    else:
        for im in range(2):
            piece_row("s50", 2*im); piece_row("s51", 2*im+1)
            e("  s_sub_u32 s51, s51, 16")
            e("  s_mul_i32 s50, s50, 1152"); e("  s_mul_i32 s51, s51, 1152")
            e("  v_mov_b32 v33, s50"); e("  v_mov_b32 v34, s51")
            for n in range(3):
                e(f"  v_cmp_lt_u32 vcc, 15, v{12+2*n}")
                e("  s_nop 1")
                e("  v_cndmask_b32 v35, v33, v34, vcc")
                e(f"  v_add_u32 v{27+3*im+n}, v35, v{9+n}")
            e(f"  s_mov_b32 {so[im]}, s49")
        vb = [27, 30]
        la = [16*IMG, 0]
    for im in range(2):
        for n in range(3):
            e(f"  s_add_u32 m0, s32, {la[im] + n*3072}")
            e("  s_nop 0")
            e(f"  buffer_load_dwordx4 v{vb[im]+n}, s[40:43], {so[im]} offen{NTD} lds")
VP = 1 if OPT["vpf"] == 8 else 0
if VP: e(f"  buffer_load_dword v17, v18, s[96:99], 0 offen{NTP}")
e(f"  s_waitcnt vmcnt({4+VP})")
e("  s_barrier")
stamp(2)
if STAMP == 3: stamp(9, True)
e("  s_cmp_eq_u32 s34, 3")
e("  s_cbranch_scc1 L_poller")
d_issue(0)
e(f"  s_waitcnt vmcnt({6+VP})")
e("  s_barrier")
d_issue(1)
e("  s_barrier")
e("  ds_read_b32 v23, v20")
srd(28, "s16", "s17", WS_USE)
WP = OPT["wdpre"]; LAG = OPT["wdw"] // 6
assert 2 <= WP <= 5
MS = {1: O_M, 3: O_M + 4, 5: O_M + 8, 7: O_M + 12}
done = set()
def landed(k):
    for m in sorted(MS):
        if m <= k and m not in done:
            lds_inc(20, MS[m], 21); done.add(m)
            if m == 1: stamp(3)
for sg in range(2, 8):
    if sg == WP:
        e("  s_waitcnt vmcnt(0)"); landed(sg - 1)
        lds_spin(20, O_G1, 4, 24)
    d_issue(sg)
    e(f"  s_waitcnt vmcnt({6*LAG})")
    landed(sg - LAG)
    if OPT["wsl"]: e(f"  s_sleep {OPT['wsl']}")
e("  s_waitcnt vmcnt(0)")
landed(7)
stamp(4)
if OPT["xstop"]: e("  s_branch L_fin")
lds_spin(20, O_CONS, 4, 24)
d_issue(8)
e("  s_waitcnt vmcnt(0)")
lds_inc(20, O_M + 16, 21)
stamp(6)
srd(24, "s12", "s13", X_BYTES)
e("  s_lshl_b32 s44, s34, 2"); e("  s_and_b32 s45, s19, 1"); e("  s_lshl_b32 s45, s45, 1"); e("  s_add_u32 s44, s44, s45")
e(f"  s_mul_i32 s44, s44, {KST}")
e("  s_lshr_b32 s45, s19, 1"); e("  s_lshl_b32 s45, s45, 8"); e("  s_andn2_b32 s46, s2, 7"); e("  s_add_u32 s45, s45, s46")
e("  s_lshl_b32 s45, s45, 10"); e("  s_add_u32 s44, s44, s45")
e(f"  s_add_u32 s44, s44, {P_OFF}")
e("  s_add_u32 s45, s44, 4096")
e(f"  s_add_u32 s46, s44, {KST}")
e("  s_add_u32 s47, s46, 4096")
e("  s_lshl_b32 s48, s21, 7"); e("  s_lshl_b32 s49, s19, 4"); e("  s_add_u32 s48, s48, s49"); e("  s_mul_i32 s48, s48, 1152")
e("  s_mul_i32 s49, s22, 288"); e("  s_add_u32 s48, s48, s49"); e("  s_mul_i32 s49, s34, 96"); e("  s_add_u32 s48, s48, s49")
e("  v_and_b32 v1, 15, v0"); e("  v_mul_u32_u24 v1, 1152, v1"); e("  v_lshrrev_b32 v2, 4, v0"); e("  v_lshl_add_u32 v1, v2, 3, v1")
e("  v_lshlrev_b32 v5, 4, v0")
e("  s_mov_b32 s50, 0xffff0000")
e("  v_readfirstlane_b32 s3, v23")
e("  s_andn2_b32 s53, s2, 7"); e("  s_lshl_b32 s53, s53, 2"); e("  s_lshr_b32 s62, s19, 1"); e("  s_add_u32 s53, s53, s62")
e("  s_lshl_b32 s53, s53, 7"); e(f"  s_add_u32 s53, s53, {FH_OFF}")
e("  s_add_u32 s3, s3, s34"); e("  s_add_u32 s3, s3, 4")
e("  s_sub_u32 s62, 3, s34")
lds_spin(26, O_TG, 4, 24)
stamp(7)
e(f"  s_mov_b32 s60, {OPT['spin']}")
e("L_rprobe:")
e("  s_sub_u32 s60, s60, 1"); e("  s_cmp_eq_u32 s60, 0"); e("  s_cbranch_scc1 L_rdone")
PR = [32, 33, 35, 36, 37, 38, 39, 51]
for k in range(8): e(f"  s_load_dword s{PR[k]}, s[16:17], s53 offset:{k*512} glc")
e("  s_waitcnt lgkmcnt(0)")
for k in range(8):
    e(f"  s_sub_u32 s{PR[k]}, s{PR[k]}, s3")
    if k: e(f"  s_max_u32 s32, s32, s{PR[k]}")
e("  s_cmp_gt_u32 s32, s62")
e("  s_cbranch_scc1 L_rprobe")
e("L_rpoll:")
stamp(10)
if STAMP: e(f"  s_add_u32 s{SB+2*13}, s{SB+2*13}, 1")
for k in range(16):
    e(f"  buffer_load_dwordx4 v[{32+4*k}:{35+4*k}], v5, s[28:31], s{44 + 2*(k & 1) + (k//8)} offen offset:{((k//2)%4)*1024} sc1")
for k in range(8):
    e(f"  s_waitcnt vmcnt({14-2*k})")
    a, b = 32 + 8*k, 36 + 8*k
    e(f"  v_xor_b32 v{a+3}, v23, v{a+3}"); e(f"  v_xor_b32 v{b+3}, v23, v{b+3}")
    e(f"  v_or_b32 v24, v{a+3}, v{b+3}" if k == 0 else f"  v_or3_b32 v24, v{a+3}, v{b+3}, v24")
    srcs = [a, a+1, a+2, b, b+1, b+2]
    base = 100 if k == 0 else 112
    for p in range(6):
        e(f"  v_lshlrev_b32 v{base+2*p}, 16, v{srcs[p]}"); e(f"  v_and_b32 v{base+1+2*p}, s50, v{srcs[p]}")
    if k:
        for p in range(6): e(f"  v_pk_add_f32 v[{100+2*p}:{101+2*p}], v[{100+2*p}:{101+2*p}], v[{112+2*p}:{113+2*p}]")
e("  v_cmp_ne_u32 vcc, 0, v24")
for p in range(6): e(f"  v_cvt_pk_bf16_f32 v{32+p}, v{100+2*p}, v{101+2*p}")
e("  s_cbranch_vccnz L_rprobe")
e("L_rdone:")
stamp(8)
for k in range(3): e(f"  buffer_store_dwordx2 v[{32+2*k}:{33+2*k}], v1, s[24:27], s48 offen offset:{k*32}")
if STAMP:
    e("  s_waitcnt vmcnt(0)")
    e(f"  s_sub_u32 s{SB+2*12}, {OPT['spin']}, s60")
stamp(9)
e("  s_branch L_fin")

e("L_poller:")
e("  buffer_load_dword v23, v22, s[28:31], 0 offen sc1")
e(f"  s_mov_b32 s60, {OPT['spin']}")
e(f"  s_waitcnt vmcnt({1+VP})")
e("  s_barrier")
e("L_npoll:")
e("  s_waitcnt vmcnt(0)")
e("  v_readfirstlane_b32 s3, v23")
e("  s_cmp_lg_u32 s3, 0")
e("  s_cbranch_scc1 L_nok")
e("  s_sub_u32 s60, s60, 1")
e("  s_cmp_eq_u32 s60, 0")
e("  s_cbranch_scc1 L_nok")
e("  buffer_load_dword v23, v22, s[28:31], 0 offen sc1")
e("  s_branch L_npoll")
e("L_nok:")
e("  ds_write_b32 v20, v23")
e("  s_waitcnt lgkmcnt(0)")
e("  s_barrier")
for p in range(1, 4):
    e(f"  s_add_u32 s52, s20, {p}"); e("  s_and_b32 s52, s52, 3"); e("  s_lshl_b32 s52, s52, 3")
    e("  s_lshl_b32 s53, s21, 5"); e("  s_add_u32 s53, s53, s19"); e("  s_add_u32 s53, s53, s52")
    e("  s_lshl_b32 s53, s53, 9"); e(f"  s_add_u32 s{24+p}, s53, {FH_OFF}")
if OPT["xstop"]: e("  s_branch L_fin")
lds_spin(20, 12, 1, 24)
e(f"  s_mov_b32 s60, {OPT['spin']}")
e("L_hpoll:")
for mt in range(4):
    for p in range(3): e(f"  s_load_dword s{36+3*mt+p}, s[16:17], s{25+p} offset:{mt*128} glc")
e("  s_waitcnt lgkmcnt(0)")
for mt in range(4):
    for p in range(3):
        r = f"s{36+3*mt+p}"
        e(f"  s_sub_u32 {r}, {r}, s3"); e(f"  s_cmp_gt_u32 {r}, 7"); e(f"  s_cselect_b32 {r}, 0, {r}")
    e(f"  s_min_u32 s{36+3*mt}, s{36+3*mt}, s{37+3*mt}"); e(f"  s_min_u32 s{36+3*mt}, s{36+3*mt}, s{38+3*mt}")
    e(f"  v_mov_b32 v{28+mt}, s{36+3*mt}")
e(f"  ds_write_b128 v20, v[28:31] offset:{O_SIG}")
e("  s_min_u32 s36, s36, s39"); e("  s_min_u32 s42, s42, s45"); e("  s_min_u32 s36, s36, s42")
e("  s_sub_u32 s60, s60, 1"); e("  s_cmp_eq_u32 s60, 0"); e("  s_cbranch_scc1 L_hdone")
e("  s_cmp_ge_u32 s36, 3")
e("  s_cbranch_scc0 L_hpoll")
e("L_hdone:")
if STAMP: e(f"  s_sub_u32 s{SB+2*11}, {OPT['spin']}, s60")
stamp(5)
e("  s_branch L_fin")

LMODE[0] = False
e("L_compute:")
if OPT["prio"]: e(f"  s_setprio {OPT['prio']}")
NB = 6; D = 5
AB = 16; XB = 40; OWN = 56; ACC = 112; ACC2 = 184
e(f"  v_mov_b32 v1, {SY}")
e("  v_and_b32 v10, 31, v0")
e("  v_lshl_add_u32 v11, v10, 2, v1")
e("  v_mov_b32 v105, 0")
e("  ds_write_b32 v11, v105")
e("  v_lshrrev_b32 v10, 5, v0"); e("  v_lshlrev_b32 v10, 4, v10"); e("  v_bfe_u32 v11, v0, 2, 3"); e("  v_add_u32 v10, v10, v11")
e("  v_mul_u32_u24 v10, 288, v10"); e("  v_and_b32 v11, 3, v0"); e("  v_lshl_add_u32 v2, v11, 3, v10")
e("  v_lshrrev_b32 v10, 2, v0"); e("  v_mul_u32_u24 v10, 288, v10"); e("  v_lshl_add_u32 v6, v11, 3, v10")
e(f"  v_add_u32 v7, {6*IMG}, v6"); e(f"  v_add_u32 v8, {12*IMG}, v6")
e("  s_lshl_b32 s40, s18, 12"); e(f"  s_add_u32 s40, s40, {XBASE}")
e("  v_and_b32 v10, 15, v0"); e("  v_lshrrev_b32 v11, 1, v10"); e("  v_lshrrev_b32 v13, 4, v0"); e("  v_xor_b32 v11, v11, v13")
e("  v_lshlrev_b32 v11, 4, v11"); e("  v_lshl_add_u32 v10, v10, 7, v11")
e("  v_add_u32 v3, s40, v10"); e("  v_xor_b32 v10, 64, v10"); e("  v_add_u32 v4, s40, v10")
e("  v_lshlrev_b32 v5, 4, v0")
e("  v_mov_b32 v10, 1")
for i in range(144): e(f"  v_mov_b32 v{ACC+i}, 0")
K1 = -2*0.7978845608028654*1.4426950408889634
K3 = K1*0.044715
e(f"  s_mov_b32 s54, {f2u(K3)}"); e(f"  s_mov_b32 s55, {f2u(K3)}")
e(f"  v_mov_b32 v14, {f2u(K1)}"); e(f"  v_mov_b32 v15, {f2u(K1)}")
KS = [24, 25, 26, 27, 32, 33, 34, 35, 36, 37, 38, 39]
HV = [5, 9, 12, 13]
for k in range(12): e(f"  s_mov_b32 s{KS[k]}, {k*KST}")
e("  s_lshl_b32 s40, s21, 5"); e("  s_add_u32 s40, s40, s19"); e("  s_lshl_b32 s41, s18, 8"); e("  s_add_u32 s40, s40, s41")
for p in (3, 2, 1, 0):
    e(f"  s_add_u32 s41, s20, {p}"); e("  s_and_b32 s41, s41, 3"); e("  s_lshl_b32 s41, s41, 3"); e("  s_add_u32 s41, s41, s40")
    e("  s_lshl_b32 s41, s41, 10")
    e(f"  v_add_u32 v{HV[p]}, s41, v5")
e("  s_lshl_b32 s43, s2, 2"); e("  s_add_u32 s43, s43, s18"); e("  s_lshl_b32 s43, s43, 7"); e(f"  s_add_u32 s43, s43, {FH_OFF}")
e("  s_lshl_b32 s40, s18, 2")
e("  v_add_u32 v106, s40, v1")
e("  s_waitcnt lgkmcnt(0)")
srd(28, "s16", "s17", WS_USE)
e(f"  s_add_u32 s44, s16, {P_OFF}"); e("  s_addc_u32 s45, s17, 0"); e(f"  s_mov_b32 s46, {P_OFF}"); e("  s_mov_b32 s47, 0x00020000")
if OPT["warmf"]:
    e("  s_mov_b64 exec, 1")
    e("  buffer_store_dword v105, v105, s[28:31], s43 offen sc1")
    e("  s_mov_b64 exec, -1")

def acc1(t, mat, mh):
    if t == 8: return ACC + 8*16 + mh*8 + mat*4
    return ACC + ((t//2)*2 + mh)*16 + (t & 1)*8 + mat*4
def a1read(j, d):
    kk, r = j // 18, j % 18
    t, mat = r // 2, r % 2
    b = AB + 4*(j % NB) + 2*d
    return f"  ds_read_b64_tr_b16 v[{b}:{b+1}], v2 offset:{kk*WSLOT + mat*IMG + d*8*288 + t*32}"
def x1read(kk, mh):
    b = XB + 8*kk + 4*mh
    return f"  ds_read_b128 v[{b}:{b+3}], v{3+kk} offset:{mh*2048}"
stamp(1)
e("  s_barrier")
stamp(2)
if STAMP: e("  s_waitcnt lgkmcnt(0)")
e(x1read(0, 0)); e(x1read(0, 1))
for j in range(D):
    e(a1read(j, 0)); e(a1read(j, 1))
e("  s_mov_b32 s48, 9")
e("  s_mov_b32 s51, 0")
e("L_loop:")
e("  s_add_u32 s51, s51, 1"); e("  s_cmp_eq_u32 s51, 3")
e(f"  s_mov_b32 s52, {2*WSLOT}"); e(f"  s_cmov_b32 s52, {(-4*WSLOT) & 0xffffffff}")
e(f"  s_mov_b32 s53, {XSLOT}"); e(f"  s_cmov_b32 s53, {(-2*XSLOT) & 0xffffffff}")
e("  s_cselect_b32 s51, 0, s51")
q = [("x", 0), ("x", 0)] + [("a", j) for j in range(D) for _ in range(2)]
for j in range(36):
    kk, r = j // 18, j % 18
    t, mat = r // 2, r % 2
    if r == 18 - D:
        e("  s_barrier")
        if kk == 1:
            e("  v_add_u32 v2, s52, v2"); e("  v_add_u32 v3, s53, v3")
        e(x1read(1 - kk, 0)); e(x1read(1 - kk, 1)); q += [("x", kk+1)]*2
        if kk == 0: e("  v_add_u32 v4, s53, v4")
    need = [i for i, it in enumerate(q) if it == ("a", j) or it == ("x", kk)]
    if need:
        e(f"  s_waitcnt lgkmcnt({len(q)-1-max(need)})")
        q = q[max(need)+1:]
    b = AB + 4*(j % NB)
    for mh in range(2):
        a = acc1(t, mat, mh); xb = XB + 8*kk + 4*mh
        e(f"  {M16} v[{a}:{a+3}], v[{b}:{b+3}], v[{xb}:{xb+3}], v[{a}:{a+3}]")
        e(a1read((j + D) % 36, mh)); q.append(("a", j + D))
e("  s_sub_u32 s48, s48, 1"); e("  s_cmp_lg_u32 s48, 0"); e("  s_cbranch_scc1 L_loop")
stamp(3)
if OPT["ue"] < 0: lds_inc(1, O_G1, 10)
e("  ds_read_b32 v11, v1")

def blk(b): return [b, b+4, b+8]
BUF = {(0, 0): blk(OWN), (0, 1): blk(OWN+12), (0, 2): blk(OWN+24),
       (1, 0): blk(ACC), (2, 0): blk(ACC+12), (3, 0): blk(ACC+24),
       (1, 1): blk(ACC+36), (2, 1): blk(ACC+48), (3, 1): blk(ACC+60),
       (1, 2): blk(OWN), (2, 2): blk(OWN+12), (3, 2): blk(92)}
SH = {(0, 0): XB, (0, 1): XB+4, (1, 0): XB+8, (1, 1): XB+12}
vq = []
def gloads(p, g):
    return [f"  buffer_load_dwordx4 v[{r}:{r+3}], v{HV[p]}, s[28:31], s{KS[3*g+k]} offen sc1" for k, r in enumerate(BUF[(p, g)])]
def flag(stage):
    e(f"  v_add_u32 v104, {stage}, v11")
    e("  s_mov_b64 exec, 1")
    e("  buffer_store_dword v104, v105, s[28:31], s43 offen sc1")
    e("  s_mov_b64 exec, -1")
    vq.append("f")
def wait_stores(lbl):
    global vq
    assert all(isinstance(it, str) for it in vq)
    k = max(i for i, it in enumerate(vq) if it == lbl)
    e(f"  s_waitcnt vmcnt({len(vq)-1-k})")
    vq = vq[k+1:]
def gelu_unit(ab, dst, tmp):
    gs = [ab, ab+2, ab+8, ab+10]; us = [g + 4 for g in gs]
    for p in range(4): e(f"  v_pk_mul_f32 v[{tmp+2*p}:{tmp+2*p+1}], v[{gs[p]}:{gs[p]+1}], v[{gs[p]}:{gs[p]+1}]")
    for p in range(4): e(f"  v_pk_fma_f32 v[{tmp+2*p}:{tmp+2*p+1}], v[{tmp+2*p}:{tmp+2*p+1}], s[54:55], v[14:15]")
    for p in range(4): e(f"  v_pk_mul_f32 v[{tmp+2*p}:{tmp+2*p+1}], v[{tmp+2*p}:{tmp+2*p+1}], v[{gs[p]}:{gs[p]+1}]")
    for i in range(8): e(f"  v_exp_f32 v{tmp+i}, v{tmp+i}")
    for p in range(4): e(f"  v_pk_mul_f32 v[{gs[p]}:{gs[p]+1}], v[{gs[p]}:{gs[p]+1}], v[{us[p]}:{us[p]+1}]")
    for p in range(4): e(f"  v_pk_add_f32 v[{tmp+2*p}:{tmp+2*p+1}], v[{tmp+2*p}:{tmp+2*p+1}], 1.0 op_sel_hi:[1,0]")
    for i in range(8): e(f"  v_rcp_f32 v{tmp+i}, v{tmp+i}")
    e("  s_nop 0")
    for p in range(4): e(f"  v_pk_mul_f32 v[{gs[p]}:{gs[p]+1}], v[{gs[p]}:{gs[p]+1}], v[{tmp+2*p}:{tmp+2*p+1}]")
    for p in range(4): e(f"  v_cvt_pk_bf16_f32 v{dst+p}, v{gs[p]}, v{gs[p]+1}")
e("  s_waitcnt lgkmcnt(0)")
for u in range(9):
    g, k = u // 3, u % 3
    B = BUF[(0, g)]
    if u == OPT["ea"]: e(f"  ds_read_b32 v2, v106 offset:{O_SIG}")
    gelu_unit(ACC + 16*u, B[k], XB + 8*(u & 1))
    e(f"  buffer_store_dwordx4 v[{B[k]}:{B[k]+3}], v5, s[28:31], s{KS[u]} offen sc1"); vq.append(f"st{g}")
    if u == OPT["ue"]: lds_inc(1, O_G1, 10)
    if u == OPT["f1"] - 1: lds_inc(1, 12, 10)
    if u == OPT["f1"]:
        wait_stores("st0"); flag(1); stamp(4)
    if u == OPT["ea"]:
        e("  s_waitcnt lgkmcnt(0)")
        e("  v_readfirstlane_b32 s42, v2")
        e("  s_cmp_ge_u32 s42, 1")
        e("  s_cbranch_scc0 L_noearly")
        for p in range(1, 4):
            for x in gloads(p, 0): e(x)
        e("L_noearly:")
    if u == 8 and OPT["xstop"]:
        e("  s_waitcnt vmcnt(0)"); stamp(5); e("  s_branch L_fin")
stamp(5)
def hreg(ei, mh):
    p, i = ORDER[ei]
    if p == "S": return SH[(i, mh)]
    f = 2*i + mh
    return BUF[(p, f // 3)][f % 3]
def groups_needed(ei):
    p, i = ORDER[ei]
    if p == 0: return []
    if p == "S": return [(pp, 2) for pp in (2*i, 2*i+1) if pp]
    return sorted(set((p, (2*i+mh)//3) for mh in range(2)))
checked = set(); issued = set()
def piece_move(p):
    B = BUF[(p, 2)]
    for mh in range(2):
        for h in range(2): e(f"  v_mov_b32 v{SH[(p//2, mh)] + 2*(p & 1) + h}, v{B[2] + 2*mh + h}")
def gcheck(p, g):
    global vq
    assert (p, g) in issued, (p, g)
    idx = [i for i, it in enumerate(vq) if it == (p, g)]
    if idx:
        younger = [it for it in vq[max(idx)+1:] if not isinstance(it, str)]
        e(f"  s_waitcnt vmcnt({len(younger)})")
        vq = younger
    if g == 2:
        piece_move(p); e("  s_nop 1")
    checked.add((p, g))
piece_move(0)
TM = OPT["tm"]
seq = [(ei, t) for ei in range(TM) for t in range(9)] + [(ei, t) for tg in range(3) for ei in range(TM, 18) for t in range(3*tg, 3*tg+3)]
def first_use(ei): return min(n for n, (a_, _) in enumerate(seq) if a_ == ei)
def a2read(n, d):
    ei, t = seq[n]
    img = ei if ei < 17 else 0
    b = AB + 4*(n % NB) + 2*d
    return f"  ds_read_b64_tr_b16 v[{b}:{b+1}], v{6 + img//6} offset:{(img % 6)*IMG + d*16*288 + t*32}"
slow = []
checks = {}
def add_check(n, vaddr, off, val, post=None):
    assert n not in checks
    checks[n] = (vaddr, off, val, post)
LA, LB, LC = OPT["la"], OPT["lb"], OPT["lc"]
assert LC >= 28
add_check(first_use(4) - D, 1, O_M + 4, 3)
add_check(first_use(8) - D, 1, O_M + 8, 3)
add_check(first_use(12) - D, 1, O_M + 12, 3)
add_check(first_use(16) - D, 1, O_M + 16, 3)
add_check(LA, 106, O_SIG, 1, lambda: stamp(7))
add_check(LB, 106, O_SIG, 2)
add_check(LC, 106, O_SIG, 3)
chk_reg = {n: 2 + (i % 3) for i, n in enumerate(sorted(checks))}
events = {LA: (1, 0), LA+1: (2, 0), LA+2: (3, 0), LB: (1, 1), LB+2: (2, 1), LB+4: (3, 1), LC: (1, 2), LC+2: (2, 2), LC+4: (3, 2)}
if OPT["ea"] >= 0:
    for k_ in (LA, LA+1, LA+2): del events[k_]
lds_spin(1, O_M, 3, 2)
stamp(6)
if STAMP: e("  s_waitcnt lgkmcnt(0)")
q = []
for n in range(D):
    e(a2read(n, 0)); e(a2read(n, 1)); q += [n, n]
N = len(seq); PRE = 4
assert min(checks) >= PRE
pend_epi = []
for n in range(N):
    ei, t = seq[n]
    if n == OPT["f2"]:
        wait_stores("st1"); flag(2)
    if n == OPT["f3"]:
        e("  s_waitcnt vmcnt(0)"); vq = []; flag(3)
    if n == 9:
        lds_inc(1, O_CONS, 10); q.append("c")
    if n + PRE in checks:
        va, off, val, post = checks[n + PRE]
        e(f"  ds_read_b32 v{chk_reg[n+PRE]}, v{va} offset:{off}"); q.append(("chk", n + PRE))
    if n in checks:
        va, off, val, post = checks[n]
        need = [i for i, it in enumerate(q) if it == ("chk", n)]
        if need:
            e(f"  s_waitcnt lgkmcnt({len(q)-1-max(need)})")
            q = q[max(need)+1:]
        ls, lb = lab("slow"), lab("back")
        if n == LA and OPT["ea"] >= 0:
            e("  s_cmp_ge_u32 s42, 1")
            e("  s_cbranch_scc1 L_skipA")
        e(f"  v_readfirstlane_b32 s60, v{chk_reg[n]}")
        e(f"  s_cmp_ge_u32 s60, {val}")
        e(f"  s_cbranch_scc0 {ls}")
        e(f"{lb}:")
        slow.append((ls, lb, va, off, val, chk_reg[n]))
        if n == LA and OPT["ea"] >= 0:
            for p in range(1, 4):
                for x in gloads(p, 0): e(x); vq.append((p, 0))
                issued.add((p, 0))
            e("L_skipA:")
        if post: post()
    for pg in groups_needed(ei):
        if pg not in checked:
            gcheck(*pg)
            if pg == (1, 0): stamp(8)
            if pg == (1, 2): stamp(9)
    if n in events:
        for x in gloads(*events[n]): e(x); vq.append(events[n])
        issued.add(events[n])
    need = [i for i, it in enumerate(q) if it == n]
    if need:
        e(f"  s_waitcnt lgkmcnt({len(q)-1-max(need)})")
        q = q[max(need)+1:]
    b = AB + 4*(n % NB)
    for mh in range(2):
        a = ACC2 + t*8 + mh*4; hb = hreg(ei, mh)
        c = "0" if ei == 0 else f"v[{a}:{a+3}]"
        e(f"  {M16} v[{a}:{a+3}], v[{b}:{b+3}], v[{hb}:{hb+3}], {c}")
        if n + D < N:
            e(a2read(n + D, mh)); q.append(n + D)
    if ei == 17 and t % 3 == 2: pend_epi.append((n + 3, t // 3))
    while pend_epi and (pend_epi[0][0] <= n or n == N - 1):
        _, tg = pend_epi.pop(0)
        if n == N - 1 and tg == 2:
            stamp(10)
            e("  s_nop 7")
        PG = [BUF[(1, 0)][0], BUF[(1, 0)][1], BUF[(2, 0)][0], BUF[(2, 0)][1]]
        for mh in range(2):
            g0, g1 = PG[2*mh], PG[2*mh+1]
            src = [ACC2 + (3*tg + k)*8 + mh*4 + 2*h for k in range(3) for h in range(2)]
            dst = [g0, g0+1, g0+2, g1, g1+1, g1+2]
            for s_, d_ in zip(src, dst): e(f"  v_cvt_pk_bf16_f32 v{d_}, v{s_}, v{s_+1}")
            if tg == 0:
                e(f"  v_mov_b32 v{g0+3}, v11"); e(f"  v_mov_b32 v{g1+3}, v11")
            e(f"  buffer_store_dwordx4 v[{g0}:{g0+3}], v5, s[44:47], s{KS[tg*4+mh*2]} offen sc1")
            e(f"  buffer_store_dwordx4 v[{g1}:{g1+3}], v5, s[44:47], s{KS[tg*4+mh*2+1]} offen sc1")
            vq += ["p", "p"]
        flag(4 + tg)
        lds_inc(1, O_TG + 4*tg, 10); q.append("c")
stamp(11)
if STAMP:
    e("  s_waitcnt vmcnt(0)")
    stamp(12)
e("L_fin:")
stamp_flush()
e("L_end:")
e("  s_endpgm")
for ls, lb, va, off, val, vt in slow:
    e(f"{ls}:")
    lds_spin(va, off, val, vt)
    e(f"  s_branch {lb}")
e("L_codeend:")
e('.section .rodata,"a"\n.p2align 6')
e(f".amdhsa_kernel {NAME}")
e("  .amdhsa_next_free_vgpr 256\n  .amdhsa_next_free_sgpr 102\n  .amdhsa_accum_offset 256")
e("  .amdhsa_group_segment_fixed_size 0\n  .amdhsa_kernarg_size 56\n  .amdhsa_user_sgpr_count 2\n  .amdhsa_user_sgpr_kernarg_segment_ptr 1\n  .amdhsa_system_sgpr_workgroup_id_x 1\n.end_amdhsa_kernel")
print("\n".join(out))
```

```python
import sys, struct
OPT = dict(stamp=0, rot=0, grp=3, nt=9, prio=0, spin=400000, slp=1, cpf=1, spf=0, tm=10,
           f1=6, f2=0, f3=14, la=14, lb=40, lc=70, warmf=1, kst=0x100000, xstop=0, spoll=1, vpf=8, wdw=6, wdpre=4, ue=8, wsl=0, ea=8, repc=-1, repl=0, badx=0)
for a in sys.argv[1:]:
    k, v = a.split("="); assert k in OPT, k; OPT[k] = int(v, 0)
STAMP = OPT["stamp"]
out = []
def e(s=""): out.append(s)
def f2u(x): return "0x%08x" % struct.unpack("<I", struct.pack("<f", x))[0]

X_BYTES = 1024*576*2
W_BYTES = 576*4608*2
P_OFF = 0x1000000
FH_OFF = 0x2000000
WS_USE = 0x2040000
ST_OFF = 0x4000000
IMG = 9216
WSLOT = 2*IMG
XBASE = 6*WSLOT
XSLOT = 16384
SY = XBASE + 3*XSLOT
O_G1, O_CONS, O_TG, O_SIG, O_M = 4, 8, 16, 32, 64
LDS_TOTAL = SY + 128
NTS = " nt" if OPT["nt"] & 1 else ""
NTX = " nt" if OPT["nt"] & 2 else ""
NTD = " nt" if OPT["nt"] & 4 else ""
NTP = " nt" if OPT["nt"] & 8 else ""
M16 = "v_mfma_f32_16x16x32_bf16"
NAME = "standalone__geglu_ffn__sampling_kernel"
KST = OPT["kst"]
ORDER = [(0, 0), (0, 1), (0, 2), (0, 3), (1, 0), (2, 0), (3, 0), (1, 1), (1, 2), (2, 1), (2, 2), (3, 1), (3, 2),
         (1, 3), (2, 3), (3, 3), ("S", 0), ("S", 1)]
uid = [0]
def lab(p):
    uid[0] += 1
    return f"L_{p}{uid[0]}"
def srd(d, lo, hi, nbytes):
    e(f"  s_mov_b32 s{d}, {lo}"); e(f"  s_mov_b32 s{d+1}, {hi}")
    e(f"  s_mov_b32 s{d+2}, {nbytes}"); e(f"  s_mov_b32 s{d+3}, 0x00020000")
NST, SB = 14, 64
LMODE = [False]
def stamp(i, force=False):
    if STAMP == 3 and LMODE[0] and not force: return
    if STAMP: e(f"  s_memrealtime s[{SB+2*i}:{SB+1+2*i}]")
def stamp_init():
    if STAMP:
        for i in range(1, NST): e(f"  s_mov_b64 s[{SB+2*i}:{SB+1+2*i}], 0")
def stamp_flush():
    if not STAMP: return
    if OPT["repc"] >= 0:
        e("  s_waitcnt lgkmcnt(0)")
        e("  s_cmp_lt_u32 s18, 4")
        e(f"  s_cselect_b32 s92, s{SB+2*OPT['repc']}, s{SB+2*OPT['repl']}")
        e("  s_cmp_eq_u32 s92, 0")
        e(f"  s_cselect_b32 s92, s{SB}, s92")
        e("L_rep:")
        e("  s_memrealtime s[94:95]")
        e("  s_waitcnt lgkmcnt(0)")
        e("  s_sub_u32 s94, s94, s92")
        e("  s_cmp_lt_u32 s94, 4000")
        e("  s_cbranch_scc1 L_rep")
        return
    e("  s_waitcnt lgkmcnt(0)")
    e(f"  s_add_u32 s92, s16, {ST_OFF}"); e("  s_addc_u32 s93, s17, 0")
    e("  s_mov_b32 s94, 0x100000"); e("  s_mov_b32 s95, 0x00020000")
    e("  s_lshl_b32 s96, s2, 3"); e("  s_add_u32 s96, s96, s18"); e("  s_lshl_b32 s96, s96, 7")
    e("  v_mov_b32 v250, 0")
    for i in range(NST):
        e(f"  v_mov_b32 v252, s{SB+2*i}"); e(f"  v_mov_b32 v253, s{SB+1+2*i}")
        e(f"  buffer_store_dwordx2 v[252:253], v250, s[92:95], s96 offen offset:{i*8}")
        e("  s_nop 1")
def lds_spin(vaddr, off, val, vt):
    l = lab("sp"); d = lab("spd")
    e(f"  s_mov_b32 s61, {OPT['spin']*8}")
    e(f"{l}:")
    e(f"  ds_read_b32 v{vt}, v{vaddr} offset:{off}")
    e("  s_sub_u32 s61, s61, 1")
    e("  s_waitcnt lgkmcnt(0)")
    e(f"  v_readfirstlane_b32 s60, v{vt}")
    e("  s_cmp_eq_u32 s61, 0")
    e(f"  s_cbranch_scc1 {d}")
    e(f"  s_cmp_ge_u32 s60, {val}")
    e(f"  s_cbranch_scc0 {l}")
    e(f"{d}:")
def lds_inc(vaddr, off, vone):
    e("  s_mov_b64 exec, 1")
    e(f"  ds_add_u32 v{vaddr}, v{vone} offset:{off}")
    e("  s_mov_b64 exec, -1")

e(f"; @launch grid=(256,1,1) block=(512,1,1) lds={LDS_TOTAL}")
e('.amdgcn_target "amdgcn-amd-amdhsa--gfx950"')
e(".text")
e(f".globl {NAME}\n.p2align 8\n.type {NAME},@function\n{NAME}:")
e("  s_cmp_ge_u32 s2, 256")
e("  s_cbranch_scc1 L_end")
if OPT["badx"]:
    e("  s_lshr_b32 s3, s2, 5"); e("  s_lshl_b32 s2, s2, 3"); e("  s_and_b32 s2, s2, 255"); e("  s_or_b32 s2, s2, s3")
e("  s_load_dwordx8 s[4:11], s[0:1], 0")
e("  s_load_dwordx4 s[12:15], s[0:1], 32")
e("  s_load_dwordx2 s[16:17], s[0:1], 48")
stamp(0)
e("  v_lshrrev_b32 v1, 6, v0")
e("  v_and_b32 v0, 63, v0")
e("  v_readfirstlane_b32 s18, v1")
stamp_init()
e("  s_and_b32 s19, s2, 7")
e("  s_lshr_b32 s20, s2, 3")
e("  s_lshr_b32 s21, s20, 2")
e("  s_and_b32 s20, s20, 3")
e("  s_add_u32 s23, s20, s21")
e("  s_and_b32 s22, s23, 3")
e("  s_cmp_lt_u32 s18, 4")
e("  s_cbranch_scc1 L_compute")

LMODE[0] = True
if OPT["grp"]:
    G = OPT["grp"]
    tab = 0
    for v in range(11): tab |= ((v % G)*9//G) << (4*v)
    e(f"  s_mov_b32 s24, {tab & 0xffffffff}"); e(f"  s_mov_b32 s25, {tab >> 32}")
    e("  s_lshl_b32 s23, s23, 2")
    e("  s_lshr_b64 s[24:25], s[24:25], s23")
    e("  s_and_b32 s23, s24, 15")
elif OPT["rot"]:
    e("  s_add_u32 s23, s23, s20"); e("  s_add_u32 s23, s23, s19")
    for _ in range(2):
        e("  s_cmp_ge_u32 s23, 9"); e("  s_cselect_b32 s24, 9, 0"); e("  s_sub_u32 s23, s23, s24")
else:
    e("  s_mov_b32 s23, 0")
e("  s_sub_u32 s34, s18, 4")
e("  s_lshl_b32 s38, s21, 7"); e("  s_lshl_b32 s39, s34, 5"); e("  s_add_u32 s38, s38, s39")
e("  v_lshrrev_b32 v30, 3, v0")
e("  v_add_u32 v30, s38, v30")
e("  v_mul_u32_u24 v30, 1152, v30")
e("  v_lshrrev_b32 v31, 4, v0")
e("  v_xor_b32 v31, v31, v0")
e("  v_and_b32 v31, 7, v31")
e("  v_lshl_add_u32 v5, v31, 4, v30")
e("  v_xor_b32 v31, 4, v31")
e("  v_lshl_add_u32 v6, v31, 4, v30")
e(f"  v_add_u32 v6, {8*1152-1024}, v6")
e(f"  v_add_u32 v7, {16*1152-2048}, v5")
e(f"  v_add_u32 v8, {16*1152-2048}, v6")
e("  s_mul_i32 s35, s19, 1152")
e("  s_mul_i32 s38, s20, 288")
e("  s_add_u32 s38, s38, s35")
e("  s_and_b32 s39, s20, 1")
e("  s_lshl_b32 s33, s39, 8")
e("  s_lshl_b32 s32, s39, 5")
e("  s_sub_u32 s39, s38, s33")
e("  s_add_u32 s38, s38, s32")
e("  v_mov_b32 v34, s38"); e("  v_mov_b32 v35, s39")
e("  s_lshl_b32 s36, s34, 6")
for n in range(3):
    r, c = 12 + 2*n, 13 + 2*n
    e(["  v_add_u32 v30, s36, v0", "  v_add_u32 v30, 256, v30", "  v_add_u32 v30, 512, v0"][n])
    e("  v_mul_u32_u24 v31, 3641, v30")
    e(f"  v_lshrrev_b32 v{r}, 16, v31")
    e(f"  v_mul_u32_u24 v31, 18, v{r}")
    e(f"  v_sub_u32 v{c}, v30, v31")
    e(f"  v_and_b32 v33, 0x13, v{r}")
    e(f"  v_bfe_u32 v36, v{r}, 2, 1")
    e("  v_lshl_or_b32 v33, v36, 3, v33")
    e(f"  v_bfe_u32 v36, v{r}, 3, 1")
    e(f"  v_cmp_lt_u32 vcc, 15, v{c}")
    e("  v_lshl_or_b32 v33, v36, 2, v33")
    e("  v_mul_u32_u24 v33, 9216, v33")
    e("  v_cndmask_b32 v36, v34, v35, vcc")
    e(f"  v_lshl_add_u32 v33, v{c}, 4, v33")
    e(f"  v_add_u32 v{2+n}, v36, v33")
e(f"  s_mul_i32 s48, s23, {64*9216}")
e("  s_lshl_b32 s49, s23, 7")
e("  s_lshl_b32 s32, s34, 10")
e("  s_and_b32 s33, s34, 1")
e(f"  s_mul_i32 s33, s33, {IMG}")
e("  s_add_u32 s33, s33, 8192")
e("  s_lshr_b32 s35, s34, 1")
e("  s_lshl_b32 s36, s34, 12")
e(f"  s_add_u32 s36, s36, {XBASE}")
e("  s_mov_b32 s50, 0")
e("  s_mov_b32 s51, s36")
e(f"  s_add_u32 s37, s36, {3*XSLOT}")
e("  s_bitcmp1_b32 s34, 0")
e("  s_waitcnt lgkmcnt(0)")
e("  s_cselect_b32 s56, s8, s6"); e("  s_cselect_b32 s57, s9, s7")
e(f"  s_mov_b32 s58, {W_BYTES}"); e("  s_mov_b32 s59, 0x00020000")
srd(24, "s4", "s5", X_BYTES)
srd(40, "s6", "s7", W_BYTES)
srd(44, "s8", "s9", W_BYTES)
def g_issue(par):
    if par == 0:
        e("  s_mov_b32 m0, s51")
        e(f"  s_add_u32 s51, s51, {XSLOT}")
        for q in range(4): e(f"  buffer_load_dwordx4 v{5+q}, s[24:27], s49 offen offset:{q*1024}{NTX} lds")
        e("  s_cmp_eq_u32 s51, s37"); e("  s_cselect_b32 s51, s36, s51")
        e("  s_add_u32 s49, s49, 128"); e("  s_cmp_eq_u32 s49, 1152"); e("  s_cselect_b32 s49, 0, s49")
    e("  s_add_u32 s52, s50, s32")
    for mat in range(2):
        for n in range(2):
            e(f"  s_add_u32 m0, s52, {mat*IMG + n*4096}")
            e("  s_nop 0")
            e(f"  buffer_load_dwordx4 v{2+n}, s[{40+4*mat}:{43+4*mat}], s48 offen{NTS} lds")
    l = lab("p8")
    e(f"  s_cmp_eq_u32 s35, {par}")
    e(f"  s_cbranch_scc0 {l}")
    e("  s_add_u32 m0, s50, s33")
    e("  s_nop 0")
    e(f"  buffer_load_dwordx4 v4, s[56:59], s48 offen{NTS} lds")
    e(f"{l}:")
    e(f"  s_add_u32 s48, s48, {32*9216}"); e(f"  s_cmp_eq_u32 s48, {576*9216}"); e("  s_cselect_b32 s48, 0, s48")
    e(f"  s_add_u32 s50, s50, {WSLOT}"); e(f"  s_cmp_eq_u32 s50, {6*WSLOT}"); e("  s_cselect_b32 s50, 0, s50")
stamp(1)
g_issue(0); g_issue(1)
e("  s_mul_i32 s53, s22, 288")
e("  s_lshl_b32 s62, s34, 6")
for n in range(3):
    r = 12 + 2*n
    e("  v_add_u32 v30, s62, v0" if n == 0 else "  v_add_u32 v30, 192, v30")
    e("  v_mul_u32_u24 v31, 3641, v30")
    e(f"  v_lshrrev_b32 v{r}, 16, v31")
    e(f"  v_mul_u32_u24 v31, 18, v{r}")
    e("  v_sub_u32 v32, v30, v31")
    e(f"  v_mul_u32_u24 v31, 1152, v{r}")
    e("  v_lshl_add_u32 v31, v32, 4, v31")
    e(f"  v_add_u32 v{9+n}, s53, v31")
e(f"  v_mov_b32 v20, {SY}"); e("  v_mov_b32 v21, 1"); e("  v_mov_b32 v22, 0")
e("  s_lshl_b32 s53, s34, 2")
e("  v_add_u32 v26, s53, v20")
srd(28, "s14", "s15", 256)
e("  s_or_b32 s53, s2, s34")
e("  s_cmp_eq_u32 s53, 0")
e("  s_cbranch_scc0 L_nononce")
e("  s_memrealtime s[60:61]")
e("  s_waitcnt lgkmcnt(0)")
e("  s_lshl_b32 s60, s60, 3")
e("  s_max_u32 s60, s60, 8")
e("  v_mov_b32 v23, s60")
e("  s_waitcnt vmcnt(0)")
e("  buffer_store_dword v23, v22, s[28:31], 0 offen sc1")
e("L_nononce:")
e("  s_lshr_b32 s62, s2, 3"); e("  s_lshl_b32 s62, s62, 2"); e("  s_add_u32 s62, s62, s34")
if OPT["cpf"]:
    e("  s_getpc_b64 s[60:61]")
    e("L_pc:")
    e(f"  s_sub_u32 s60, s60, L_pc-{NAME}")
    e("  s_subb_u32 s61, s61, 0")
    e("  s_lshl_b32 s53, s62, 6")
    e("  s_load_dword s63, s[60:61], s53")
    e("  s_load_dword s63, s[60:61], s53 offset:8192")
    e("  s_add_u32 s53, s53, 16384")
    e(f"  s_min_u32 s53, s53, L_codeend-{NAME}-4")
    e("  s_load_dword s63, s[60:61], s53")
if OPT["spf"]:
    e("  s_mul_i32 s62, s62, 5184")
    e(f"  s_mul_i32 s53, s19, {576*1152}")
    e("  s_add_u32 s62, s62, s53")
if OPT["vpf"] >= 0:
    e("  s_mul_i32 s55, s62, 5184")
    e(f"  s_mul_i32 s53, s19, {576*1152}")
    e("  s_add_u32 s55, s55, s53")
    e("  v_min_u32 v18, 41, v0")
    e("  v_lshlrev_b32 v18, 7, v18")
    e("  v_add_u32 v18, s55, v18")
    srd(96, "s10", "s11", W_BYTES)
def spf():
    if OPT["spf"]:
        for k in range(5): e(f"  s_load_dword s63, s[10:11], s62 offset:{k*64}")
        e("  s_add_u32 s62, s62, 320")
def lbody(it):
    e("  s_waitcnt vmcnt(4)")
    e("  s_barrier")
    if STAMP == 3: stamp(1 + it, True)
    if 0 <= OPT["vpf"] < 8:
        if STAMP == 3:
            if it == OPT["vpf"]: e(f"  buffer_load_dword v17, v18, s[96:99], 0 offen{NTP}")
        else:
            e(f"  s_cmp_eq_u32 s53, {8 - OPT['vpf']}")
            e("  s_cbranch_scc0 L_novpf")
            e(f"  buffer_load_dword v17, v18, s[96:99], 0 offen{NTP}")
            e("L_novpf:")
    g_issue(0); spf()
    e("  s_waitcnt vmcnt(8)")
    e("  s_barrier")
    g_issue(1); spf()
if STAMP == 3:
    for it in range(8): lbody(it)
else:
    e("  s_mov_b32 s53, 8")
    e("L_lloop:")
    lbody(0)
    e("  s_sub_u32 s53, s53, 1"); e("  s_cmp_lg_u32 s53, 0"); e("  s_cbranch_scc1 L_lloop")
if OPT["spf"]: e("  s_load_dword s63, s[10:11], s62")
srd(40, "s10", "s11", W_BYTES)
e(f"  s_mul_i32 s49, s19, {576*1152}")
def piece_row(dst, p):
    e(f"  s_add_u32 s52, s20, {p}"); e("  s_and_b32 s52, s52, 3")
    e(f"  s_lshr_b32 {dst}, s52, 1"); e(f"  s_mul_i32 {dst}, {dst}, 288")
    e("  s_and_b32 s52, s52, 1"); e("  s_lshl_b32 s52, s52, 4")
    e(f"  s_add_u32 {dst}, {dst}, s52"); e(f"  s_add_u32 {dst}, {dst}, 128")
def d_issue(sig):
    so = ["s48", "s54"]; vb = [9, 9]
    if sig < 8:
        for im in range(2):
            p, i = ORDER[2*sig + im]
            e(f"  s_add_u32 s52, s20, {p}"); e("  s_and_b32 s52, s52, 3"); e("  s_mul_i32 s52, s52, 9")
            e(f"  s_add_u32 s52, s52, {1 + 2*i}"); e("  s_lshr_b32 s52, s52, 1")
            e(f"  s_mul_i32 {so[im]}, s52, {32*1152}"); e(f"  s_add_u32 {so[im]}, {so[im]}, s49")
        la = [2*sig*IMG, (2*sig+1)*IMG]
    else:
        for im in range(2):
            piece_row("s50", 2*im); piece_row("s51", 2*im+1)
            e("  s_sub_u32 s51, s51, 16")
            e("  s_mul_i32 s50, s50, 1152"); e("  s_mul_i32 s51, s51, 1152")
            e("  v_mov_b32 v33, s50"); e("  v_mov_b32 v34, s51")
            for n in range(3):
                e(f"  v_cmp_lt_u32 vcc, 15, v{12+2*n}")
                e("  s_nop 1")
                e("  v_cndmask_b32 v35, v33, v34, vcc")
                e(f"  v_add_u32 v{27+3*im+n}, v35, v{9+n}")
            e(f"  s_mov_b32 {so[im]}, s49")
        vb = [27, 30]
        la = [16*IMG, 0]
    for im in range(2):
        for n in range(3):
            e(f"  s_add_u32 m0, s32, {la[im] + n*3072}")
            e("  s_nop 0")
            e(f"  buffer_load_dwordx4 v{vb[im]+n}, s[40:43], {so[im]} offen{NTD} lds")
VP = 1 if OPT["vpf"] == 8 else 0
if VP: e(f"  buffer_load_dword v17, v18, s[96:99], 0 offen{NTP}")
e(f"  s_waitcnt vmcnt({4+VP})")
e("  s_barrier")
stamp(2)
if STAMP == 3: stamp(9, True)
e("  s_cmp_eq_u32 s34, 3")
e("  s_cbranch_scc1 L_poller")
d_issue(0)
e(f"  s_waitcnt vmcnt({6+VP})")
e("  s_barrier")
d_issue(1)
e("  s_barrier")
e("  ds_read_b32 v23, v20")
srd(28, "s16", "s17", WS_USE)
WP = OPT["wdpre"]; LAG = OPT["wdw"] // 6
assert 2 <= WP <= 5
MS = {1: O_M, 3: O_M + 4, 5: O_M + 8, 7: O_M + 12}
done = set()
def landed(k):
    for m in sorted(MS):
        if m <= k and m not in done:
            lds_inc(20, MS[m], 21); done.add(m)
            if m == 1: stamp(3)
for sg in range(2, 8):
    if sg == WP:
        e("  s_waitcnt vmcnt(0)"); landed(sg - 1)
        lds_spin(20, O_G1, 4, 24)
    d_issue(sg)
    e(f"  s_waitcnt vmcnt({6*LAG})")
    landed(sg - LAG)
    if OPT["wsl"]: e(f"  s_sleep {OPT['wsl']}")
e("  s_waitcnt vmcnt(0)")
landed(7)
stamp(4)
if OPT["xstop"]: e("  s_branch L_fin")
lds_spin(20, O_CONS, 4, 24)
d_issue(8)
e("  s_waitcnt vmcnt(0)")
lds_inc(20, O_M + 16, 21)
stamp(6)
srd(24, "s12", "s13", X_BYTES)
e("  s_lshl_b32 s44, s34, 2"); e("  s_and_b32 s45, s19, 1"); e("  s_lshl_b32 s45, s45, 1"); e("  s_add_u32 s44, s44, s45")
e(f"  s_mul_i32 s44, s44, {KST}")
e("  s_lshr_b32 s45, s19, 1"); e("  s_lshl_b32 s45, s45, 8"); e("  s_andn2_b32 s46, s2, 7"); e("  s_add_u32 s45, s45, s46")
e("  s_lshl_b32 s45, s45, 10"); e("  s_add_u32 s44, s44, s45")
e(f"  s_add_u32 s44, s44, {P_OFF}")
e("  s_add_u32 s45, s44, 4096")
e(f"  s_add_u32 s46, s44, {KST}")
e("  s_add_u32 s47, s46, 4096")
e("  s_lshl_b32 s48, s21, 7"); e("  s_lshl_b32 s49, s19, 4"); e("  s_add_u32 s48, s48, s49"); e("  s_mul_i32 s48, s48, 1152")
e("  s_mul_i32 s49, s22, 288"); e("  s_add_u32 s48, s48, s49"); e("  s_mul_i32 s49, s34, 96"); e("  s_add_u32 s48, s48, s49")
e("  v_and_b32 v1, 15, v0"); e("  v_mul_u32_u24 v1, 1152, v1"); e("  v_lshrrev_b32 v2, 4, v0"); e("  v_lshl_add_u32 v1, v2, 3, v1")
e("  v_lshlrev_b32 v5, 4, v0")
e("  s_mov_b32 s50, 0xffff0000")
e("  v_readfirstlane_b32 s3, v23")
e("  s_andn2_b32 s53, s2, 7"); e("  s_lshl_b32 s53, s53, 2"); e("  s_lshr_b32 s62, s19, 1"); e("  s_add_u32 s53, s53, s62")
e("  s_lshl_b32 s53, s53, 7"); e(f"  s_add_u32 s53, s53, {FH_OFF}")
e("  s_add_u32 s3, s3, s34"); e("  s_add_u32 s3, s3, 4")
e("  s_sub_u32 s62, 3, s34")
lds_spin(26, O_TG, 4, 24)
stamp(7)
e(f"  s_mov_b32 s60, {OPT['spin']}")
e("L_rprobe:")
e("  s_sub_u32 s60, s60, 1"); e("  s_cmp_eq_u32 s60, 0"); e("  s_cbranch_scc1 L_rdone")
PR = [32, 33, 35, 36, 37, 38, 39, 51]
for k in range(8): e(f"  s_load_dword s{PR[k]}, s[16:17], s53 offset:{k*512} glc")
e("  s_waitcnt lgkmcnt(0)")
for k in range(8):
    e(f"  s_sub_u32 s{PR[k]}, s{PR[k]}, s3")
    if k: e(f"  s_max_u32 s32, s32, s{PR[k]}")
e("  s_cmp_gt_u32 s32, s62")
e("  s_cbranch_scc1 L_rprobe")
e("L_rpoll:")
stamp(10)
if STAMP: e(f"  s_add_u32 s{SB+2*13}, s{SB+2*13}, 1")
for k in range(16):
    e(f"  buffer_load_dwordx4 v[{32+4*k}:{35+4*k}], v5, s[28:31], s{44 + 2*(k & 1) + (k//8)} offen offset:{((k//2)%4)*1024} sc1")
for k in range(8):
    e(f"  s_waitcnt vmcnt({14-2*k})")
    a, b = 32 + 8*k, 36 + 8*k
    e(f"  v_xor_b32 v{a+3}, v23, v{a+3}"); e(f"  v_xor_b32 v{b+3}, v23, v{b+3}")
    e(f"  v_or_b32 v24, v{a+3}, v{b+3}" if k == 0 else f"  v_or3_b32 v24, v{a+3}, v{b+3}, v24")
    srcs = [a, a+1, a+2, b, b+1, b+2]
    base = 100 if k == 0 else 112
    for p in range(6):
        e(f"  v_lshlrev_b32 v{base+2*p}, 16, v{srcs[p]}"); e(f"  v_and_b32 v{base+1+2*p}, s50, v{srcs[p]}")
    if k:
        for p in range(6): e(f"  v_pk_add_f32 v[{100+2*p}:{101+2*p}], v[{100+2*p}:{101+2*p}], v[{112+2*p}:{113+2*p}]")
e("  v_cmp_ne_u32 vcc, 0, v24")
for p in range(6): e(f"  v_cvt_pk_bf16_f32 v{32+p}, v{100+2*p}, v{101+2*p}")
e("  s_cbranch_vccnz L_rprobe")
e("L_rdone:")
stamp(8)
for k in range(3): e(f"  buffer_store_dwordx2 v[{32+2*k}:{33+2*k}], v1, s[24:27], s48 offen offset:{k*32}")
if STAMP:
    e("  s_waitcnt vmcnt(0)")
    e(f"  s_sub_u32 s{SB+2*12}, {OPT['spin']}, s60")
stamp(9)
e("  s_branch L_fin")

e("L_poller:")
e("  buffer_load_dword v23, v22, s[28:31], 0 offen sc1")
e(f"  s_mov_b32 s60, {OPT['spin']}")
e(f"  s_waitcnt vmcnt({1+VP})")
e("  s_barrier")
e("L_npoll:")
e("  s_waitcnt vmcnt(0)")
e("  v_readfirstlane_b32 s3, v23")
e("  s_cmp_lg_u32 s3, 0")
e("  s_cbranch_scc1 L_nok")
e("  s_sub_u32 s60, s60, 1")
e("  s_cmp_eq_u32 s60, 0")
e("  s_cbranch_scc1 L_nok")
e("  buffer_load_dword v23, v22, s[28:31], 0 offen sc1")
e("  s_branch L_npoll")
e("L_nok:")
e("  ds_write_b32 v20, v23")
e("  s_waitcnt lgkmcnt(0)")
e("  s_barrier")
for p in range(1, 4):
    e(f"  s_add_u32 s52, s20, {p}"); e("  s_and_b32 s52, s52, 3"); e("  s_lshl_b32 s52, s52, 3")
    e("  s_lshl_b32 s53, s21, 5"); e("  s_add_u32 s53, s53, s19"); e("  s_add_u32 s53, s53, s52")
    e("  s_lshl_b32 s53, s53, 9"); e(f"  s_add_u32 s{24+p}, s53, {FH_OFF}")
if OPT["xstop"]: e("  s_branch L_fin")
lds_spin(20, 12, 1, 24)
e(f"  s_mov_b32 s60, {OPT['spin']}")
e("L_hpoll:")
for mt in range(4):
    for p in range(3): e(f"  s_load_dword s{36+3*mt+p}, s[16:17], s{25+p} offset:{mt*128} glc")
e("  s_waitcnt lgkmcnt(0)")
for mt in range(4):
    for p in range(3):
        r = f"s{36+3*mt+p}"
        e(f"  s_sub_u32 {r}, {r}, s3"); e(f"  s_cmp_gt_u32 {r}, 7"); e(f"  s_cselect_b32 {r}, 0, {r}")
    e(f"  s_min_u32 s{36+3*mt}, s{36+3*mt}, s{37+3*mt}"); e(f"  s_min_u32 s{36+3*mt}, s{36+3*mt}, s{38+3*mt}")
    e(f"  v_mov_b32 v{28+mt}, s{36+3*mt}")
e(f"  ds_write_b128 v20, v[28:31] offset:{O_SIG}")
e("  s_min_u32 s36, s36, s39"); e("  s_min_u32 s42, s42, s45"); e("  s_min_u32 s36, s36, s42")
e("  s_sub_u32 s60, s60, 1"); e("  s_cmp_eq_u32 s60, 0"); e("  s_cbranch_scc1 L_hdone")
e("  s_cmp_ge_u32 s36, 3")
e("  s_cbranch_scc0 L_hpoll")
e("L_hdone:")
if STAMP: e(f"  s_sub_u32 s{SB+2*11}, {OPT['spin']}, s60")
stamp(5)
e("  s_branch L_fin")

LMODE[0] = False
e("L_compute:")
if OPT["prio"]: e(f"  s_setprio {OPT['prio']}")
NB = 6; D = 5
AB = 16; XB = 40; OWN = 56; ACC = 112; ACC2 = 184
e(f"  v_mov_b32 v1, {SY}")
e("  v_and_b32 v10, 31, v0")
e("  v_lshl_add_u32 v11, v10, 2, v1")
e("  v_mov_b32 v105, 0")
e("  ds_write_b32 v11, v105")
e("  v_lshrrev_b32 v10, 5, v0"); e("  v_lshlrev_b32 v10, 4, v10"); e("  v_bfe_u32 v11, v0, 2, 3"); e("  v_add_u32 v10, v10, v11")
e("  v_mul_u32_u24 v10, 288, v10"); e("  v_and_b32 v11, 3, v0"); e("  v_lshl_add_u32 v2, v11, 3, v10")
e("  v_lshrrev_b32 v10, 2, v0"); e("  v_mul_u32_u24 v10, 288, v10"); e("  v_lshl_add_u32 v6, v11, 3, v10")
e(f"  v_add_u32 v7, {6*IMG}, v6"); e(f"  v_add_u32 v8, {12*IMG}, v6")
e("  s_lshl_b32 s40, s18, 12"); e(f"  s_add_u32 s40, s40, {XBASE}")
e("  v_and_b32 v10, 15, v0"); e("  v_lshrrev_b32 v11, 1, v10"); e("  v_lshrrev_b32 v13, 4, v0"); e("  v_xor_b32 v11, v11, v13")
e("  v_lshlrev_b32 v11, 4, v11"); e("  v_lshl_add_u32 v10, v10, 7, v11")
e("  v_add_u32 v3, s40, v10"); e("  v_xor_b32 v10, 64, v10"); e("  v_add_u32 v4, s40, v10")
e("  v_lshlrev_b32 v5, 4, v0")
e("  v_mov_b32 v10, 1")
for i in range(144): e(f"  v_mov_b32 v{ACC+i}, 0")
K1 = -2*0.7978845608028654*1.4426950408889634
K3 = K1*0.044715
e(f"  s_mov_b32 s54, {f2u(K3)}"); e(f"  s_mov_b32 s55, {f2u(K3)}")
e(f"  v_mov_b32 v14, {f2u(K1)}"); e(f"  v_mov_b32 v15, {f2u(K1)}")
KS = [24, 25, 26, 27, 32, 33, 34, 35, 36, 37, 38, 39]
HV = [5, 9, 12, 13]
for k in range(12): e(f"  s_mov_b32 s{KS[k]}, {k*KST}")
e("  s_lshl_b32 s40, s21, 5"); e("  s_add_u32 s40, s40, s19"); e("  s_lshl_b32 s41, s18, 8"); e("  s_add_u32 s40, s40, s41")
for p in (3, 2, 1, 0):
    e(f"  s_add_u32 s41, s20, {p}"); e("  s_and_b32 s41, s41, 3"); e("  s_lshl_b32 s41, s41, 3"); e("  s_add_u32 s41, s41, s40")
    e("  s_lshl_b32 s41, s41, 10")
    e(f"  v_add_u32 v{HV[p]}, s41, v5")
e("  s_lshl_b32 s43, s2, 2"); e("  s_add_u32 s43, s43, s18"); e("  s_lshl_b32 s43, s43, 7"); e(f"  s_add_u32 s43, s43, {FH_OFF}")
e("  s_lshl_b32 s40, s18, 2")
e("  v_add_u32 v106, s40, v1")
e("  s_waitcnt lgkmcnt(0)")
srd(28, "s16", "s17", WS_USE)
e(f"  s_add_u32 s44, s16, {P_OFF}"); e("  s_addc_u32 s45, s17, 0"); e(f"  s_mov_b32 s46, {P_OFF}"); e("  s_mov_b32 s47, 0x00020000")
if OPT["warmf"]:
    e("  s_mov_b64 exec, 1")
    e("  buffer_store_dword v105, v105, s[28:31], s43 offen sc1")
    e("  s_mov_b64 exec, -1")

def acc1(t, mat, mh):
    if t == 8: return ACC + 8*16 + mh*8 + mat*4
    return ACC + ((t//2)*2 + mh)*16 + (t & 1)*8 + mat*4
def a1read(j, d):
    kk, r = j // 18, j % 18
    t, mat = r // 2, r % 2
    b = AB + 4*(j % NB) + 2*d
    return f"  ds_read_b64_tr_b16 v[{b}:{b+1}], v2 offset:{kk*WSLOT + mat*IMG + d*8*288 + t*32}"
def x1read(kk, mh):
    b = XB + 8*kk + 4*mh
    return f"  ds_read_b128 v[{b}:{b+3}], v{3+kk} offset:{mh*2048}"
stamp(1)
e("  s_barrier")
stamp(2)
if STAMP: e("  s_waitcnt lgkmcnt(0)")
e(x1read(0, 0)); e(x1read(0, 1))
for j in range(D):
    e(a1read(j, 0)); e(a1read(j, 1))
e("  s_mov_b32 s48, 9")
e("  s_mov_b32 s51, 0")
e("L_loop:")
e("  s_add_u32 s51, s51, 1"); e("  s_cmp_eq_u32 s51, 3")
e(f"  s_mov_b32 s52, {2*WSLOT}"); e(f"  s_cmov_b32 s52, {(-4*WSLOT) & 0xffffffff}")
e(f"  s_mov_b32 s53, {XSLOT}"); e(f"  s_cmov_b32 s53, {(-2*XSLOT) & 0xffffffff}")
e("  s_cselect_b32 s51, 0, s51")
q = [("x", 0), ("x", 0)] + [("a", j) for j in range(D) for _ in range(2)]
for j in range(36):
    kk, r = j // 18, j % 18
    t, mat = r // 2, r % 2
    if r == 18 - D:
        e("  s_barrier")
        if kk == 1:
            e("  v_add_u32 v2, s52, v2"); e("  v_add_u32 v3, s53, v3")
        e(x1read(1 - kk, 0)); e(x1read(1 - kk, 1)); q += [("x", kk+1)]*2
        if kk == 0: e("  v_add_u32 v4, s53, v4")
    need = [i for i, it in enumerate(q) if it == ("a", j) or it == ("x", kk)]
    if need:
        e(f"  s_waitcnt lgkmcnt({len(q)-1-max(need)})")
        q = q[max(need)+1:]
    b = AB + 4*(j % NB)
    for mh in range(2):
        a = acc1(t, mat, mh); xb = XB + 8*kk + 4*mh
        e(f"  {M16} v[{a}:{a+3}], v[{b}:{b+3}], v[{xb}:{xb+3}], v[{a}:{a+3}]")
        e(a1read((j + D) % 36, mh)); q.append(("a", j + D))
e("  s_sub_u32 s48, s48, 1"); e("  s_cmp_lg_u32 s48, 0"); e("  s_cbranch_scc1 L_loop")
stamp(3)
if OPT["ue"] < 0: lds_inc(1, O_G1, 10)
e("  ds_read_b32 v11, v1")

def blk(b): return [b, b+4, b+8]
BUF = {(0, 0): blk(OWN), (0, 1): blk(OWN+12), (0, 2): blk(OWN+24),
       (1, 0): blk(ACC), (2, 0): blk(ACC+12), (3, 0): blk(ACC+24),
       (1, 1): blk(ACC+36), (2, 1): blk(ACC+48), (3, 1): blk(ACC+60),
       (1, 2): blk(OWN), (2, 2): blk(OWN+12), (3, 2): blk(92)}
SH = {(0, 0): XB, (0, 1): XB+4, (1, 0): XB+8, (1, 1): XB+12}
vq = []
def gloads(p, g):
    return [f"  buffer_load_dwordx4 v[{r}:{r+3}], v{HV[p]}, s[28:31], s{KS[3*g+k]} offen sc1" for k, r in enumerate(BUF[(p, g)])]
def flag(stage):
    e(f"  v_add_u32 v104, {stage}, v11")
    e("  s_mov_b64 exec, 1")
    e("  buffer_store_dword v104, v105, s[28:31], s43 offen sc1")
    e("  s_mov_b64 exec, -1")
    vq.append("f")
def wait_stores(lbl):
    global vq
    assert all(isinstance(it, str) for it in vq)
    k = max(i for i, it in enumerate(vq) if it == lbl)
    e(f"  s_waitcnt vmcnt({len(vq)-1-k})")
    vq = vq[k+1:]
def gelu_unit(ab, dst, tmp):
    gs = [ab, ab+2, ab+8, ab+10]; us = [g + 4 for g in gs]
    for p in range(4): e(f"  v_pk_mul_f32 v[{tmp+2*p}:{tmp+2*p+1}], v[{gs[p]}:{gs[p]+1}], v[{gs[p]}:{gs[p]+1}]")
    for p in range(4): e(f"  v_pk_fma_f32 v[{tmp+2*p}:{tmp+2*p+1}], v[{tmp+2*p}:{tmp+2*p+1}], s[54:55], v[14:15]")
    for p in range(4): e(f"  v_pk_mul_f32 v[{tmp+2*p}:{tmp+2*p+1}], v[{tmp+2*p}:{tmp+2*p+1}], v[{gs[p]}:{gs[p]+1}]")
    for i in range(8): e(f"  v_exp_f32 v{tmp+i}, v{tmp+i}")
    for p in range(4): e(f"  v_pk_mul_f32 v[{gs[p]}:{gs[p]+1}], v[{gs[p]}:{gs[p]+1}], v[{us[p]}:{us[p]+1}]")
    for p in range(4): e(f"  v_pk_add_f32 v[{tmp+2*p}:{tmp+2*p+1}], v[{tmp+2*p}:{tmp+2*p+1}], 1.0 op_sel_hi:[1,0]")
    for i in range(8): e(f"  v_rcp_f32 v{tmp+i}, v{tmp+i}")
    e("  s_nop 0")
    for p in range(4): e(f"  v_pk_mul_f32 v[{gs[p]}:{gs[p]+1}], v[{gs[p]}:{gs[p]+1}], v[{tmp+2*p}:{tmp+2*p+1}]")
    for p in range(4): e(f"  v_cvt_pk_bf16_f32 v{dst+p}, v{gs[p]}, v{gs[p]+1}")
e("  s_waitcnt lgkmcnt(0)")
for u in range(9):
    g, k = u // 3, u % 3
    B = BUF[(0, g)]
    if u == OPT["ea"]: e(f"  ds_read_b32 v2, v106 offset:{O_SIG}")
    gelu_unit(ACC + 16*u, B[k], XB + 8*(u & 1))
    e(f"  buffer_store_dwordx4 v[{B[k]}:{B[k]+3}], v5, s[28:31], s{KS[u]} offen sc1"); vq.append(f"st{g}")
    if u == OPT["ue"]: lds_inc(1, O_G1, 10)
    if u == OPT["f1"] - 1: lds_inc(1, 12, 10)
    if u == OPT["f1"]:
        wait_stores("st0"); flag(1); stamp(4)
    if u == OPT["ea"]:
        e("  s_waitcnt lgkmcnt(0)")
        e("  v_readfirstlane_b32 s42, v2")
        e("  s_cmp_ge_u32 s42, 1")
        e("  s_cbranch_scc0 L_noearly")
        for p in range(1, 4):
            for x in gloads(p, 0): e(x)
        e("L_noearly:")
    if u == 8 and OPT["xstop"]:
        e("  s_waitcnt vmcnt(0)"); stamp(5); e("  s_branch L_fin")
stamp(5)
def hreg(ei, mh):
    p, i = ORDER[ei]
    if p == "S": return SH[(i, mh)]
    f = 2*i + mh
    return BUF[(p, f // 3)][f % 3]
def groups_needed(ei):
    p, i = ORDER[ei]
    if p == 0: return []
    if p == "S": return [(pp, 2) for pp in (2*i, 2*i+1) if pp]
    return sorted(set((p, (2*i+mh)//3) for mh in range(2)))
checked = set(); issued = set()
def piece_move(p):
    B = BUF[(p, 2)]
    for mh in range(2):
        for h in range(2): e(f"  v_mov_b32 v{SH[(p//2, mh)] + 2*(p & 1) + h}, v{B[2] + 2*mh + h}")
def gcheck(p, g):
    global vq
    assert (p, g) in issued, (p, g)
    idx = [i for i, it in enumerate(vq) if it == (p, g)]
    if idx:
        younger = [it for it in vq[max(idx)+1:] if not isinstance(it, str)]
        e(f"  s_waitcnt vmcnt({len(younger)})")
        vq = younger
    if g == 2:
        piece_move(p); e("  s_nop 1")
    checked.add((p, g))
piece_move(0)
TM = OPT["tm"]
seq = [(ei, t) for ei in range(TM) for t in range(9)] + [(ei, t) for tg in range(3) for ei in range(TM, 18) for t in range(3*tg, 3*tg+3)]
def first_use(ei): return min(n for n, (a_, _) in enumerate(seq) if a_ == ei)
def a2read(n, d):
    ei, t = seq[n]
    img = ei if ei < 17 else 0
    b = AB + 4*(n % NB) + 2*d
    return f"  ds_read_b64_tr_b16 v[{b}:{b+1}], v{6 + img//6} offset:{(img % 6)*IMG + d*16*288 + t*32}"
slow = []
checks = {}
def add_check(n, vaddr, off, val, post=None):
    assert n not in checks
    checks[n] = (vaddr, off, val, post)
LA, LB, LC = OPT["la"], OPT["lb"], OPT["lc"]
assert LC >= 28
add_check(first_use(4) - D, 1, O_M + 4, 3)
add_check(first_use(8) - D, 1, O_M + 8, 3)
add_check(first_use(12) - D, 1, O_M + 12, 3)
add_check(first_use(16) - D, 1, O_M + 16, 3)
add_check(LA, 106, O_SIG, 1, lambda: stamp(7))
add_check(LB, 106, O_SIG, 2)
add_check(LC, 106, O_SIG, 3)
chk_reg = {n: 2 + (i % 3) for i, n in enumerate(sorted(checks))}
events = {LA: (1, 0), LA+1: (2, 0), LA+2: (3, 0), LB: (1, 1), LB+2: (2, 1), LB+4: (3, 1), LC: (1, 2), LC+2: (2, 2), LC+4: (3, 2)}
if OPT["ea"] >= 0:
    for k_ in (LA, LA+1, LA+2): del events[k_]
lds_spin(1, O_M, 3, 2)
stamp(6)
if STAMP: e("  s_waitcnt lgkmcnt(0)")
q = []
for n in range(D):
    e(a2read(n, 0)); e(a2read(n, 1)); q += [n, n]
N = len(seq); PRE = 4
assert min(checks) >= PRE
pend_epi = []
for n in range(N):
    ei, t = seq[n]
    if n == OPT["f2"]:
        wait_stores("st1"); flag(2)
    if n == OPT["f3"]:
        e("  s_waitcnt vmcnt(0)"); vq = []; flag(3)
    if n == 9:
        lds_inc(1, O_CONS, 10); q.append("c")
    if n + PRE in checks:
        va, off, val, post = checks[n + PRE]
        e(f"  ds_read_b32 v{chk_reg[n+PRE]}, v{va} offset:{off}"); q.append(("chk", n + PRE))
    if n in checks:
        va, off, val, post = checks[n]
        need = [i for i, it in enumerate(q) if it == ("chk", n)]
        if need:
            e(f"  s_waitcnt lgkmcnt({len(q)-1-max(need)})")
            q = q[max(need)+1:]
        ls, lb = lab("slow"), lab("back")
        if n == LA and OPT["ea"] >= 0:
            e("  s_cmp_ge_u32 s42, 1")
            e("  s_cbranch_scc1 L_skipA")
        e(f"  v_readfirstlane_b32 s60, v{chk_reg[n]}")
        e(f"  s_cmp_ge_u32 s60, {val}")
        e(f"  s_cbranch_scc0 {ls}")
        e(f"{lb}:")
        slow.append((ls, lb, va, off, val, chk_reg[n]))
        if n == LA and OPT["ea"] >= 0:
            for p in range(1, 4):
                for x in gloads(p, 0): e(x); vq.append((p, 0))
                issued.add((p, 0))
            e("L_skipA:")
        if post: post()
    for pg in groups_needed(ei):
        if pg not in checked:
            gcheck(*pg)
            if pg == (1, 0): stamp(8)
            if pg == (1, 2): stamp(9)
    if n in events:
        for x in gloads(*events[n]): e(x); vq.append(events[n])
        issued.add(events[n])
    need = [i for i, it in enumerate(q) if it == n]
    if need:
        e(f"  s_waitcnt lgkmcnt({len(q)-1-max(need)})")
        q = q[max(need)+1:]
    b = AB + 4*(n % NB)
    for mh in range(2):
        a = ACC2 + t*8 + mh*4; hb = hreg(ei, mh)
        c = "0" if ei == 0 else f"v[{a}:{a+3}]"
        e(f"  {M16} v[{a}:{a+3}], v[{b}:{b+3}], v[{hb}:{hb+3}], {c}")
        if n + D < N:
            e(a2read(n + D, mh)); q.append(n + D)
    if ei == 17 and t % 3 == 2: pend_epi.append((n + 3, t // 3))
    while pend_epi and (pend_epi[0][0] <= n or n == N - 1):
        _, tg = pend_epi.pop(0)
        if n == N - 1 and tg == 2:
            stamp(10)
            e("  s_nop 7")
        PG = [BUF[(1, 0)][0], BUF[(1, 0)][1], BUF[(2, 0)][0], BUF[(2, 0)][1]]
        for mh in range(2):
            g0, g1 = PG[2*mh], PG[2*mh+1]
            src = [ACC2 + (3*tg + k)*8 + mh*4 + 2*h for k in range(3) for h in range(2)]
            dst = [g0, g0+1, g0+2, g1, g1+1, g1+2]
            for s_, d_ in zip(src, dst): e(f"  v_cvt_pk_bf16_f32 v{d_}, v{s_}, v{s_+1}")
            if tg == 0:
                e(f"  v_mov_b32 v{g0+3}, v11"); e(f"  v_mov_b32 v{g1+3}, v11")
            e(f"  buffer_store_dwordx4 v[{g0}:{g0+3}], v5, s[44:47], s{KS[tg*4+mh*2]} offen sc1")
            e(f"  buffer_store_dwordx4 v[{g1}:{g1+3}], v5, s[44:47], s{KS[tg*4+mh*2+1]} offen sc1")
            vq += ["p", "p"]
        flag(4 + tg)
        lds_inc(1, O_TG + 4*tg, 10); q.append("c")
stamp(11)
if STAMP:
    e("  s_waitcnt vmcnt(0)")
    stamp(12)
e("L_fin:")
stamp_flush()
e("L_end:")
e("  s_endpgm")
for ls, lb, va, off, val, vt in slow:
    e(f"{ls}:")
    lds_spin(va, off, val, vt)
    e(f"  s_branch {lb}")
e("L_codeend:")
e('.section .rodata,"a"\n.p2align 6')
e(f".amdhsa_kernel {NAME}")
e("  .amdhsa_next_free_vgpr 256\n  .amdhsa_next_free_sgpr 102\n  .amdhsa_accum_offset 256")
e("  .amdhsa_group_segment_fixed_size 0\n  .amdhsa_kernarg_size 56\n  .amdhsa_user_sgpr_count 2\n  .amdhsa_user_sgpr_kernarg_segment_ptr 1\n  .amdhsa_system_sgpr_workgroup_id_x 1\n.end_amdhsa_kernel")
print("\n".join(out))
```

```python
import sys, struct
OPT = dict(stamp=0, rot=0, grp=3, nt=9, prio=0, spin=400000, slp=1, cpf=1, spf=0, tm=10,
           f1=6, f2=0, f3=14, la=14, lb=40, lc=70, warmf=1, kst=0x100000, xstop=0, spoll=1, vpf=8, wdw=6, wdpre=4, ue=8, wsl=0, ea=8, repc=-1, repl=0, badx=0)
for a in sys.argv[1:]:
    k, v = a.split("="); assert k in OPT, k; OPT[k] = int(v, 0)
STAMP = OPT["stamp"]
out = []
def e(s=""): out.append(s)
def f2u(x): return "0x%08x" % struct.unpack("<I", struct.pack("<f", x))[0]

X_BYTES = 1024*576*2
W_BYTES = 576*4608*2
P_OFF = 0x1000000
FH_OFF = 0x2000000
WS_USE = 0x2040000
ST_OFF = 0x4000000
IMG = 9216
WSLOT = 2*IMG
XBASE = 6*WSLOT
XSLOT = 16384
SY = XBASE + 3*XSLOT
O_G1, O_CONS, O_TG, O_SIG, O_M = 4, 8, 16, 32, 64
LDS_TOTAL = SY + 128
NTS = " nt" if OPT["nt"] & 1 else ""
NTX = " nt" if OPT["nt"] & 2 else ""
NTD = " nt" if OPT["nt"] & 4 else ""
NTP = " nt" if OPT["nt"] & 8 else ""
M16 = "v_mfma_f32_16x16x32_bf16"
NAME = "standalone__geglu_ffn__sampling_kernel"
KST = OPT["kst"]
ORDER = [(0, 0), (0, 1), (0, 2), (0, 3), (1, 0), (2, 0), (3, 0), (1, 1), (1, 2), (2, 1), (2, 2), (3, 1), (3, 2),
         (1, 3), (2, 3), (3, 3), ("S", 0), ("S", 1)]
uid = [0]
def lab(p):
    uid[0] += 1
    return f"L_{p}{uid[0]}"
def srd(d, lo, hi, nbytes):
    e(f"  s_mov_b32 s{d}, {lo}"); e(f"  s_mov_b32 s{d+1}, {hi}")
    e(f"  s_mov_b32 s{d+2}, {nbytes}"); e(f"  s_mov_b32 s{d+3}, 0x00020000")
NST, SB = 14, 64
LMODE = [False]
def stamp(i, force=False):
    if STAMP == 3 and LMODE[0] and not force: return
    if STAMP: e(f"  s_memrealtime s[{SB+2*i}:{SB+1+2*i}]")
def stamp_init():
    if STAMP:
        for i in range(1, NST): e(f"  s_mov_b64 s[{SB+2*i}:{SB+1+2*i}], 0")
def stamp_flush():
    if not STAMP: return
    if OPT["repc"] == 99:
        e(f"  v_mov_b32 v2, {SY}")
        e("  ds_read_b32 v2, v2")
        e("  s_waitcnt lgkmcnt(0)")
        e("  v_readfirstlane_b32 s92, v2")
        e("L_rep:")
        e("  s_memrealtime s[94:95]")
        e("  s_waitcnt lgkmcnt(0)")
        e("  s_lshl_b32 s94, s94, 3")
        e("  s_sub_u32 s94, s94, s92")
        e("  s_cmp_lt_u32 s94, 32000")
        e("  s_cbranch_scc1 L_rep")
        return
    if OPT["repc"] >= 0:
        e("  s_waitcnt lgkmcnt(0)")
        e("  s_cmp_lt_u32 s18, 4")
        e(f"  s_cselect_b32 s92, s{SB+2*OPT['repc']}, s{SB+2*OPT['repl']}")
        e("  s_cmp_eq_u32 s92, 0")
        e(f"  s_cselect_b32 s92, s{SB}, s92")
        e("L_rep:")
        e("  s_memrealtime s[94:95]")
        e("  s_waitcnt lgkmcnt(0)")
        e("  s_sub_u32 s94, s94, s92")
        e("  s_cmp_lt_u32 s94, 4000")
        e("  s_cbranch_scc1 L_rep")
        return
    e("  s_waitcnt lgkmcnt(0)")
    e(f"  s_add_u32 s92, s16, {ST_OFF}"); e("  s_addc_u32 s93, s17, 0")
    e("  s_mov_b32 s94, 0x100000"); e("  s_mov_b32 s95, 0x00020000")
    e("  s_lshl_b32 s96, s2, 3"); e("  s_add_u32 s96, s96, s18"); e("  s_lshl_b32 s96, s96, 7")
    e("  v_mov_b32 v250, 0")
    for i in range(NST):
        e(f"  v_mov_b32 v252, s{SB+2*i}"); e(f"  v_mov_b32 v253, s{SB+1+2*i}")
        e(f"  buffer_store_dwordx2 v[252:253], v250, s[92:95], s96 offen offset:{i*8}")
        e("  s_nop 1")
def lds_spin(vaddr, off, val, vt):
    l = lab("sp"); d = lab("spd")
    e(f"  s_mov_b32 s61, {OPT['spin']*8}")
    e(f"{l}:")
    e(f"  ds_read_b32 v{vt}, v{vaddr} offset:{off}")
    e("  s_sub_u32 s61, s61, 1")
    e("  s_waitcnt lgkmcnt(0)")
    e(f"  v_readfirstlane_b32 s60, v{vt}")
    e("  s_cmp_eq_u32 s61, 0")
    e(f"  s_cbranch_scc1 {d}")
    e(f"  s_cmp_ge_u32 s60, {val}")
    e(f"  s_cbranch_scc0 {l}")
    e(f"{d}:")
def lds_inc(vaddr, off, vone):
    e("  s_mov_b64 exec, 1")
    e(f"  ds_add_u32 v{vaddr}, v{vone} offset:{off}")
    e("  s_mov_b64 exec, -1")

e(f"; @launch grid=(256,1,1) block=(512,1,1) lds={LDS_TOTAL}")
e('.amdgcn_target "amdgcn-amd-amdhsa--gfx950"')
e(".text")
e(f".globl {NAME}\n.p2align 8\n.type {NAME},@function\n{NAME}:")
e("  s_cmp_ge_u32 s2, 256")
e("  s_cbranch_scc1 L_end")
if OPT["badx"]:
    e("  s_lshr_b32 s3, s2, 5"); e("  s_lshl_b32 s2, s2, 3"); e("  s_and_b32 s2, s2, 255"); e("  s_or_b32 s2, s2, s3")
e("  s_load_dwordx8 s[4:11], s[0:1], 0")
e("  s_load_dwordx4 s[12:15], s[0:1], 32")
e("  s_load_dwordx2 s[16:17], s[0:1], 48")
stamp(0)
e("  v_lshrrev_b32 v1, 6, v0")
e("  v_and_b32 v0, 63, v0")
e("  v_readfirstlane_b32 s18, v1")
stamp_init()
e("  s_and_b32 s19, s2, 7")
e("  s_lshr_b32 s20, s2, 3")
e("  s_lshr_b32 s21, s20, 2")
e("  s_and_b32 s20, s20, 3")
e("  s_add_u32 s23, s20, s21")
e("  s_and_b32 s22, s23, 3")
e("  s_cmp_lt_u32 s18, 4")
e("  s_cbranch_scc1 L_compute")

LMODE[0] = True
if OPT["grp"]:
    G = OPT["grp"]
    tab = 0
    for v in range(11): tab |= ((v % G)*9//G) << (4*v)
    e(f"  s_mov_b32 s24, {tab & 0xffffffff}"); e(f"  s_mov_b32 s25, {tab >> 32}")
    e("  s_lshl_b32 s23, s23, 2")
    e("  s_lshr_b64 s[24:25], s[24:25], s23")
    e("  s_and_b32 s23, s24, 15")
elif OPT["rot"]:
    e("  s_add_u32 s23, s23, s20"); e("  s_add_u32 s23, s23, s19")
    for _ in range(2):
        e("  s_cmp_ge_u32 s23, 9"); e("  s_cselect_b32 s24, 9, 0"); e("  s_sub_u32 s23, s23, s24")
else:
    e("  s_mov_b32 s23, 0")
e("  s_sub_u32 s34, s18, 4")
e("  s_lshl_b32 s38, s21, 7"); e("  s_lshl_b32 s39, s34, 5"); e("  s_add_u32 s38, s38, s39")
e("  v_lshrrev_b32 v30, 3, v0")
e("  v_add_u32 v30, s38, v30")
e("  v_mul_u32_u24 v30, 1152, v30")
e("  v_lshrrev_b32 v31, 4, v0")
e("  v_xor_b32 v31, v31, v0")
e("  v_and_b32 v31, 7, v31")
e("  v_lshl_add_u32 v5, v31, 4, v30")
e("  v_xor_b32 v31, 4, v31")
e("  v_lshl_add_u32 v6, v31, 4, v30")
e(f"  v_add_u32 v6, {8*1152-1024}, v6")
e(f"  v_add_u32 v7, {16*1152-2048}, v5")
e(f"  v_add_u32 v8, {16*1152-2048}, v6")
e("  s_mul_i32 s35, s19, 1152")
e("  s_mul_i32 s38, s20, 288")
e("  s_add_u32 s38, s38, s35")
e("  s_and_b32 s39, s20, 1")
e("  s_lshl_b32 s33, s39, 8")
e("  s_lshl_b32 s32, s39, 5")
e("  s_sub_u32 s39, s38, s33")
e("  s_add_u32 s38, s38, s32")
e("  v_mov_b32 v34, s38"); e("  v_mov_b32 v35, s39")
e("  s_lshl_b32 s36, s34, 6")
for n in range(3):
    r, c = 12 + 2*n, 13 + 2*n
    e(["  v_add_u32 v30, s36, v0", "  v_add_u32 v30, 256, v30", "  v_add_u32 v30, 512, v0"][n])
    e("  v_mul_u32_u24 v31, 3641, v30")
    e(f"  v_lshrrev_b32 v{r}, 16, v31")
    e(f"  v_mul_u32_u24 v31, 18, v{r}")
    e(f"  v_sub_u32 v{c}, v30, v31")
    e(f"  v_and_b32 v33, 0x13, v{r}")
    e(f"  v_bfe_u32 v36, v{r}, 2, 1")
    e("  v_lshl_or_b32 v33, v36, 3, v33")
    e(f"  v_bfe_u32 v36, v{r}, 3, 1")
    e(f"  v_cmp_lt_u32 vcc, 15, v{c}")
    e("  v_lshl_or_b32 v33, v36, 2, v33")
    e("  v_mul_u32_u24 v33, 9216, v33")
    e("  v_cndmask_b32 v36, v34, v35, vcc")
    e(f"  v_lshl_add_u32 v33, v{c}, 4, v33")
    e(f"  v_add_u32 v{2+n}, v36, v33")
e(f"  s_mul_i32 s48, s23, {64*9216}")
e("  s_lshl_b32 s49, s23, 7")
e("  s_lshl_b32 s32, s34, 10")
e("  s_and_b32 s33, s34, 1")
e(f"  s_mul_i32 s33, s33, {IMG}")
e("  s_add_u32 s33, s33, 8192")
e("  s_lshr_b32 s35, s34, 1")
e("  s_lshl_b32 s36, s34, 12")
e(f"  s_add_u32 s36, s36, {XBASE}")
e("  s_mov_b32 s50, 0")
e("  s_mov_b32 s51, s36")
e(f"  s_add_u32 s37, s36, {3*XSLOT}")
e("  s_bitcmp1_b32 s34, 0")
e("  s_waitcnt lgkmcnt(0)")
e("  s_cselect_b32 s56, s8, s6"); e("  s_cselect_b32 s57, s9, s7")
e(f"  s_mov_b32 s58, {W_BYTES}"); e("  s_mov_b32 s59, 0x00020000")
srd(24, "s4", "s5", X_BYTES)
srd(40, "s6", "s7", W_BYTES)
srd(44, "s8", "s9", W_BYTES)
def g_issue(par):
    if par == 0:
        e("  s_mov_b32 m0, s51")
        e(f"  s_add_u32 s51, s51, {XSLOT}")
        for q in range(4): e(f"  buffer_load_dwordx4 v{5+q}, s[24:27], s49 offen offset:{q*1024}{NTX} lds")
        e("  s_cmp_eq_u32 s51, s37"); e("  s_cselect_b32 s51, s36, s51")
        e("  s_add_u32 s49, s49, 128"); e("  s_cmp_eq_u32 s49, 1152"); e("  s_cselect_b32 s49, 0, s49")
    e("  s_add_u32 s52, s50, s32")
    for mat in range(2):
        for n in range(2):
            e(f"  s_add_u32 m0, s52, {mat*IMG + n*4096}")
            e("  s_nop 0")
            e(f"  buffer_load_dwordx4 v{2+n}, s[{40+4*mat}:{43+4*mat}], s48 offen{NTS} lds")
    l = lab("p8")
    e(f"  s_cmp_eq_u32 s35, {par}")
    e(f"  s_cbranch_scc0 {l}")
    e("  s_add_u32 m0, s50, s33")
    e("  s_nop 0")
    e(f"  buffer_load_dwordx4 v4, s[56:59], s48 offen{NTS} lds")
    e(f"{l}:")
    e(f"  s_add_u32 s48, s48, {32*9216}"); e(f"  s_cmp_eq_u32 s48, {576*9216}"); e("  s_cselect_b32 s48, 0, s48")
    e(f"  s_add_u32 s50, s50, {WSLOT}"); e(f"  s_cmp_eq_u32 s50, {6*WSLOT}"); e("  s_cselect_b32 s50, 0, s50")
stamp(1)
g_issue(0); g_issue(1)
e("  s_mul_i32 s53, s22, 288")
e("  s_lshl_b32 s62, s34, 6")
for n in range(3):
    r = 12 + 2*n
    e("  v_add_u32 v30, s62, v0" if n == 0 else "  v_add_u32 v30, 192, v30")
    e("  v_mul_u32_u24 v31, 3641, v30")
    e(f"  v_lshrrev_b32 v{r}, 16, v31")
    e(f"  v_mul_u32_u24 v31, 18, v{r}")
    e("  v_sub_u32 v32, v30, v31")
    e(f"  v_mul_u32_u24 v31, 1152, v{r}")
    e("  v_lshl_add_u32 v31, v32, 4, v31")
    e(f"  v_add_u32 v{9+n}, s53, v31")
e(f"  v_mov_b32 v20, {SY}"); e("  v_mov_b32 v21, 1"); e("  v_mov_b32 v22, 0")
e("  s_lshl_b32 s53, s34, 2")
e("  v_add_u32 v26, s53, v20")
srd(28, "s14", "s15", 256)
e("  s_or_b32 s53, s2, s34")
e("  s_cmp_eq_u32 s53, 0")
e("  s_cbranch_scc0 L_nononce")
e("  s_memrealtime s[60:61]")
e("  s_waitcnt lgkmcnt(0)")
e("  s_lshl_b32 s60, s60, 3")
e("  s_max_u32 s60, s60, 8")
e("  v_mov_b32 v23, s60")
e("  s_waitcnt vmcnt(0)")
e("  buffer_store_dword v23, v22, s[28:31], 0 offen sc1")
e("L_nononce:")
e("  s_lshr_b32 s62, s2, 3"); e("  s_lshl_b32 s62, s62, 2"); e("  s_add_u32 s62, s62, s34")
if OPT["cpf"]:
    e("  s_getpc_b64 s[60:61]")
    e("L_pc:")
    e(f"  s_sub_u32 s60, s60, L_pc-{NAME}")
    e("  s_subb_u32 s61, s61, 0")
    e("  s_lshl_b32 s53, s62, 6")
    e("  s_load_dword s63, s[60:61], s53")
    e("  s_load_dword s63, s[60:61], s53 offset:8192")
    e("  s_add_u32 s53, s53, 16384")
    e(f"  s_min_u32 s53, s53, L_codeend-{NAME}-4")
    e("  s_load_dword s63, s[60:61], s53")
if OPT["spf"]:
    e("  s_mul_i32 s62, s62, 5184")
    e(f"  s_mul_i32 s53, s19, {576*1152}")
    e("  s_add_u32 s62, s62, s53")
if OPT["vpf"] >= 0:
    e("  s_mul_i32 s55, s62, 5184")
    e(f"  s_mul_i32 s53, s19, {576*1152}")
    e("  s_add_u32 s55, s55, s53")
    e("  v_min_u32 v18, 41, v0")
    e("  v_lshlrev_b32 v18, 7, v18")
    e("  v_add_u32 v18, s55, v18")
    srd(96, "s10", "s11", W_BYTES)
def spf():
    if OPT["spf"]:
        for k in range(5): e(f"  s_load_dword s63, s[10:11], s62 offset:{k*64}")
        e("  s_add_u32 s62, s62, 320")
def lbody(it):
    e("  s_waitcnt vmcnt(4)")
    e("  s_barrier")
    if STAMP == 3: stamp(1 + it, True)
    if 0 <= OPT["vpf"] < 8:
        if STAMP == 3:
            if it == OPT["vpf"]: e(f"  buffer_load_dword v17, v18, s[96:99], 0 offen{NTP}")
        else:
            e(f"  s_cmp_eq_u32 s53, {8 - OPT['vpf']}")
            e("  s_cbranch_scc0 L_novpf")
            e(f"  buffer_load_dword v17, v18, s[96:99], 0 offen{NTP}")
            e("L_novpf:")
    g_issue(0); spf()
    e("  s_waitcnt vmcnt(8)")
    e("  s_barrier")
    g_issue(1); spf()
if STAMP == 3:
    for it in range(8): lbody(it)
else:
    e("  s_mov_b32 s53, 8")
    e("L_lloop:")
    lbody(0)
    e("  s_sub_u32 s53, s53, 1"); e("  s_cmp_lg_u32 s53, 0"); e("  s_cbranch_scc1 L_lloop")
if OPT["spf"]: e("  s_load_dword s63, s[10:11], s62")
srd(40, "s10", "s11", W_BYTES)
e(f"  s_mul_i32 s49, s19, {576*1152}")
def piece_row(dst, p):
    e(f"  s_add_u32 s52, s20, {p}"); e("  s_and_b32 s52, s52, 3")
    e(f"  s_lshr_b32 {dst}, s52, 1"); e(f"  s_mul_i32 {dst}, {dst}, 288")
    e("  s_and_b32 s52, s52, 1"); e("  s_lshl_b32 s52, s52, 4")
    e(f"  s_add_u32 {dst}, {dst}, s52"); e(f"  s_add_u32 {dst}, {dst}, 128")
def d_issue(sig):
    so = ["s48", "s54"]; vb = [9, 9]
    if sig < 8:
        for im in range(2):
            p, i = ORDER[2*sig + im]
            e(f"  s_add_u32 s52, s20, {p}"); e("  s_and_b32 s52, s52, 3"); e("  s_mul_i32 s52, s52, 9")
            e(f"  s_add_u32 s52, s52, {1 + 2*i}"); e("  s_lshr_b32 s52, s52, 1")
            e(f"  s_mul_i32 {so[im]}, s52, {32*1152}"); e(f"  s_add_u32 {so[im]}, {so[im]}, s49")
        la = [2*sig*IMG, (2*sig+1)*IMG]
    else:
        for im in range(2):
            piece_row("s50", 2*im); piece_row("s51", 2*im+1)
            e("  s_sub_u32 s51, s51, 16")
            e("  s_mul_i32 s50, s50, 1152"); e("  s_mul_i32 s51, s51, 1152")
            e("  v_mov_b32 v33, s50"); e("  v_mov_b32 v34, s51")
            for n in range(3):
                e(f"  v_cmp_lt_u32 vcc, 15, v{12+2*n}")
                e("  s_nop 1")
                e("  v_cndmask_b32 v35, v33, v34, vcc")
                e(f"  v_add_u32 v{27+3*im+n}, v35, v{9+n}")
            e(f"  s_mov_b32 {so[im]}, s49")
        vb = [27, 30]
        la = [16*IMG, 0]
    for im in range(2):
        for n in range(3):
            e(f"  s_add_u32 m0, s32, {la[im] + n*3072}")
            e("  s_nop 0")
            e(f"  buffer_load_dwordx4 v{vb[im]+n}, s[40:43], {so[im]} offen{NTD} lds")
VP = 1 if OPT["vpf"] == 8 else 0
if VP: e(f"  buffer_load_dword v17, v18, s[96:99], 0 offen{NTP}")
e(f"  s_waitcnt vmcnt({4+VP})")
e("  s_barrier")
stamp(2)
if STAMP == 3: stamp(9, True)
e("  s_cmp_eq_u32 s34, 3")
e("  s_cbranch_scc1 L_poller")
d_issue(0)
e(f"  s_waitcnt vmcnt({6+VP})")
e("  s_barrier")
d_issue(1)
e("  s_barrier")
e("  ds_read_b32 v23, v20")
srd(28, "s16", "s17", WS_USE)
WP = OPT["wdpre"]; LAG = OPT["wdw"] // 6
assert 2 <= WP <= 5
MS = {1: O_M, 3: O_M + 4, 5: O_M + 8, 7: O_M + 12}
done = set()
def landed(k):
    for m in sorted(MS):
        if m <= k and m not in done:
            lds_inc(20, MS[m], 21); done.add(m)
            if m == 1: stamp(3)
for sg in range(2, 8):
    if sg == WP:
        e("  s_waitcnt vmcnt(0)"); landed(sg - 1)
        lds_spin(20, O_G1, 4, 24)
    d_issue(sg)
    e(f"  s_waitcnt vmcnt({6*LAG})")
    landed(sg - LAG)
    if OPT["wsl"]: e(f"  s_sleep {OPT['wsl']}")
e("  s_waitcnt vmcnt(0)")
landed(7)
stamp(4)
if OPT["xstop"]: e("  s_branch L_fin")
lds_spin(20, O_CONS, 4, 24)
d_issue(8)
e("  s_waitcnt vmcnt(0)")
lds_inc(20, O_M + 16, 21)
stamp(6)
srd(24, "s12", "s13", X_BYTES)
e("  s_lshl_b32 s44, s34, 2"); e("  s_and_b32 s45, s19, 1"); e("  s_lshl_b32 s45, s45, 1"); e("  s_add_u32 s44, s44, s45")
e(f"  s_mul_i32 s44, s44, {KST}")
e("  s_lshr_b32 s45, s19, 1"); e("  s_lshl_b32 s45, s45, 8"); e("  s_andn2_b32 s46, s2, 7"); e("  s_add_u32 s45, s45, s46")
e("  s_lshl_b32 s45, s45, 10"); e("  s_add_u32 s44, s44, s45")
e(f"  s_add_u32 s44, s44, {P_OFF}")
e("  s_add_u32 s45, s44, 4096")
e(f"  s_add_u32 s46, s44, {KST}")
e("  s_add_u32 s47, s46, 4096")
e("  s_lshl_b32 s48, s21, 7"); e("  s_lshl_b32 s49, s19, 4"); e("  s_add_u32 s48, s48, s49"); e("  s_mul_i32 s48, s48, 1152")
e("  s_mul_i32 s49, s22, 288"); e("  s_add_u32 s48, s48, s49"); e("  s_mul_i32 s49, s34, 96"); e("  s_add_u32 s48, s48, s49")
e("  v_and_b32 v1, 15, v0"); e("  v_mul_u32_u24 v1, 1152, v1"); e("  v_lshrrev_b32 v2, 4, v0"); e("  v_lshl_add_u32 v1, v2, 3, v1")
e("  v_lshlrev_b32 v5, 4, v0")
e("  s_mov_b32 s50, 0xffff0000")
e("  v_readfirstlane_b32 s3, v23")
e("  s_andn2_b32 s53, s2, 7"); e("  s_lshl_b32 s53, s53, 2"); e("  s_lshr_b32 s62, s19, 1"); e("  s_add_u32 s53, s53, s62")
e("  s_lshl_b32 s53, s53, 7"); e(f"  s_add_u32 s53, s53, {FH_OFF}")
e("  s_add_u32 s3, s3, s34"); e("  s_add_u32 s3, s3, 4")
e("  s_sub_u32 s62, 3, s34")
lds_spin(26, O_TG, 4, 24)
stamp(7)
e(f"  s_mov_b32 s60, {OPT['spin']}")
e("L_rprobe:")
e("  s_sub_u32 s60, s60, 1"); e("  s_cmp_eq_u32 s60, 0"); e("  s_cbranch_scc1 L_rdone")
PR = [32, 33, 35, 36, 37, 38, 39, 51]
for k in range(8): e(f"  s_load_dword s{PR[k]}, s[16:17], s53 offset:{k*512} glc")
e("  s_waitcnt lgkmcnt(0)")
for k in range(8):
    e(f"  s_sub_u32 s{PR[k]}, s{PR[k]}, s3")
    if k: e(f"  s_max_u32 s32, s32, s{PR[k]}")
e("  s_cmp_gt_u32 s32, s62")
e("  s_cbranch_scc1 L_rprobe")
e("L_rpoll:")
stamp(10)
if STAMP: e(f"  s_add_u32 s{SB+2*13}, s{SB+2*13}, 1")
for k in range(16):
    e(f"  buffer_load_dwordx4 v[{32+4*k}:{35+4*k}], v5, s[28:31], s{44 + 2*(k & 1) + (k//8)} offen offset:{((k//2)%4)*1024} sc1")
for k in range(8):
    e(f"  s_waitcnt vmcnt({14-2*k})")
    a, b = 32 + 8*k, 36 + 8*k
    e(f"  v_xor_b32 v{a+3}, v23, v{a+3}"); e(f"  v_xor_b32 v{b+3}, v23, v{b+3}")
    e(f"  v_or_b32 v24, v{a+3}, v{b+3}" if k == 0 else f"  v_or3_b32 v24, v{a+3}, v{b+3}, v24")
    srcs = [a, a+1, a+2, b, b+1, b+2]
    base = 100 if k == 0 else 112
    for p in range(6):
        e(f"  v_lshlrev_b32 v{base+2*p}, 16, v{srcs[p]}"); e(f"  v_and_b32 v{base+1+2*p}, s50, v{srcs[p]}")
    if k:
        for p in range(6): e(f"  v_pk_add_f32 v[{100+2*p}:{101+2*p}], v[{100+2*p}:{101+2*p}], v[{112+2*p}:{113+2*p}]")
e("  v_cmp_ne_u32 vcc, 0, v24")
for p in range(6): e(f"  v_cvt_pk_bf16_f32 v{32+p}, v{100+2*p}, v{101+2*p}")
e("  s_cbranch_vccnz L_rprobe")
e("L_rdone:")
stamp(8)
for k in range(3): e(f"  buffer_store_dwordx2 v[{32+2*k}:{33+2*k}], v1, s[24:27], s48 offen offset:{k*32}")
if STAMP:
    e("  s_waitcnt vmcnt(0)")
    e(f"  s_sub_u32 s{SB+2*12}, {OPT['spin']}, s60")
stamp(9)
e("  s_branch L_fin")

e("L_poller:")
e("  buffer_load_dword v23, v22, s[28:31], 0 offen sc1")
e(f"  s_mov_b32 s60, {OPT['spin']}")
e(f"  s_waitcnt vmcnt({1+VP})")
e("  s_barrier")
e("L_npoll:")
e("  s_waitcnt vmcnt(0)")
e("  v_readfirstlane_b32 s3, v23")
e("  s_cmp_lg_u32 s3, 0")
e("  s_cbranch_scc1 L_nok")
e("  s_sub_u32 s60, s60, 1")
e("  s_cmp_eq_u32 s60, 0")
e("  s_cbranch_scc1 L_nok")
e("  buffer_load_dword v23, v22, s[28:31], 0 offen sc1")
e("  s_branch L_npoll")
e("L_nok:")
e("  ds_write_b32 v20, v23")
e("  s_waitcnt lgkmcnt(0)")
e("  s_barrier")
for p in range(1, 4):
    e(f"  s_add_u32 s52, s20, {p}"); e("  s_and_b32 s52, s52, 3"); e("  s_lshl_b32 s52, s52, 3")
    e("  s_lshl_b32 s53, s21, 5"); e("  s_add_u32 s53, s53, s19"); e("  s_add_u32 s53, s53, s52")
    e("  s_lshl_b32 s53, s53, 9"); e(f"  s_add_u32 s{24+p}, s53, {FH_OFF}")
if OPT["xstop"]: e("  s_branch L_fin")
lds_spin(20, 12, 1, 24)
e(f"  s_mov_b32 s60, {OPT['spin']}")
e("L_hpoll:")
for mt in range(4):
    for p in range(3): e(f"  s_load_dword s{36+3*mt+p}, s[16:17], s{25+p} offset:{mt*128} glc")
e("  s_waitcnt lgkmcnt(0)")
for mt in range(4):
    for p in range(3):
        r = f"s{36+3*mt+p}"
        e(f"  s_sub_u32 {r}, {r}, s3"); e(f"  s_cmp_gt_u32 {r}, 7"); e(f"  s_cselect_b32 {r}, 0, {r}")
    e(f"  s_min_u32 s{36+3*mt}, s{36+3*mt}, s{37+3*mt}"); e(f"  s_min_u32 s{36+3*mt}, s{36+3*mt}, s{38+3*mt}")
    e(f"  v_mov_b32 v{28+mt}, s{36+3*mt}")
e(f"  ds_write_b128 v20, v[28:31] offset:{O_SIG}")
e("  s_min_u32 s36, s36, s39"); e("  s_min_u32 s42, s42, s45"); e("  s_min_u32 s36, s36, s42")
e("  s_sub_u32 s60, s60, 1"); e("  s_cmp_eq_u32 s60, 0"); e("  s_cbranch_scc1 L_hdone")
e("  s_cmp_ge_u32 s36, 3")
e("  s_cbranch_scc0 L_hpoll")
e("L_hdone:")
if STAMP: e(f"  s_sub_u32 s{SB+2*11}, {OPT['spin']}, s60")
stamp(5)
e("  s_branch L_fin")

LMODE[0] = False
e("L_compute:")
if OPT["prio"]: e(f"  s_setprio {OPT['prio']}")
NB = 6; D = 5
AB = 16; XB = 40; OWN = 56; ACC = 112; ACC2 = 184
e(f"  v_mov_b32 v1, {SY}")
e("  v_and_b32 v10, 31, v0")
e("  v_lshl_add_u32 v11, v10, 2, v1")
e("  v_mov_b32 v105, 0")
e("  ds_write_b32 v11, v105")
e("  v_lshrrev_b32 v10, 5, v0"); e("  v_lshlrev_b32 v10, 4, v10"); e("  v_bfe_u32 v11, v0, 2, 3"); e("  v_add_u32 v10, v10, v11")
e("  v_mul_u32_u24 v10, 288, v10"); e("  v_and_b32 v11, 3, v0"); e("  v_lshl_add_u32 v2, v11, 3, v10")
e("  v_lshrrev_b32 v10, 2, v0"); e("  v_mul_u32_u24 v10, 288, v10"); e("  v_lshl_add_u32 v6, v11, 3, v10")
e(f"  v_add_u32 v7, {6*IMG}, v6"); e(f"  v_add_u32 v8, {12*IMG}, v6")
e("  s_lshl_b32 s40, s18, 12"); e(f"  s_add_u32 s40, s40, {XBASE}")
e("  v_and_b32 v10, 15, v0"); e("  v_lshrrev_b32 v11, 1, v10"); e("  v_lshrrev_b32 v13, 4, v0"); e("  v_xor_b32 v11, v11, v13")
e("  v_lshlrev_b32 v11, 4, v11"); e("  v_lshl_add_u32 v10, v10, 7, v11")
e("  v_add_u32 v3, s40, v10"); e("  v_xor_b32 v10, 64, v10"); e("  v_add_u32 v4, s40, v10")
e("  v_lshlrev_b32 v5, 4, v0")
e("  v_mov_b32 v10, 1")
for i in range(144): e(f"  v_mov_b32 v{ACC+i}, 0")
K1 = -2*0.7978845608028654*1.4426950408889634
K3 = K1*0.044715
e(f"  s_mov_b32 s54, {f2u(K3)}"); e(f"  s_mov_b32 s55, {f2u(K3)}")
e(f"  v_mov_b32 v14, {f2u(K1)}"); e(f"  v_mov_b32 v15, {f2u(K1)}")
KS = [24, 25, 26, 27, 32, 33, 34, 35, 36, 37, 38, 39]
HV = [5, 9, 12, 13]
for k in range(12): e(f"  s_mov_b32 s{KS[k]}, {k*KST}")
e("  s_lshl_b32 s40, s21, 5"); e("  s_add_u32 s40, s40, s19"); e("  s_lshl_b32 s41, s18, 8"); e("  s_add_u32 s40, s40, s41")
for p in (3, 2, 1, 0):
    e(f"  s_add_u32 s41, s20, {p}"); e("  s_and_b32 s41, s41, 3"); e("  s_lshl_b32 s41, s41, 3"); e("  s_add_u32 s41, s41, s40")
    e("  s_lshl_b32 s41, s41, 10")
    e(f"  v_add_u32 v{HV[p]}, s41, v5")
e("  s_lshl_b32 s43, s2, 2"); e("  s_add_u32 s43, s43, s18"); e("  s_lshl_b32 s43, s43, 7"); e(f"  s_add_u32 s43, s43, {FH_OFF}")
e("  s_lshl_b32 s40, s18, 2")
e("  v_add_u32 v106, s40, v1")
e("  s_waitcnt lgkmcnt(0)")
srd(28, "s16", "s17", WS_USE)
e(f"  s_add_u32 s44, s16, {P_OFF}"); e("  s_addc_u32 s45, s17, 0"); e(f"  s_mov_b32 s46, {P_OFF}"); e("  s_mov_b32 s47, 0x00020000")
if OPT["warmf"]:
    e("  s_mov_b64 exec, 1")
    e("  buffer_store_dword v105, v105, s[28:31], s43 offen sc1")
    e("  s_mov_b64 exec, -1")

def acc1(t, mat, mh):
    if t == 8: return ACC + 8*16 + mh*8 + mat*4
    return ACC + ((t//2)*2 + mh)*16 + (t & 1)*8 + mat*4
def a1read(j, d):
    kk, r = j // 18, j % 18
    t, mat = r // 2, r % 2
    b = AB + 4*(j % NB) + 2*d
    return f"  ds_read_b64_tr_b16 v[{b}:{b+1}], v2 offset:{kk*WSLOT + mat*IMG + d*8*288 + t*32}"
def x1read(kk, mh):
    b = XB + 8*kk + 4*mh
    return f"  ds_read_b128 v[{b}:{b+3}], v{3+kk} offset:{mh*2048}"
stamp(1)
e("  s_barrier")
stamp(2)
if STAMP: e("  s_waitcnt lgkmcnt(0)")
e(x1read(0, 0)); e(x1read(0, 1))
for j in range(D):
    e(a1read(j, 0)); e(a1read(j, 1))
e("  s_mov_b32 s48, 9")
e("  s_mov_b32 s51, 0")
e("L_loop:")
e("  s_add_u32 s51, s51, 1"); e("  s_cmp_eq_u32 s51, 3")
e(f"  s_mov_b32 s52, {2*WSLOT}"); e(f"  s_cmov_b32 s52, {(-4*WSLOT) & 0xffffffff}")
e(f"  s_mov_b32 s53, {XSLOT}"); e(f"  s_cmov_b32 s53, {(-2*XSLOT) & 0xffffffff}")
e("  s_cselect_b32 s51, 0, s51")
q = [("x", 0), ("x", 0)] + [("a", j) for j in range(D) for _ in range(2)]
for j in range(36):
    kk, r = j // 18, j % 18
    t, mat = r // 2, r % 2
    if r == 18 - D:
        e("  s_barrier")
        if kk == 1:
            e("  v_add_u32 v2, s52, v2"); e("  v_add_u32 v3, s53, v3")
        e(x1read(1 - kk, 0)); e(x1read(1 - kk, 1)); q += [("x", kk+1)]*2
        if kk == 0: e("  v_add_u32 v4, s53, v4")
    need = [i for i, it in enumerate(q) if it == ("a", j) or it == ("x", kk)]
    if need:
        e(f"  s_waitcnt lgkmcnt({len(q)-1-max(need)})")
        q = q[max(need)+1:]
    b = AB + 4*(j % NB)
    for mh in range(2):
        a = acc1(t, mat, mh); xb = XB + 8*kk + 4*mh
        e(f"  {M16} v[{a}:{a+3}], v[{b}:{b+3}], v[{xb}:{xb+3}], v[{a}:{a+3}]")
        e(a1read((j + D) % 36, mh)); q.append(("a", j + D))
e("  s_sub_u32 s48, s48, 1"); e("  s_cmp_lg_u32 s48, 0"); e("  s_cbranch_scc1 L_loop")
stamp(3)
if OPT["ue"] < 0: lds_inc(1, O_G1, 10)
e("  ds_read_b32 v11, v1")

def blk(b): return [b, b+4, b+8]
BUF = {(0, 0): blk(OWN), (0, 1): blk(OWN+12), (0, 2): blk(OWN+24),
       (1, 0): blk(ACC), (2, 0): blk(ACC+12), (3, 0): blk(ACC+24),
       (1, 1): blk(ACC+36), (2, 1): blk(ACC+48), (3, 1): blk(ACC+60),
       (1, 2): blk(OWN), (2, 2): blk(OWN+12), (3, 2): blk(92)}
SH = {(0, 0): XB, (0, 1): XB+4, (1, 0): XB+8, (1, 1): XB+12}
vq = []
def gloads(p, g):
    return [f"  buffer_load_dwordx4 v[{r}:{r+3}], v{HV[p]}, s[28:31], s{KS[3*g+k]} offen sc1" for k, r in enumerate(BUF[(p, g)])]
def flag(stage):
    e(f"  v_add_u32 v104, {stage}, v11")
    e("  s_mov_b64 exec, 1")
    e("  buffer_store_dword v104, v105, s[28:31], s43 offen sc1")
    e("  s_mov_b64 exec, -1")
    vq.append("f")
def wait_stores(lbl):
    global vq
    assert all(isinstance(it, str) for it in vq)
    k = max(i for i, it in enumerate(vq) if it == lbl)
    e(f"  s_waitcnt vmcnt({len(vq)-1-k})")
    vq = vq[k+1:]
def gelu_unit(ab, dst, tmp):
    gs = [ab, ab+2, ab+8, ab+10]; us = [g + 4 for g in gs]
    for p in range(4): e(f"  v_pk_mul_f32 v[{tmp+2*p}:{tmp+2*p+1}], v[{gs[p]}:{gs[p]+1}], v[{gs[p]}:{gs[p]+1}]")
    for p in range(4): e(f"  v_pk_fma_f32 v[{tmp+2*p}:{tmp+2*p+1}], v[{tmp+2*p}:{tmp+2*p+1}], s[54:55], v[14:15]")
    for p in range(4): e(f"  v_pk_mul_f32 v[{tmp+2*p}:{tmp+2*p+1}], v[{tmp+2*p}:{tmp+2*p+1}], v[{gs[p]}:{gs[p]+1}]")
    for i in range(8): e(f"  v_exp_f32 v{tmp+i}, v{tmp+i}")
    for p in range(4): e(f"  v_pk_mul_f32 v[{gs[p]}:{gs[p]+1}], v[{gs[p]}:{gs[p]+1}], v[{us[p]}:{us[p]+1}]")
    for p in range(4): e(f"  v_pk_add_f32 v[{tmp+2*p}:{tmp+2*p+1}], v[{tmp+2*p}:{tmp+2*p+1}], 1.0 op_sel_hi:[1,0]")
    for i in range(8): e(f"  v_rcp_f32 v{tmp+i}, v{tmp+i}")
    e("  s_nop 0")
    for p in range(4): e(f"  v_pk_mul_f32 v[{gs[p]}:{gs[p]+1}], v[{gs[p]}:{gs[p]+1}], v[{tmp+2*p}:{tmp+2*p+1}]")
    for p in range(4): e(f"  v_cvt_pk_bf16_f32 v{dst+p}, v{gs[p]}, v{gs[p]+1}")
e("  s_waitcnt lgkmcnt(0)")
for u in range(9):
    g, k = u // 3, u % 3
    B = BUF[(0, g)]
    if u == OPT["ea"]: e(f"  ds_read_b32 v2, v106 offset:{O_SIG}")
    gelu_unit(ACC + 16*u, B[k], XB + 8*(u & 1))
    e(f"  buffer_store_dwordx4 v[{B[k]}:{B[k]+3}], v5, s[28:31], s{KS[u]} offen sc1"); vq.append(f"st{g}")
    if u == OPT["ue"]: lds_inc(1, O_G1, 10)
    if u == OPT["f1"] - 1: lds_inc(1, 12, 10)
    if u == OPT["f1"]:
        wait_stores("st0"); flag(1); stamp(4)
    if u == OPT["ea"]:
        e("  s_waitcnt lgkmcnt(0)")
        e("  v_readfirstlane_b32 s42, v2")
        e("  s_cmp_ge_u32 s42, 1")
        e("  s_cbranch_scc0 L_noearly")
        for p in range(1, 4):
            for x in gloads(p, 0): e(x)
        e("L_noearly:")
    if u == 8 and OPT["xstop"]:
        e("  s_waitcnt vmcnt(0)"); stamp(5); e("  s_branch L_fin")
stamp(5)
def hreg(ei, mh):
    p, i = ORDER[ei]
    if p == "S": return SH[(i, mh)]
    f = 2*i + mh
    return BUF[(p, f // 3)][f % 3]
def groups_needed(ei):
    p, i = ORDER[ei]
    if p == 0: return []
    if p == "S": return [(pp, 2) for pp in (2*i, 2*i+1) if pp]
    return sorted(set((p, (2*i+mh)//3) for mh in range(2)))
checked = set(); issued = set()
def piece_move(p):
    B = BUF[(p, 2)]
    for mh in range(2):
        for h in range(2): e(f"  v_mov_b32 v{SH[(p//2, mh)] + 2*(p & 1) + h}, v{B[2] + 2*mh + h}")
def gcheck(p, g):
    global vq
    assert (p, g) in issued, (p, g)
    idx = [i for i, it in enumerate(vq) if it == (p, g)]
    if idx:
        younger = [it for it in vq[max(idx)+1:] if not isinstance(it, str)]
        e(f"  s_waitcnt vmcnt({len(younger)})")
        vq = younger
    if g == 2:
        piece_move(p); e("  s_nop 1")
    checked.add((p, g))
piece_move(0)
TM = OPT["tm"]
seq = [(ei, t) for ei in range(TM) for t in range(9)] + [(ei, t) for tg in range(3) for ei in range(TM, 18) for t in range(3*tg, 3*tg+3)]
def first_use(ei): return min(n for n, (a_, _) in enumerate(seq) if a_ == ei)
def a2read(n, d):
    ei, t = seq[n]
    img = ei if ei < 17 else 0
    b = AB + 4*(n % NB) + 2*d
    return f"  ds_read_b64_tr_b16 v[{b}:{b+1}], v{6 + img//6} offset:{(img % 6)*IMG + d*16*288 + t*32}"
slow = []
checks = {}
def add_check(n, vaddr, off, val, post=None):
    assert n not in checks
    checks[n] = (vaddr, off, val, post)
LA, LB, LC = OPT["la"], OPT["lb"], OPT["lc"]
assert LC >= 28
add_check(first_use(4) - D, 1, O_M + 4, 3)
add_check(first_use(8) - D, 1, O_M + 8, 3)
add_check(first_use(12) - D, 1, O_M + 12, 3)
add_check(first_use(16) - D, 1, O_M + 16, 3)
add_check(LA, 106, O_SIG, 1, lambda: stamp(7))
add_check(LB, 106, O_SIG, 2)
add_check(LC, 106, O_SIG, 3)
chk_reg = {n: 2 + (i % 3) for i, n in enumerate(sorted(checks))}
events = {LA: (1, 0), LA+1: (2, 0), LA+2: (3, 0), LB: (1, 1), LB+2: (2, 1), LB+4: (3, 1), LC: (1, 2), LC+2: (2, 2), LC+4: (3, 2)}
if OPT["ea"] >= 0:
    for k_ in (LA, LA+1, LA+2): del events[k_]
lds_spin(1, O_M, 3, 2)
stamp(6)
if STAMP: e("  s_waitcnt lgkmcnt(0)")
q = []
for n in range(D):
    e(a2read(n, 0)); e(a2read(n, 1)); q += [n, n]
N = len(seq); PRE = 4
assert min(checks) >= PRE
pend_epi = []
for n in range(N):
    ei, t = seq[n]
    if n == OPT["f2"]:
        wait_stores("st1"); flag(2)
    if n == OPT["f3"]:
        e("  s_waitcnt vmcnt(0)"); vq = []; flag(3)
    if n == 9:
        lds_inc(1, O_CONS, 10); q.append("c")
    if n + PRE in checks:
        va, off, val, post = checks[n + PRE]
        e(f"  ds_read_b32 v{chk_reg[n+PRE]}, v{va} offset:{off}"); q.append(("chk", n + PRE))
    if n in checks:
        va, off, val, post = checks[n]
        need = [i for i, it in enumerate(q) if it == ("chk", n)]
        if need:
            e(f"  s_waitcnt lgkmcnt({len(q)-1-max(need)})")
            q = q[max(need)+1:]
        ls, lb = lab("slow"), lab("back")
        if n == LA and OPT["ea"] >= 0:
            e("  s_cmp_ge_u32 s42, 1")
            e("  s_cbranch_scc1 L_skipA")
        e(f"  v_readfirstlane_b32 s60, v{chk_reg[n]}")
        e(f"  s_cmp_ge_u32 s60, {val}")
        e(f"  s_cbranch_scc0 {ls}")
        e(f"{lb}:")
        slow.append((ls, lb, va, off, val, chk_reg[n]))
        if n == LA and OPT["ea"] >= 0:
            for p in range(1, 4):
                for x in gloads(p, 0): e(x); vq.append((p, 0))
                issued.add((p, 0))
            e("L_skipA:")
        if post: post()
    for pg in groups_needed(ei):
        if pg not in checked:
            gcheck(*pg)
            if pg == (1, 0): stamp(8)
            if pg == (1, 2): stamp(9)
    if n in events:
        for x in gloads(*events[n]): e(x); vq.append(events[n])
        issued.add(events[n])
    need = [i for i, it in enumerate(q) if it == n]
    if need:
        e(f"  s_waitcnt lgkmcnt({len(q)-1-max(need)})")
        q = q[max(need)+1:]
    b = AB + 4*(n % NB)
    for mh in range(2):
        a = ACC2 + t*8 + mh*4; hb = hreg(ei, mh)
        c = "0" if ei == 0 else f"v[{a}:{a+3}]"
        e(f"  {M16} v[{a}:{a+3}], v[{b}:{b+3}], v[{hb}:{hb+3}], {c}")
        if n + D < N:
            e(a2read(n + D, mh)); q.append(n + D)
    if ei == 17 and t % 3 == 2: pend_epi.append((n + 3, t // 3))
    while pend_epi and (pend_epi[0][0] <= n or n == N - 1):
        _, tg = pend_epi.pop(0)
        if n == N - 1 and tg == 2:
            stamp(10)
            e("  s_nop 7")
        PG = [BUF[(1, 0)][0], BUF[(1, 0)][1], BUF[(2, 0)][0], BUF[(2, 0)][1]]
        for mh in range(2):
            g0, g1 = PG[2*mh], PG[2*mh+1]
            src = [ACC2 + (3*tg + k)*8 + mh*4 + 2*h for k in range(3) for h in range(2)]
            dst = [g0, g0+1, g0+2, g1, g1+1, g1+2]
            for s_, d_ in zip(src, dst): e(f"  v_cvt_pk_bf16_f32 v{d_}, v{s_}, v{s_+1}")
            if tg == 0:
                e(f"  v_mov_b32 v{g0+3}, v11"); e(f"  v_mov_b32 v{g1+3}, v11")
            e(f"  buffer_store_dwordx4 v[{g0}:{g0+3}], v5, s[44:47], s{KS[tg*4+mh*2]} offen sc1")
            e(f"  buffer_store_dwordx4 v[{g1}:{g1+3}], v5, s[44:47], s{KS[tg*4+mh*2+1]} offen sc1")
            vq += ["p", "p"]
        flag(4 + tg)
        lds_inc(1, O_TG + 4*tg, 10); q.append("c")
stamp(11)
if STAMP:
    e("  s_waitcnt vmcnt(0)")
    stamp(12)
e("L_fin:")
stamp_flush()
e("L_end:")
e("  s_endpgm")
for ls, lb, va, off, val, vt in slow:
    e(f"{ls}:")
    lds_spin(va, off, val, vt)
    e(f"  s_branch {lb}")
e("L_codeend:")
e('.section .rodata,"a"\n.p2align 6')
e(f".amdhsa_kernel {NAME}")
e("  .amdhsa_next_free_vgpr 256\n  .amdhsa_next_free_sgpr 102\n  .amdhsa_accum_offset 256")
e("  .amdhsa_group_segment_fixed_size 0\n  .amdhsa_kernarg_size 56\n  .amdhsa_user_sgpr_count 2\n  .amdhsa_user_sgpr_kernarg_segment_ptr 1\n  .amdhsa_system_sgpr_workgroup_id_x 1\n.end_amdhsa_kernel")
print("\n".join(out))
```

```python
import sys, struct
OPT = dict(stamp=0, rot=0, grp=3, nt=0, prio=0, spin=400000, slp=1, cpf=1, spf=0, tm=10,
           f1=6, f2=0, f3=14, la=14, lb=40, lc=70, warmf=1, kst=0x100000, xstop=0, spoll=1, vpf=8, wdw=6, wdpre=4, ue=8, wsl=0, ea=8, repc=-1, repl=0, badx=0, rmode=0, rsl=0, early=0, cyc=0, wev=1, rlate=1, pipe=0, rst=4, lsl=0, psl=3)
for a in sys.argv[1:]:
    k, v = a.split("="); assert k in OPT, k; OPT[k] = int(v, 0)
STAMP = OPT["stamp"]
out = []
def e(s=""): out.append(s)
def f2u(x): return "0x%08x" % struct.unpack("<I", struct.pack("<f", x))[0]

X_BYTES = 1024*576*2
W_BYTES = 576*4608*2
P_OFF = 0x1000000
FH_OFF = 0x2000000
WS_USE = 0x2040000
ST_OFF = 0x4000000
IMG = 9216
WSLOT = 2*IMG
XBASE = 6*WSLOT
XSLOT = 16384
SY = XBASE + 3*XSLOT
O_G1, O_CONS, O_TG, O_SIG, O_M = 4, 8, 16, 32, 64
LDS_TOTAL = SY + 128
NTS = " nt" if OPT["nt"] & 1 else ""
NTX = " nt" if OPT["nt"] & 2 else ""
NTD = " nt" if OPT["nt"] & 4 else ""
NTP = " nt" if OPT["nt"] & 8 else ""
M16 = "v_mfma_f32_16x16x32_bf16"
NAME = "standalone__geglu_ffn__sampling_kernel"
KST = OPT["kst"]
ORDER = [(0, 0), (0, 1), (0, 2), (0, 3), (1, 0), (2, 0), (3, 0), (1, 1), (1, 2), (2, 1), (2, 2), (3, 1), (3, 2),
         (1, 3), (2, 3), (3, 3), ("S", 0), ("S", 1)]
uid = [0]
def lab(p):
    uid[0] += 1
    return f"L_{p}{uid[0]}"
def srd(d, lo, hi, nbytes):
    e(f"  s_mov_b32 s{d}, {lo}"); e(f"  s_mov_b32 s{d+1}, {hi}")
    e(f"  s_mov_b32 s{d+2}, {nbytes}"); e(f"  s_mov_b32 s{d+3}, 0x00020000")
NST, SB = 14, 64
LMODE = [False]
def stamp(i, force=False):
    if STAMP == 3 and LMODE[0] and not force: return
    if STAMP: e(f"  s_memrealtime s[{SB+2*i}:{SB+1+2*i}]")
def stamp_init():
    if STAMP:
        for i in range(1, NST): e(f"  s_mov_b64 s[{SB+2*i}:{SB+1+2*i}], 0")
def stamp_flush():
    if not STAMP: return
    if OPT["repc"] == 99:
        e(f"  v_mov_b32 v2, {SY}")
        e("  ds_read_b32 v2, v2")
        e("  s_waitcnt lgkmcnt(0)")
        e("  v_readfirstlane_b32 s92, v2")
        e("L_rep:")
        e("  s_memrealtime s[94:95]")
        e("  s_waitcnt lgkmcnt(0)")
        e("  s_lshl_b32 s94, s94, 3")
        e("  s_sub_u32 s94, s94, s92")
        e("  s_cmp_lt_u32 s94, 32000")
        e("  s_cbranch_scc1 L_rep")
        return
    if OPT["repc"] >= 0:
        e("  s_waitcnt lgkmcnt(0)")
        e("  s_cmp_lt_u32 s18, 4")
        e(f"  s_cselect_b32 s92, s{SB+2*OPT['repc']}, s{SB+2*OPT['repl']}")
        e("  s_cmp_eq_u32 s92, 0")
        e(f"  s_cselect_b32 s92, s{SB}, s92")
        e("L_rep:")
        e("  s_memrealtime s[94:95]")
        e("  s_waitcnt lgkmcnt(0)")
        e("  s_sub_u32 s94, s94, s92")
        e("  s_cmp_lt_u32 s94, 4000")
        e("  s_cbranch_scc1 L_rep")
        return
    e("  s_waitcnt lgkmcnt(0)")
    e(f"  s_add_u32 s92, s16, {ST_OFF}"); e("  s_addc_u32 s93, s17, 0")
    e("  s_mov_b32 s94, 0x100000"); e("  s_mov_b32 s95, 0x00020000")
    e("  s_lshl_b32 s96, s2, 3"); e("  s_add_u32 s96, s96, s18"); e("  s_lshl_b32 s96, s96, 7")
    e("  v_mov_b32 v250, 0")
    for i in range(NST):
        e(f"  v_mov_b32 v252, s{SB+2*i}"); e(f"  v_mov_b32 v253, s{SB+1+2*i}")
        e(f"  buffer_store_dwordx2 v[252:253], v250, s[92:95], s96 offen offset:{i*8}")
        e("  s_nop 1")
def lds_spin(vaddr, off, val, vt):
    l = lab("sp"); d = lab("spd")
    e(f"  s_mov_b32 s61, {OPT['spin']*8}")
    e(f"{l}:")
    e(f"  ds_read_b32 v{vt}, v{vaddr} offset:{off}")
    e("  s_sub_u32 s61, s61, 1")
    e("  s_waitcnt lgkmcnt(0)")
    e(f"  v_readfirstlane_b32 s60, v{vt}")
    e("  s_cmp_eq_u32 s61, 0")
    e(f"  s_cbranch_scc1 {d}")
    e(f"  s_cmp_ge_u32 s60, {val}")
    if LMODE[0] and OPT["lsl"]:
        e(f"  s_cbranch_scc1 {d}")
        e(f"  s_sleep {OPT['lsl']}")
        e(f"  s_branch {l}")
    else:
        e(f"  s_cbranch_scc0 {l}")
    e(f"{d}:")
def lds_inc(vaddr, off, vone):
    e("  s_mov_b64 exec, 1")
    e(f"  ds_add_u32 v{vaddr}, v{vone} offset:{off}")
    e("  s_mov_b64 exec, -1")

e(f"; @launch grid=(256,1,1) block=(512,1,1) lds={LDS_TOTAL}")
e('.amdgcn_target "amdgcn-amd-amdhsa--gfx950"')
e(".text")
e(f".globl {NAME}\n.p2align 8\n.type {NAME},@function\n{NAME}:")
e("  s_cmp_ge_u32 s2, 256")
e("  s_cbranch_scc1 L_end")
if OPT["badx"]:
    e("  s_lshr_b32 s3, s2, 5"); e("  s_lshl_b32 s2, s2, 3"); e("  s_and_b32 s2, s2, 255"); e("  s_or_b32 s2, s2, s3")
e("  s_load_dwordx8 s[4:11], s[0:1], 0")
e("  s_load_dwordx4 s[12:15], s[0:1], 32")
e("  s_load_dwordx2 s[16:17], s[0:1], 48")
stamp(0)
e("  v_lshrrev_b32 v1, 6, v0")
e("  v_and_b32 v0, 63, v0")
e("  v_readfirstlane_b32 s18, v1")
stamp_init()
e("  s_and_b32 s19, s2, 7")
e("  s_lshr_b32 s20, s2, 3")
e("  s_lshr_b32 s21, s20, 2")
e("  s_and_b32 s20, s20, 3")
e("  s_add_u32 s23, s20, s21")
e("  s_and_b32 s22, s23, 3")
e("  s_cmp_lt_u32 s18, 4")
e("  s_cbranch_scc1 L_compute")

LMODE[0] = True
if OPT["grp"]:
    G = OPT["grp"]
    tab = 0
    for v in range(11): tab |= ((v % G)*9//G) << (4*v)
    e(f"  s_mov_b32 s24, {tab & 0xffffffff}"); e(f"  s_mov_b32 s25, {tab >> 32}")
    e("  s_lshl_b32 s23, s23, 2")
    e("  s_lshr_b64 s[24:25], s[24:25], s23")
    e("  s_and_b32 s23, s24, 15")
elif OPT["rot"]:
    e("  s_add_u32 s23, s23, s20"); e("  s_add_u32 s23, s23, s19")
    for _ in range(2):
        e("  s_cmp_ge_u32 s23, 9"); e("  s_cselect_b32 s24, 9, 0"); e("  s_sub_u32 s23, s23, s24")
else:
    e("  s_mov_b32 s23, 0")
e("  s_sub_u32 s34, s18, 4")
e("  s_lshl_b32 s38, s21, 7"); e("  s_lshl_b32 s39, s34, 5"); e("  s_add_u32 s38, s38, s39")
e("  v_lshrrev_b32 v30, 3, v0")
e("  v_add_u32 v30, s38, v30")
e("  v_mul_u32_u24 v30, 1152, v30")
e("  v_lshrrev_b32 v31, 4, v0")
e("  v_xor_b32 v31, v31, v0")
e("  v_and_b32 v31, 7, v31")
e("  v_lshl_add_u32 v5, v31, 4, v30")
e("  v_xor_b32 v31, 4, v31")
e("  v_lshl_add_u32 v6, v31, 4, v30")
e(f"  v_add_u32 v6, {8*1152-1024}, v6")
e(f"  v_add_u32 v7, {16*1152-2048}, v5")
e(f"  v_add_u32 v8, {16*1152-2048}, v6")
e("  s_mul_i32 s35, s19, 1152")
e("  s_mul_i32 s38, s20, 288")
e("  s_add_u32 s38, s38, s35")
e("  s_and_b32 s39, s20, 1")
e("  s_lshl_b32 s33, s39, 8")
e("  s_lshl_b32 s32, s39, 5")
e("  s_sub_u32 s39, s38, s33")
e("  s_add_u32 s38, s38, s32")
e("  v_mov_b32 v34, s38"); e("  v_mov_b32 v35, s39")
e("  s_lshl_b32 s36, s34, 6")
for n in range(3):
    r, c = 12 + 2*n, 13 + 2*n
    e(["  v_add_u32 v30, s36, v0", "  v_add_u32 v30, 256, v30", "  v_add_u32 v30, 512, v0"][n])
    e("  v_mul_u32_u24 v31, 3641, v30")
    e(f"  v_lshrrev_b32 v{r}, 16, v31")
    e(f"  v_mul_u32_u24 v31, 18, v{r}")
    e(f"  v_sub_u32 v{c}, v30, v31")
    e(f"  v_and_b32 v33, 0x13, v{r}")
    e(f"  v_bfe_u32 v36, v{r}, 2, 1")
    e("  v_lshl_or_b32 v33, v36, 3, v33")
    e(f"  v_bfe_u32 v36, v{r}, 3, 1")
    e(f"  v_cmp_lt_u32 vcc, 15, v{c}")
    e("  v_lshl_or_b32 v33, v36, 2, v33")
    e("  v_mul_u32_u24 v33, 9216, v33")
    e("  v_cndmask_b32 v36, v34, v35, vcc")
    e(f"  v_lshl_add_u32 v33, v{c}, 4, v33")
    e(f"  v_add_u32 v{2+n}, v36, v33")
e(f"  s_mul_i32 s48, s23, {64*9216}")
e("  s_lshl_b32 s49, s23, 7")
e("  s_lshl_b32 s32, s34, 10")
e("  s_and_b32 s33, s34, 1")
e(f"  s_mul_i32 s33, s33, {IMG}")
e("  s_add_u32 s33, s33, 8192")
e("  s_lshr_b32 s35, s34, 1")
e("  s_lshl_b32 s36, s34, 12")
e(f"  s_add_u32 s36, s36, {XBASE}")
e("  s_mov_b32 s50, 0")
e("  s_mov_b32 s51, s36")
e(f"  s_add_u32 s37, s36, {3*XSLOT}")
e("  s_bitcmp1_b32 s34, 0")
e("  s_waitcnt lgkmcnt(0)")
e("  s_cselect_b32 s56, s8, s6"); e("  s_cselect_b32 s57, s9, s7")
e(f"  s_mov_b32 s58, {W_BYTES}"); e("  s_mov_b32 s59, 0x00020000")
srd(24, "s4", "s5", X_BYTES)
srd(40, "s6", "s7", W_BYTES)
srd(44, "s8", "s9", W_BYTES)
def g_issue(par):
    if par == 0:
        e("  s_mov_b32 m0, s51")
        e(f"  s_add_u32 s51, s51, {XSLOT}")
        for q in range(4): e(f"  buffer_load_dwordx4 v{5+q}, s[24:27], s49 offen offset:{q*1024}{NTX} lds")
        e("  s_cmp_eq_u32 s51, s37"); e("  s_cselect_b32 s51, s36, s51")
        e("  s_add_u32 s49, s49, 128"); e("  s_cmp_eq_u32 s49, 1152"); e("  s_cselect_b32 s49, 0, s49")
    e("  s_add_u32 s52, s50, s32")
    for mat in range(2):
        for n in range(2):
            e(f"  s_add_u32 m0, s52, {mat*IMG + n*4096}")
            e("  s_nop 0")
            e(f"  buffer_load_dwordx4 v{2+n}, s[{40+4*mat}:{43+4*mat}], s48 offen{NTS} lds")
    l = lab("p8")
    e(f"  s_cmp_eq_u32 s35, {par}")
    e(f"  s_cbranch_scc0 {l}")
    e("  s_add_u32 m0, s50, s33")
    e("  s_nop 0")
    e(f"  buffer_load_dwordx4 v4, s[56:59], s48 offen{NTS} lds")
    e(f"{l}:")
    e(f"  s_add_u32 s48, s48, {32*9216}"); e(f"  s_cmp_eq_u32 s48, {576*9216}"); e("  s_cselect_b32 s48, 0, s48")
    e(f"  s_add_u32 s50, s50, {WSLOT}"); e(f"  s_cmp_eq_u32 s50, {6*WSLOT}"); e("  s_cselect_b32 s50, 0, s50")
stamp(1)
g_issue(0)
if not OPT["early"]: g_issue(1)
stamp(11) if STAMP == 1 else None
e("  s_mul_i32 s53, s22, 288")
e("  s_lshl_b32 s62, s34, 6")
for n in range(3):
    r = 12 + 2*n
    e("  v_add_u32 v30, s62, v0" if n == 0 else "  v_add_u32 v30, 192, v30")
    e("  v_mul_u32_u24 v31, 3641, v30")
    e(f"  v_lshrrev_b32 v{r}, 16, v31")
    e(f"  v_mul_u32_u24 v31, 18, v{r}")
    e("  v_sub_u32 v32, v30, v31")
    e(f"  v_mul_u32_u24 v31, 1152, v{r}")
    e("  v_lshl_add_u32 v31, v32, 4, v31")
    e(f"  v_add_u32 v{9+n}, s53, v31")
e(f"  v_mov_b32 v20, {SY}"); e("  v_mov_b32 v21, 1"); e("  v_mov_b32 v22, 0")
e("  s_lshl_b32 s53, s34, 2")
e("  v_add_u32 v26, s53, v20")
srd(28, "s14", "s15", 256)
e("  s_or_b32 s53, s2, s34")
e("  s_cmp_eq_u32 s53, 0")
e("  s_cbranch_scc0 L_nononce")
e("  s_memrealtime s[60:61]")
e("  s_waitcnt lgkmcnt(0)")
e("  s_lshl_b32 s60, s60, 3")
e("  s_max_u32 s60, s60, 8")
e("  v_mov_b32 v23, s60")
e("  s_waitcnt vmcnt(0)")
e("  buffer_store_dword v23, v22, s[28:31], 0 offen sc1")
e("L_nononce:")
e("  s_lshr_b32 s62, s2, 3"); e("  s_lshl_b32 s62, s62, 2"); e("  s_add_u32 s62, s62, s34")
if OPT["cpf"]:
    e("  s_getpc_b64 s[60:61]")
    e("L_pc:")
    e(f"  s_sub_u32 s60, s60, L_pc-{NAME}")
    e("  s_subb_u32 s61, s61, 0")
    e("  s_lshl_b32 s53, s62, 6")
    e("  s_load_dword s63, s[60:61], s53")
    e("  s_load_dword s63, s[60:61], s53 offset:8192")
    e("  s_add_u32 s53, s53, 16384")
    e(f"  s_min_u32 s53, s53, L_codeend-{NAME}-4")
    e("  s_load_dword s63, s[60:61], s53")
if OPT["spf"]:
    e("  s_mul_i32 s62, s62, 5184")
    e(f"  s_mul_i32 s53, s19, {576*1152}")
    e("  s_add_u32 s62, s62, s53")
if OPT["vpf"] >= 0:
    e("  s_mul_i32 s55, s62, 5184")
    e(f"  s_mul_i32 s53, s19, {576*1152}")
    e("  s_add_u32 s55, s55, s53")
    e("  v_min_u32 v18, 41, v0")
    e("  v_lshlrev_b32 v18, 7, v18")
    e("  v_add_u32 v18, s55, v18")
    srd(96, "s10", "s11", W_BYTES)
def spf():
    if OPT["spf"]:
        for k in range(5): e(f"  s_load_dword s63, s[10:11], s62 offset:{k*64}")
        e("  s_add_u32 s62, s62, 320")
def lbody(it):
    e("  s_waitcnt vmcnt(4)")
    e("  s_barrier")
    if STAMP == 3: stamp(1 + it, True)
    if 0 <= OPT["vpf"] < 8:
        if STAMP == 3:
            if it == OPT["vpf"]: e(f"  buffer_load_dword v17, v18, s[96:99], 0 offen{NTP}")
        else:
            e(f"  s_cmp_eq_u32 s53, {8 - OPT['vpf']}")
            e("  s_cbranch_scc0 L_novpf")
            e(f"  buffer_load_dword v17, v18, s[96:99], 0 offen{NTP}")
            e("L_novpf:")
    g_issue(0); spf()
    e("  s_waitcnt vmcnt(8)")
    e("  s_barrier")
    g_issue(1); spf()
NIT = 8
if OPT["early"]:
    NIT = 7
    e("  s_waitcnt vmcnt(0)")
    e("  s_barrier")
    if STAMP == 3: stamp(1, True)
    g_issue(1); g_issue(0)
    e("  s_waitcnt vmcnt(8)")
    e("  s_barrier")
    g_issue(1)
if STAMP == 3:
    for it in range(8 - NIT, 8): lbody(it)
else:
    e(f"  s_mov_b32 s53, {NIT}")
    e("L_lloop:")
    lbody(0)
    e("  s_sub_u32 s53, s53, 1"); e("  s_cmp_lg_u32 s53, 0"); e("  s_cbranch_scc1 L_lloop")
if OPT["spf"]: e("  s_load_dword s63, s[10:11], s62")
srd(40, "s10", "s11", W_BYTES)
e(f"  s_mul_i32 s49, s19, {576*1152}")
def piece_row(dst, p):
    e(f"  s_add_u32 s52, s20, {p}"); e("  s_and_b32 s52, s52, 3")
    e(f"  s_lshr_b32 {dst}, s52, 1"); e(f"  s_mul_i32 {dst}, {dst}, 288")
    e("  s_and_b32 s52, s52, 1"); e("  s_lshl_b32 s52, s52, 4")
    e(f"  s_add_u32 {dst}, {dst}, s52"); e(f"  s_add_u32 {dst}, {dst}, 128")
def d_issue(sig):
    so = ["s48", "s54"]; vb = [9, 9]
    if sig < 8:
        for im in range(2):
            p, i = ORDER[2*sig + im]
            e(f"  s_add_u32 s52, s20, {p}"); e("  s_and_b32 s52, s52, 3"); e("  s_mul_i32 s52, s52, 9")
            e(f"  s_add_u32 s52, s52, {1 + 2*i}"); e("  s_lshr_b32 s52, s52, 1")
            e(f"  s_mul_i32 {so[im]}, s52, {32*1152}"); e(f"  s_add_u32 {so[im]}, {so[im]}, s49")
        la = [2*sig*IMG, (2*sig+1)*IMG]
    else:
        for im in range(2):
            piece_row("s50", 2*im); piece_row("s51", 2*im+1)
            e("  s_sub_u32 s51, s51, 16")
            e("  s_mul_i32 s50, s50, 1152"); e("  s_mul_i32 s51, s51, 1152")
            e("  v_mov_b32 v33, s50"); e("  v_mov_b32 v34, s51")
            for n in range(3):
                e(f"  v_cmp_lt_u32 vcc, 15, v{12+2*n}")
                e("  s_nop 1")
                e("  v_cndmask_b32 v35, v33, v34, vcc")
                e(f"  v_add_u32 v{27+3*im+n}, v35, v{9+n}")
            e(f"  s_mov_b32 {so[im]}, s49")
        vb = [27, 30]
        la = [16*IMG, 0]
    for im in range(2):
        for n in range(3):
            e(f"  s_add_u32 m0, s32, {la[im] + n*3072}")
            e("  s_nop 0")
            e(f"  buffer_load_dwordx4 v{vb[im]+n}, s[40:43], {so[im]} offen{NTD} lds")
VP = 1 if OPT["vpf"] == 8 else 0
if VP: e(f"  buffer_load_dword v17, v18, s[96:99], 0 offen{NTP}")
e(f"  s_waitcnt vmcnt({4+VP})")
e("  s_barrier")
stamp(2)
if STAMP == 3: stamp(9, True)
e("  s_cmp_eq_u32 s34, 3")
e("  s_cbranch_scc1 L_poller")
d_issue(0)
e(f"  s_waitcnt vmcnt({6+VP})")
e("  s_barrier")
d_issue(1)
e("  s_barrier")
e("  ds_read_b32 v23, v20")
srd(28, "s16", "s17", WS_USE)
WP = OPT["wdpre"]; LAG = OPT["wdw"] // 6
assert 2 <= WP <= 5
MS = {1: O_M, 3: O_M + 4, 5: O_M + 8, 7: O_M + 12}
done = set()
def landed(k):
    for m in sorted(MS):
        if m <= k and m not in done:
            lds_inc(20, MS[m], 21); done.add(m)
            if m == 1: stamp(3)
for sg in range(2, 8):
    if sg == WP:
        e("  s_waitcnt vmcnt(0)"); landed(sg - 1)
        lds_spin(20, O_G1, 4, 24)
    d_issue(sg)
    e(f"  s_waitcnt vmcnt({6*LAG})")
    landed(sg - LAG)
    if OPT["wsl"]: e(f"  s_sleep {OPT['wsl']}")
e("  s_waitcnt vmcnt(0)")
landed(7)
stamp(4)
if OPT["xstop"]: e("  s_branch L_fin")
lds_spin(20, O_CONS, 4, 24)
d_issue(8)
e("  s_waitcnt vmcnt(0)")
lds_inc(20, O_M + 16, 21)
stamp(6)
srd(24, "s12", "s13", X_BYTES)
e("  s_lshl_b32 s44, s34, 2"); e("  s_and_b32 s45, s19, 1"); e("  s_lshl_b32 s45, s45, 1"); e("  s_add_u32 s44, s44, s45")
e(f"  s_mul_i32 s44, s44, {KST}")
e("  s_lshr_b32 s45, s19, 1"); e("  s_lshl_b32 s45, s45, 8"); e("  s_andn2_b32 s46, s2, 7"); e("  s_add_u32 s45, s45, s46")
e("  s_lshl_b32 s45, s45, 10"); e("  s_add_u32 s44, s44, s45")
e(f"  s_add_u32 s44, s44, {P_OFF}")
e("  s_add_u32 s45, s44, 4096")
e(f"  s_add_u32 s46, s44, {KST}")
e("  s_add_u32 s47, s46, 4096")
e("  s_lshl_b32 s48, s21, 7"); e("  s_lshl_b32 s49, s19, 4"); e("  s_add_u32 s48, s48, s49"); e("  s_mul_i32 s48, s48, 1152")
e("  s_mul_i32 s49, s22, 288"); e("  s_add_u32 s48, s48, s49"); e("  s_mul_i32 s49, s34, 96"); e("  s_add_u32 s48, s48, s49")
e("  v_and_b32 v1, 15, v0"); e("  v_mul_u32_u24 v1, 1152, v1"); e("  v_lshrrev_b32 v2, 4, v0"); e("  v_lshl_add_u32 v1, v2, 3, v1")
e("  v_lshlrev_b32 v5, 4, v0")
e("  s_mov_b32 s50, 0xffff0000")
e("  v_readfirstlane_b32 s3, v23")
e("  s_andn2_b32 s53, s2, 7"); e("  s_lshl_b32 s53, s53, 2"); e("  s_lshr_b32 s62, s19, 1"); e("  s_add_u32 s53, s53, s62")
e("  s_lshl_b32 s53, s53, 7"); e(f"  s_add_u32 s53, s53, {FH_OFF}")
e("  s_add_u32 s3, s3, s34"); e("  s_add_u32 s3, s3, 4")
e("  s_sub_u32 s62, 3, s34")
PR = [32, 33, 35, 36, 37, 38, 39, 51]
for k in range(8): e(f"  s_mov_b32 s{PR[k]}, 0")
lds_spin(26, O_TG, OPT["rst"], 24)
stamp(7)
e(f"  s_mov_b32 s63, {OPT['spin']}")
e("L_rprobe:")
e("  s_sub_u32 s63, s63, 1"); e("  s_cmp_eq_u32 s63, 0"); e("  s_cbranch_scc1 L_rdone")
for k in range(8): e(f"  s_load_dword s{PR[k]}, s[16:17], s53 offset:{k*512} glc")
if OPT["pipe"] & 1: e(f"  s_sleep {OPT['psl']}")
else: e("  s_waitcnt lgkmcnt(0)")
for k in range(8):
    e(f"  s_sub_u32 s{40 if k == 0 else 41}, s{PR[k]}, s3")
    if k: e("  s_max_u32 s40, s40, s41")
e("  s_cmp_gt_u32 s40, s62")
e("  s_cbranch_scc1 L_rprobe")
stamp(5)
if OPT["rlate"]:
    e("  s_cmp_eq_u32 s34, 2"); e("  s_cbranch_scc1 L_rpoll")
    lds_spin(20, O_TG + 8, 4, 24)
e("L_rpoll:")
stamp(10)
if STAMP: e(f"  s_add_u32 s{SB+2*13}, s{SB+2*13}, 1")
for k in range(16):
    e(f"  buffer_load_dwordx4 v[{32+4*k}:{35+4*k}], v5, s[28:31], s{44 + 2*(k & 1) + (k//8)} offen offset:{((k//2)%4)*1024} sc1")
for k in range(8):
    e(f"  s_waitcnt vmcnt({14-2*k})")
    a, b = 32 + 8*k, 36 + 8*k
    e(f"  v_xor_b32 v{a+3}, v23, v{a+3}"); e(f"  v_xor_b32 v{b+3}, v23, v{b+3}")
    e(f"  v_or_b32 v24, v{a+3}, v{b+3}" if k == 0 else f"  v_or3_b32 v24, v{a+3}, v{b+3}, v24")
    srcs = [a, a+1, a+2, b, b+1, b+2]
    base = 100 if k == 0 else 112
    for p in range(6):
        e(f"  v_lshlrev_b32 v{base+2*p}, 16, v{srcs[p]}"); e(f"  v_and_b32 v{base+1+2*p}, s50, v{srcs[p]}")
    if k:
        for p in range(6): e(f"  v_pk_add_f32 v[{100+2*p}:{101+2*p}], v[{100+2*p}:{101+2*p}], v[{112+2*p}:{113+2*p}]")
e("  v_cmp_ne_u32 vcc, 0, v24")
for p in range(6): e(f"  v_cvt_pk_bf16_f32 v{32+p}, v{100+2*p}, v{101+2*p}")
e("  s_cbranch_vccnz L_rprobe")
e("L_rdone:")
stamp(8)
for k in range(3): e(f"  buffer_store_dwordx2 v[{32+2*k}:{33+2*k}], v1, s[24:27], s48 offen offset:{k*32}")
if STAMP:
    e("  s_waitcnt vmcnt(0)")
    e(f"  s_sub_u32 s{SB+2*12}, {OPT['spin']}, s63")
stamp(9)
e("  s_branch L_fin")

e("L_poller:")
e("  buffer_load_dword v23, v22, s[28:31], 0 offen sc1")
e(f"  s_mov_b32 s60, {OPT['spin']}")
e(f"  s_waitcnt vmcnt({1+VP})")
e("  s_barrier")
e("L_npoll:")
e("  s_waitcnt vmcnt(0)")
e("  v_readfirstlane_b32 s3, v23")
e("  s_cmp_lg_u32 s3, 0")
e("  s_cbranch_scc1 L_nok")
e("  s_sub_u32 s60, s60, 1")
e("  s_cmp_eq_u32 s60, 0")
e("  s_cbranch_scc1 L_nok")
e("  buffer_load_dword v23, v22, s[28:31], 0 offen sc1")
e("  s_branch L_npoll")
e("L_nok:")
e("  ds_write_b32 v20, v23")
e("  s_waitcnt lgkmcnt(0)")
e("  s_barrier")
for p in range(1, 4):
    e(f"  s_add_u32 s52, s20, {p}"); e("  s_and_b32 s52, s52, 3"); e("  s_lshl_b32 s52, s52, 3")
    e("  s_lshl_b32 s53, s21, 5"); e("  s_add_u32 s53, s53, s19"); e("  s_add_u32 s53, s53, s52")
    e("  s_lshl_b32 s53, s53, 9"); e(f"  s_add_u32 s{24+p}, s53, {FH_OFF}")
if OPT["xstop"]: e("  s_branch L_fin")
lds_spin(20, 12, 1, 24)
stamp(6)
e(f"  s_mov_b32 s60, {OPT['spin']}")
for k in range(12): e(f"  s_mov_b32 s{36+k}, 0")
for k in range(4): e(f"  s_mov_b32 s{48+k}, 0")
e("L_hpoll:")
for mt in range(4):
    for p in range(3): e(f"  s_load_dword s{36+3*mt+p}, s[16:17], s{25+p} offset:{mt*128} glc")
if not OPT["pipe"] & 2: e("  s_waitcnt lgkmcnt(0)")
for mt in range(4):
    for p in range(3):
        d = "s32" if p == 0 else "s33"
        e(f"  s_sub_u32 {d}, s{36+3*mt+p}, s3"); e(f"  s_cmp_gt_u32 {d}, 7"); e(f"  s_cselect_b32 {d}, 0, {d}")
        if p: e("  s_min_u32 s32, s32, s33")
    e(f"  s_max_u32 s{48+mt}, s{48+mt}, s32")
    e(f"  v_mov_b32 v{28+mt}, s{48+mt}")
e(f"  ds_write_b128 v20, v[28:31] offset:{O_SIG}")
e("  s_min_u32 s35, s48, s49"); e("  s_min_u32 s32, s50, s51"); e("  s_min_u32 s35, s35, s32")
if STAMP:
    for st in (1, 2):
        e(f"  s_cmp_ge_u32 s35, {st}"); e(f"  s_cbranch_scc0 L_hs{st}")
        e(f"  s_cmp_eq_u32 s{SB+2*(2+st)}, 0"); e(f"  s_cbranch_scc0 L_hs{st}")
        stamp(2 + st); e("  s_waitcnt lgkmcnt(0)")
        e(f"L_hs{st}:")
    e(f"  s_add_u32 s{SB+2*13}, s{SB+2*13}, 1")
e("  s_sub_u32 s60, s60, 1"); e("  s_cmp_eq_u32 s60, 0"); e("  s_cbranch_scc1 L_hdone")
e("  s_cmp_ge_u32 s35, 3")
e("  s_cbranch_scc0 L_hpoll")
e("L_hdone:")
stamp(5)
e("  s_branch L_fin")

LMODE[0] = False
e("L_compute:")
if OPT["prio"]: e(f"  s_setprio {OPT['prio']}")
NB = 6; D = 5
AB = 16; XB = 40; OWN = 56; ACC = 112; ACC2 = 184
e(f"  v_mov_b32 v1, {SY}")
e("  v_and_b32 v10, 31, v0")
e("  v_lshl_add_u32 v11, v10, 2, v1")
e("  v_mov_b32 v105, 0")
e("  ds_write_b32 v11, v105")
e("  v_lshrrev_b32 v10, 5, v0"); e("  v_lshlrev_b32 v10, 4, v10"); e("  v_bfe_u32 v11, v0, 2, 3"); e("  v_add_u32 v10, v10, v11")
e("  v_mul_u32_u24 v10, 288, v10"); e("  v_and_b32 v11, 3, v0"); e("  v_lshl_add_u32 v2, v11, 3, v10")
e("  v_lshrrev_b32 v10, 2, v0"); e("  v_mul_u32_u24 v10, 288, v10"); e("  v_lshl_add_u32 v6, v11, 3, v10")
e(f"  v_add_u32 v7, {6*IMG}, v6"); e(f"  v_add_u32 v8, {12*IMG}, v6")
e("  s_lshl_b32 s40, s18, 12"); e(f"  s_add_u32 s40, s40, {XBASE}")
e("  v_and_b32 v10, 15, v0"); e("  v_lshrrev_b32 v11, 1, v10"); e("  v_lshrrev_b32 v13, 4, v0"); e("  v_xor_b32 v11, v11, v13")
e("  v_lshlrev_b32 v11, 4, v11"); e("  v_lshl_add_u32 v10, v10, 7, v11")
e("  v_add_u32 v3, s40, v10"); e("  v_xor_b32 v10, 64, v10"); e("  v_add_u32 v4, s40, v10")
e("  v_lshlrev_b32 v5, 4, v0")
e("  v_mov_b32 v10, 1")
for i in range(144): e(f"  v_mov_b32 v{ACC+i}, 0")
K1 = -2*0.7978845608028654*1.4426950408889634
K3 = K1*0.044715
e(f"  s_mov_b32 s54, {f2u(K3)}"); e(f"  s_mov_b32 s55, {f2u(K3)}")
e(f"  v_mov_b32 v14, {f2u(K1)}"); e(f"  v_mov_b32 v15, {f2u(K1)}")
KS = [24, 25, 26, 27, 32, 33, 34, 35, 36, 37, 38, 39]
HV = [5, 9, 12, 13]
for k in range(12): e(f"  s_mov_b32 s{KS[k]}, {k*KST}")
e("  s_lshl_b32 s40, s21, 5"); e("  s_add_u32 s40, s40, s19"); e("  s_lshl_b32 s41, s18, 8"); e("  s_add_u32 s40, s40, s41")
for p in (3, 2, 1, 0):
    e(f"  s_add_u32 s41, s20, {p}"); e("  s_and_b32 s41, s41, 3"); e("  s_lshl_b32 s41, s41, 3"); e("  s_add_u32 s41, s41, s40")
    e("  s_lshl_b32 s41, s41, 10")
    e(f"  v_add_u32 v{HV[p]}, s41, v5")
e("  s_lshl_b32 s43, s2, 2"); e("  s_add_u32 s43, s43, s18"); e("  s_lshl_b32 s43, s43, 7"); e(f"  s_add_u32 s43, s43, {FH_OFF}")
e("  s_lshl_b32 s40, s18, 2")
e("  v_add_u32 v106, s40, v1")
e("  s_waitcnt lgkmcnt(0)")
srd(28, "s16", "s17", WS_USE)
e(f"  s_add_u32 s44, s16, {P_OFF}"); e("  s_addc_u32 s45, s17, 0"); e(f"  s_mov_b32 s46, {P_OFF}"); e("  s_mov_b32 s47, 0x00020000")
if OPT["warmf"]:
    e("  s_mov_b64 exec, 1")
    e("  buffer_store_dword v105, v105, s[28:31], s43 offen sc1")
    e("  s_mov_b64 exec, -1")

def acc1(t, mat, mh):
    if t == 8: return ACC + 8*16 + mh*8 + mat*4
    return ACC + ((t//2)*2 + mh)*16 + (t & 1)*8 + mat*4
def a1read(j, d):
    kk, r = j // 18, j % 18
    t, mat = r // 2, r % 2
    b = AB + 4*(j % NB) + 2*d
    return f"  ds_read_b64_tr_b16 v[{b}:{b+1}], v2 offset:{kk*WSLOT + mat*IMG + d*8*288 + t*32}"
def x1read(kk, mh):
    b = XB + 8*kk + 4*mh
    return f"  ds_read_b128 v[{b}:{b+3}], v{3+kk} offset:{mh*2048}"
stamp(1)
e("  s_barrier")
stamp(2)
if STAMP: e("  s_waitcnt lgkmcnt(0)")
e(x1read(0, 0)); e(x1read(0, 1))
for j in range(D):
    e(a1read(j, 0)); e(a1read(j, 1))
e("  s_mov_b32 s48, 9")
e("  s_mov_b32 s51, 0")
e("L_loop:")
if OPT["cyc"]:
    e("  s_cmp_eq_u32 s48, 5"); e("  s_cbranch_scc0 L_nocyc")
    e("  s_memtime s[96:97]"); stamp(1)
    e("L_nocyc:")
e("  s_add_u32 s51, s51, 1"); e("  s_cmp_eq_u32 s51, 3")
e(f"  s_mov_b32 s52, {2*WSLOT}"); e(f"  s_cmov_b32 s52, {(-4*WSLOT) & 0xffffffff}")
e(f"  s_mov_b32 s53, {XSLOT}"); e(f"  s_cmov_b32 s53, {(-2*XSLOT) & 0xffffffff}")
e("  s_cselect_b32 s51, 0, s51")
q = [("x", 0), ("x", 0)] + [("a", j) for j in range(D) for _ in range(2)]
for j in range(36):
    kk, r = j // 18, j % 18
    t, mat = r // 2, r % 2
    if r == 18 - D:
        e("  s_barrier")
        if kk == 1:
            e("  v_add_u32 v2, s52, v2"); e("  v_add_u32 v3, s53, v3")
        e(x1read(1 - kk, 0)); e(x1read(1 - kk, 1)); q += [("x", kk+1)]*2
        if kk == 0: e("  v_add_u32 v4, s53, v4")
    WEV = OPT["wev"]
    want = [("a", j + x) for x in range(WEV)] if any(it == ("a", j) for it in q) else []
    need = [i for i, it in enumerate(q) if it in want or it == ("x", kk)]
    if need:
        e(f"  s_waitcnt lgkmcnt({len(q)-1-max(need)})")
        q = q[max(need)+1:]
    b = AB + 4*(j % NB)
    for mh in range(2):
        a = acc1(t, mat, mh); xb = XB + 8*kk + 4*mh
        e(f"  {M16} v[{a}:{a+3}], v[{b}:{b+3}], v[{xb}:{xb+3}], v[{a}:{a+3}]")
        e(a1read((j + D) % 36, mh)); q.append(("a", j + D))
e("  s_sub_u32 s48, s48, 1"); e("  s_cmp_lg_u32 s48, 0"); e("  s_cbranch_scc1 L_loop")
stamp(3)
if OPT["cyc"]:
    e("  s_memtime s[98:99]"); e("  s_waitcnt lgkmcnt(0)"); e(f"  s_sub_u32 s{SB+26}, s98, s96")
if OPT["ue"] < 0: lds_inc(1, O_G1, 10)
e("  ds_read_b32 v11, v1")

def blk(b): return [b, b+4, b+8]
BUF = {(0, 0): blk(OWN), (0, 1): blk(OWN+12), (0, 2): blk(OWN+24),
       (1, 0): blk(ACC), (2, 0): blk(ACC+12), (3, 0): blk(ACC+24),
       (1, 1): blk(ACC+36), (2, 1): blk(ACC+48), (3, 1): blk(ACC+60),
       (1, 2): blk(OWN), (2, 2): blk(OWN+12), (3, 2): blk(92)}
SH = {(0, 0): XB, (0, 1): XB+4, (1, 0): XB+8, (1, 1): XB+12}
vq = []
def gloads(p, g):
    return [f"  buffer_load_dwordx4 v[{r}:{r+3}], v{HV[p]}, s[28:31], s{KS[3*g+k]} offen sc1" for k, r in enumerate(BUF[(p, g)])]
def flag(stage):
    e(f"  v_add_u32 v104, {stage}, v11")
    e("  s_mov_b64 exec, 1")
    e("  buffer_store_dword v104, v105, s[28:31], s43 offen sc1")
    e("  s_mov_b64 exec, -1")
    vq.append("f")
def wait_stores(lbl):
    global vq
    assert all(isinstance(it, str) for it in vq)
    k = max(i for i, it in enumerate(vq) if it == lbl)
    e(f"  s_waitcnt vmcnt({len(vq)-1-k})")
    vq = vq[k+1:]
def gelu_unit(ab, dst, tmp):
    gs = [ab, ab+2, ab+8, ab+10]; us = [g + 4 for g in gs]
    for p in range(4): e(f"  v_pk_mul_f32 v[{tmp+2*p}:{tmp+2*p+1}], v[{gs[p]}:{gs[p]+1}], v[{gs[p]}:{gs[p]+1}]")
    for p in range(4): e(f"  v_pk_fma_f32 v[{tmp+2*p}:{tmp+2*p+1}], v[{tmp+2*p}:{tmp+2*p+1}], s[54:55], v[14:15]")
    for p in range(4): e(f"  v_pk_mul_f32 v[{tmp+2*p}:{tmp+2*p+1}], v[{tmp+2*p}:{tmp+2*p+1}], v[{gs[p]}:{gs[p]+1}]")
    for i in range(8): e(f"  v_exp_f32 v{tmp+i}, v{tmp+i}")
    for p in range(4): e(f"  v_pk_mul_f32 v[{gs[p]}:{gs[p]+1}], v[{gs[p]}:{gs[p]+1}], v[{us[p]}:{us[p]+1}]")
    for p in range(4): e(f"  v_pk_add_f32 v[{tmp+2*p}:{tmp+2*p+1}], v[{tmp+2*p}:{tmp+2*p+1}], 1.0 op_sel_hi:[1,0]")
    for i in range(8): e(f"  v_rcp_f32 v{tmp+i}, v{tmp+i}")
    e("  s_nop 0")
    for p in range(4): e(f"  v_pk_mul_f32 v[{gs[p]}:{gs[p]+1}], v[{gs[p]}:{gs[p]+1}], v[{tmp+2*p}:{tmp+2*p+1}]")
    for p in range(4): e(f"  v_cvt_pk_bf16_f32 v{dst+p}, v{gs[p]}, v{gs[p]+1}")
e("  s_waitcnt lgkmcnt(0)")
for u in range(9):
    g, k = u // 3, u % 3
    B = BUF[(0, g)]
    if u == OPT["ea"]: e(f"  ds_read_b32 v2, v106 offset:{O_SIG}")
    gelu_unit(ACC + 16*u, B[k], XB + 8*(u & 1))
    e(f"  buffer_store_dwordx4 v[{B[k]}:{B[k]+3}], v5, s[28:31], s{KS[u]} offen sc1"); vq.append(f"st{g}")
    if u == OPT["ue"]: lds_inc(1, O_G1, 10)
    if u == OPT["f1"] - 1: lds_inc(1, 12, 10)
    if u == OPT["f1"]:
        wait_stores("st0"); flag(1); stamp(4)
    if u == OPT["ea"]:
        e("  s_waitcnt lgkmcnt(0)")
        e("  v_readfirstlane_b32 s42, v2")
        e("  s_cmp_ge_u32 s42, 1")
        e("  s_cbranch_scc0 L_noearly")
        for p in range(1, 4):
            for x in gloads(p, 0): e(x)
        e("L_noearly:")
    if u == 8 and OPT["xstop"]:
        e("  s_waitcnt vmcnt(0)"); stamp(5); e("  s_branch L_fin")
stamp(5)
def hreg(ei, mh):
    p, i = ORDER[ei]
    if p == "S": return SH[(i, mh)]
    f = 2*i + mh
    return BUF[(p, f // 3)][f % 3]
def groups_needed(ei):
    p, i = ORDER[ei]
    if p == 0: return []
    if p == "S": return [(pp, 2) for pp in (2*i, 2*i+1) if pp]
    return sorted(set((p, (2*i+mh)//3) for mh in range(2)))
checked = set(); issued = set()
def piece_move(p):
    B = BUF[(p, 2)]
    for mh in range(2):
        for h in range(2): e(f"  v_mov_b32 v{SH[(p//2, mh)] + 2*(p & 1) + h}, v{B[2] + 2*mh + h}")
def gcheck(p, g):
    global vq
    assert (p, g) in issued, (p, g)
    idx = [i for i, it in enumerate(vq) if it == (p, g)]
    if idx:
        younger = [it for it in vq[max(idx)+1:] if not isinstance(it, str)]
        e(f"  s_waitcnt vmcnt({len(younger)})")
        vq = younger
    if g == 2:
        piece_move(p); e("  s_nop 1")
    checked.add((p, g))
piece_move(0)
TM = OPT["tm"]
seq = [(ei, t) for ei in range(TM) for t in range(9)] + [(ei, t) for tg in range(3) for ei in range(TM, 18) for t in range(3*tg, 3*tg+3)]
def first_use(ei): return min(n for n, (a_, _) in enumerate(seq) if a_ == ei)
def a2read(n, d):
    ei, t = seq[n]
    img = ei if ei < 17 else 0
    b = AB + 4*(n % NB) + 2*d
    return f"  ds_read_b64_tr_b16 v[{b}:{b+1}], v{6 + img//6} offset:{(img % 6)*IMG + d*16*288 + t*32}"
slow = []
checks = {}
def add_check(n, vaddr, off, val, post=None):
    assert n not in checks
    checks[n] = (vaddr, off, val, post)
LA, LB, LC = OPT["la"], OPT["lb"], OPT["lc"]
assert LC >= 28
add_check(first_use(4) - D, 1, O_M + 4, 3)
add_check(first_use(8) - D, 1, O_M + 8, 3)
add_check(first_use(12) - D, 1, O_M + 12, 3)
add_check(first_use(16) - D, 1, O_M + 16, 3)
add_check(LA, 106, O_SIG, 1, lambda: stamp(7))
add_check(LB, 106, O_SIG, 2)
add_check(LC, 106, O_SIG, 3)
chk_reg = {n: 2 + (i % 3) for i, n in enumerate(sorted(checks))}
events = {LA: (1, 0), LA+1: (2, 0), LA+2: (3, 0), LB: (1, 1), LB+2: (2, 1), LB+4: (3, 1), LC: (1, 2), LC+2: (2, 2), LC+4: (3, 2)}
if OPT["ea"] >= 0:
    for k_ in (LA, LA+1, LA+2): del events[k_]
lds_spin(1, O_M, 3, 2)
stamp(6)
if STAMP: e("  s_waitcnt lgkmcnt(0)")
q = []
for n in range(D):
    e(a2read(n, 0)); e(a2read(n, 1)); q += [n, n]
N = len(seq); PRE = 4
assert min(checks) >= PRE
pend_epi = []
for n in range(N):
    ei, t = seq[n]
    if n == OPT["f2"]:
        wait_stores("st1"); flag(2)
    if n == OPT["f3"]:
        e("  s_waitcnt vmcnt(0)"); vq = []; flag(3)
    if n == 9:
        lds_inc(1, O_CONS, 10); q.append("c")
    if n + PRE in checks:
        va, off, val, post = checks[n + PRE]
        e(f"  ds_read_b32 v{chk_reg[n+PRE]}, v{va} offset:{off}"); q.append(("chk", n + PRE))
    if n in checks:
        va, off, val, post = checks[n]
        need = [i for i, it in enumerate(q) if it == ("chk", n)]
        if need:
            e(f"  s_waitcnt lgkmcnt({len(q)-1-max(need)})")
            q = q[max(need)+1:]
        ls, lb = lab("slow"), lab("back")
        if n == LA and OPT["ea"] >= 0:
            e("  s_cmp_ge_u32 s42, 1")
            e("  s_cbranch_scc1 L_skipA")
        e(f"  v_readfirstlane_b32 s60, v{chk_reg[n]}")
        e(f"  s_cmp_ge_u32 s60, {val}")
        e(f"  s_cbranch_scc0 {ls}")
        e(f"{lb}:")
        slow.append((ls, lb, va, off, val, chk_reg[n]))
        if n == LA and OPT["ea"] >= 0:
            for p in range(1, 4):
                for x in gloads(p, 0): e(x); vq.append((p, 0))
                issued.add((p, 0))
            e("L_skipA:")
        if post: post()
    for pg in groups_needed(ei):
        if pg not in checked:
            gcheck(*pg)
            if pg == (1, 0): stamp(8)
            if pg == (1, 2): stamp(9)
    if n in events:
        for x in gloads(*events[n]): e(x); vq.append(events[n])
        issued.add(events[n])
    need = [i for i, it in enumerate(q) if it == n]
    if need:
        e(f"  s_waitcnt lgkmcnt({len(q)-1-max(need)})")
        q = q[max(need)+1:]
    b = AB + 4*(n % NB)
    for mh in range(2):
        a = ACC2 + t*8 + mh*4; hb = hreg(ei, mh)
        c = "0" if ei == 0 else f"v[{a}:{a+3}]"
        e(f"  {M16} v[{a}:{a+3}], v[{b}:{b+3}], v[{hb}:{hb+3}], {c}")
        if n + D < N:
            e(a2read(n + D, mh)); q.append(n + D)
    if ei == 17 and t % 3 == 2: pend_epi.append((n + 3, t // 3))
    while pend_epi and (pend_epi[0][0] <= n or n == N - 1):
        _, tg = pend_epi.pop(0)
        if n == N - 1 and tg == 2:
            stamp(10)
            e("  s_nop 7")
        PG = [BUF[(1, 0)][0], BUF[(1, 0)][1], BUF[(2, 0)][0], BUF[(2, 0)][1]]
        for mh in range(2):
            g0, g1 = PG[2*mh], PG[2*mh+1]
            src = [ACC2 + (3*tg + k)*8 + mh*4 + 2*h for k in range(3) for h in range(2)]
            dst = [g0, g0+1, g0+2, g1, g1+1, g1+2]
            for s_, d_ in zip(src, dst): e(f"  v_cvt_pk_bf16_f32 v{d_}, v{s_}, v{s_+1}")
            if tg == 0:
                e(f"  v_mov_b32 v{g0+3}, v11"); e(f"  v_mov_b32 v{g1+3}, v11")
            e(f"  buffer_store_dwordx4 v[{g0}:{g0+3}], v5, s[44:47], s{KS[tg*4+mh*2]} offen sc1")
            e(f"  buffer_store_dwordx4 v[{g1}:{g1+3}], v5, s[44:47], s{KS[tg*4+mh*2+1]} offen sc1")
            vq += ["p", "p"]
        flag(4 + tg)
        lds_inc(1, O_TG + 4*tg, 10); q.append("c")
stamp(11)
if STAMP:
    e("  s_waitcnt vmcnt(0)")
    stamp(12)
e("L_fin:")
stamp_flush()
e("L_end:")
e("  s_endpgm")
for ls, lb, va, off, val, vt in slow:
    e(f"{ls}:")
    lds_spin(va, off, val, vt)
    e(f"  s_branch {lb}")
e("L_codeend:")
e('.section .rodata,"a"\n.p2align 6')
e(f".amdhsa_kernel {NAME}")
e("  .amdhsa_next_free_vgpr 256\n  .amdhsa_next_free_sgpr 102\n  .amdhsa_accum_offset 256")
e("  .amdhsa_group_segment_fixed_size 0\n  .amdhsa_kernarg_size 56\n  .amdhsa_user_sgpr_count 2\n  .amdhsa_user_sgpr_kernarg_segment_ptr 1\n  .amdhsa_system_sgpr_workgroup_id_x 1\n.end_amdhsa_kernel")
print("\n".join(out))
```

```python
import sys, struct
OPT = dict(stamp=0, rot=0, grp=3, nt=0, prio=0, spin=400000, slp=1, cpf=1, spf=0, tm=10,
           f1=6, f2=0, f3=14, la=14, lb=40, lc=70, warmf=1, kst=0x100000, xstop=0, spoll=1, vpf=8, wdw=6, wdpre=4, ue=8, wsl=0, ea=8, repc=-1, repl=0, badx=0, rmode=0, rsl=0, early=0, cyc=0, wev=1, rlate=1, pipe=0, rst=4, lsl=2, swap=0, gx=1, xp=0, own=1, a4=4, a5=0, un=-1, peel=1, fold=1, wv=0, pre=8, swp=1, cyc2=0, psl=3)
for a in sys.argv[1:]:
    k, v = a.split("="); assert k in OPT, k; OPT[k] = int(v, 0)
assert OPT["spf"] == 0 and OPT["vpf"] in (-1, 8)
STAMP = OPT["stamp"]
out = []
def e(s=""): out.append(s)
def f2u(x): return "0x%08x" % struct.unpack("<I", struct.pack("<f", x))[0]

X_BYTES = 1024*576*2
W_BYTES = 576*4608*2
P_OFF = 0x1000000
FH_OFF = 0x2000000
WS_USE = 0x2040000
ST_OFF = 0x4000000
IMG = 9216
WSLOT = 2*IMG
XBASE = 6*WSLOT
XSLOT = 16384
SY = XBASE + 3*XSLOT
O_G1, O_CONS, O_TG, O_SIG, O_M = 4, 8, 16, 32, 64
LDS_TOTAL = SY + 128
NTS = " nt" if OPT["nt"] & 1 else ""
NTX = " nt" if OPT["nt"] & 2 else ""
NTD = " nt" if OPT["nt"] & 4 else ""
NTP = " nt" if OPT["nt"] & 8 else ""
M16 = "v_mfma_f32_16x16x32_bf16"
NAME = "standalone__geglu_ffn__sampling_kernel"
KST = OPT["kst"]
ORDER = [(0, 0), (0, 1), (0, 2), (0, 3), (1, 0), (2, 0), (3, 0), (1, 1), (1, 2), (2, 1), (2, 2), (3, 1), (3, 2),
         (1, 3), (2, 3), (3, 3), ("S", 0), ("S", 1)]
uid = [0]
def lab(p):
    uid[0] += 1
    return f"L_{p}{uid[0]}"
def srd(d, lo, hi, nbytes):
    e(f"  s_mov_b32 s{d}, {lo}"); e(f"  s_mov_b32 s{d+1}, {hi}")
    e(f"  s_mov_b32 s{d+2}, {nbytes}"); e(f"  s_mov_b32 s{d+3}, 0x00020000")
NST, SB = 14, 64
LMODE = [False]
def stamp(i, force=False):
    if STAMP == 3 and LMODE[0] and not force: return
    if STAMP: e(f"  s_memrealtime s[{SB+2*i}:{SB+1+2*i}]")
def stamp_init():
    if STAMP:
        for i in range(1, NST): e(f"  s_mov_b64 s[{SB+2*i}:{SB+1+2*i}], 0")
def stamp_flush():
    if not STAMP: return
    if OPT["repc"] == 99:
        e(f"  v_mov_b32 v2, {SY}")
        e("  ds_read_b32 v2, v2")
        e("  s_waitcnt lgkmcnt(0)")
        e("  v_readfirstlane_b32 s92, v2")
        e("L_rep:")
        e("  s_memrealtime s[94:95]")
        e("  s_waitcnt lgkmcnt(0)")
        e("  s_lshl_b32 s94, s94, 3")
        e("  s_sub_u32 s94, s94, s92")
        e("  s_cmp_lt_u32 s94, 32000")
        e("  s_cbranch_scc1 L_rep")
        return
    if OPT["repc"] >= 0:
        e("  s_waitcnt lgkmcnt(0)")
        e("  s_cmp_lt_u32 s18, 4")
        e(f"  s_cselect_b32 s92, s{SB+2*OPT['repc']}, s{SB+2*OPT['repl']}")
        e("  s_cmp_eq_u32 s92, 0")
        e(f"  s_cselect_b32 s92, s{SB}, s92")
        e("L_rep:")
        e("  s_memrealtime s[94:95]")
        e("  s_waitcnt lgkmcnt(0)")
        e("  s_sub_u32 s94, s94, s92")
        e("  s_cmp_lt_u32 s94, 4000")
        e("  s_cbranch_scc1 L_rep")
        return
    e("  s_waitcnt lgkmcnt(0)")
    e(f"  s_add_u32 s92, s16, {ST_OFF}"); e("  s_addc_u32 s93, s17, 0")
    e("  s_mov_b32 s94, 0x100000"); e("  s_mov_b32 s95, 0x00020000")
    e("  s_lshl_b32 s96, s2, 3"); e("  s_add_u32 s96, s96, s18"); e("  s_lshl_b32 s96, s96, 7")
    e("  v_mov_b32 v250, 0")
    for i in range(NST):
        e(f"  v_mov_b32 v252, s{SB+2*i}"); e(f"  v_mov_b32 v253, s{SB+1+2*i}")
        e(f"  buffer_store_dwordx2 v[252:253], v250, s[92:95], s96 offen offset:{i*8}")
        e("  s_nop 1")
def lds_spin(vaddr, off, val, vt):
    l = lab("sp"); d = lab("spd")
    e(f"  s_mov_b32 s61, {OPT['spin']*8}")
    e(f"{l}:")
    e(f"  ds_read_b32 v{vt}, v{vaddr} offset:{off}")
    e("  s_sub_u32 s61, s61, 1")
    e("  s_waitcnt lgkmcnt(0)")
    e(f"  v_readfirstlane_b32 s60, v{vt}")
    e("  s_cmp_eq_u32 s61, 0")
    e(f"  s_cbranch_scc1 {d}")
    e(f"  s_cmp_ge_u32 s60, {val}")
    if LMODE[0] and OPT["lsl"]:
        e(f"  s_cbranch_scc1 {d}")
        e(f"  s_sleep {OPT['lsl']}")
        e(f"  s_branch {l}")
    else:
        e(f"  s_cbranch_scc0 {l}")
    e(f"{d}:")
def lds_inc(vaddr, off, vone):
    e("  s_mov_b64 exec, 1")
    e(f"  ds_add_u32 v{vaddr}, v{vone} offset:{off}")
    e("  s_mov_b64 exec, -1")

e(f"; @launch grid=(256,1,1) block=(512,1,1) lds={LDS_TOTAL}")
e('.amdgcn_target "amdgcn-amd-amdhsa--gfx950"')
e(".text")
e(f".globl {NAME}\n.p2align 8\n.type {NAME},@function\n{NAME}:")
e("  s_cmp_ge_u32 s2, 256")
e("  s_cbranch_scc1 L_end")
if OPT["badx"]:
    e("  s_lshr_b32 s3, s2, 5"); e("  s_lshl_b32 s2, s2, 3"); e("  s_and_b32 s2, s2, 255"); e("  s_or_b32 s2, s2, s3")
e("  s_load_dwordx8 s[4:11], s[0:1], 0")
e("  s_load_dwordx4 s[12:15], s[0:1], 32")
e("  s_load_dwordx2 s[16:17], s[0:1], 48")
stamp(0)
e("  v_lshrrev_b32 v1, 6, v0")
e("  v_and_b32 v0, 63, v0")
e("  v_readfirstlane_b32 s18, v1")
if OPT["swap"]: e("  s_xor_b32 s18, s18, 4")
stamp_init()
e("  s_and_b32 s19, s2, 7")
e("  s_lshr_b32 s20, s2, 3")
e("  s_lshr_b32 s21, s20, 2")
e("  s_and_b32 s20, s20, 3")
e("  s_add_u32 s23, s20, s21")
e("  s_and_b32 s22, s23, 3")
e("  s_cmp_lt_u32 s18, 4")
e("  s_cbranch_scc1 L_compute")

LMODE[0] = True
if OPT["grp"]:
    G = OPT["grp"]
    tab = 0
    for v in range(11): tab |= ((v % G)*9//G) << (4*v)
    e(f"  s_mov_b32 s24, {tab & 0xffffffff}"); e(f"  s_mov_b32 s25, {tab >> 32}")
    e("  s_lshl_b32 s23, s23, 2")
    e("  s_lshr_b64 s[24:25], s[24:25], s23")
    e("  s_and_b32 s23, s24, 15")
    if OPT["gx"]:
        e("  s_add_u32 s23, s23, s19")
        e("  s_cmp_ge_u32 s23, 9"); e("  s_cselect_b32 s24, 9, 0"); e("  s_sub_u32 s23, s23, s24")
elif OPT["rot"]:
    e("  s_add_u32 s23, s23, s20"); e("  s_add_u32 s23, s23, s19")
    for _ in range(2):
        e("  s_cmp_ge_u32 s23, 9"); e("  s_cselect_b32 s24, 9, 0"); e("  s_sub_u32 s23, s23, s24")
else:
    e("  s_mov_b32 s23, 0")
e("  s_sub_u32 s34, s18, 4")
e("  s_lshl_b32 s38, s21, 7"); e("  s_lshl_b32 s39, s34, 5"); e("  s_add_u32 s38, s38, s39")
e("  v_lshrrev_b32 v30, 3, v0")
e("  v_add_u32 v30, s38, v30")
e("  v_mul_u32_u24 v30, 1152, v30")
e("  v_lshrrev_b32 v31, 4, v0")
e("  v_xor_b32 v31, v31, v0")
e("  v_and_b32 v31, 7, v31")
e("  v_lshl_add_u32 v5, v31, 4, v30")
e("  v_xor_b32 v31, 4, v31")
e("  v_lshl_add_u32 v6, v31, 4, v30")
e(f"  v_add_u32 v6, {8*1152-1024}, v6")
e(f"  v_add_u32 v7, {16*1152-2048}, v5")
e(f"  v_add_u32 v8, {16*1152-2048}, v6")
e("  s_mul_i32 s35, s19, 1152")
e("  s_mul_i32 s38, s20, 288")
e("  s_add_u32 s38, s38, s35")
e("  s_and_b32 s39, s20, 1")
e("  s_lshl_b32 s33, s39, 8")
e("  s_lshl_b32 s32, s39, 5")
e("  s_sub_u32 s39, s38, s33")
e("  s_add_u32 s38, s38, s32")
e("  v_mov_b32 v34, s38"); e("  v_mov_b32 v35, s39")
e("  s_lshl_b32 s36, s34, 6")
for n in range(3):
    r, c = 12 + 2*n, 13 + 2*n
    e(["  v_add_u32 v30, s36, v0", "  v_add_u32 v30, 256, v30", "  v_add_u32 v30, 512, v0"][n])
    e("  v_mul_u32_u24 v31, 3641, v30")
    e(f"  v_lshrrev_b32 v{r}, 16, v31")
    e(f"  v_mul_u32_u24 v31, 18, v{r}")
    e(f"  v_sub_u32 v{c}, v30, v31")
    e(f"  v_and_b32 v33, 0x13, v{r}")
    e(f"  v_bfe_u32 v36, v{r}, 2, 1")
    e("  v_lshl_or_b32 v33, v36, 3, v33")
    e(f"  v_bfe_u32 v36, v{r}, 3, 1")
    e(f"  v_cmp_lt_u32 vcc, 15, v{c}")
    e("  v_lshl_or_b32 v33, v36, 2, v33")
    e("  v_mul_u32_u24 v33, 9216, v33")
    e("  v_cndmask_b32 v36, v34, v35, vcc")
    e(f"  v_lshl_add_u32 v33, v{c}, 4, v33")
    e(f"  v_add_u32 v{2+n}, v36, v33")
e(f"  s_mul_i32 s48, s23, {64*9216}")
e("  s_lshl_b32 s49, s23, 7")
e("  s_lshl_b32 s32, s34, 10")
e("  s_and_b32 s33, s34, 1")
e(f"  s_mul_i32 s33, s33, {IMG}")
e("  s_add_u32 s33, s33, 8192")
e("  s_lshr_b32 s35, s34, 1")
e("  s_lshl_b32 s36, s34, 12")
e(f"  s_add_u32 s36, s36, {XBASE}")
e("  s_mov_b32 s50, 0")
e("  s_mov_b32 s51, s36")
e(f"  s_add_u32 s37, s36, {3*XSLOT}")
e("  s_bitcmp1_b32 s34, 0")
e("  s_waitcnt lgkmcnt(0)")
e("  s_cselect_b32 s56, s8, s6"); e("  s_cselect_b32 s57, s9, s7")
e(f"  s_mov_b32 s58, {W_BYTES}"); e("  s_mov_b32 s59, 0x00020000")
srd(24, "s4", "s5", X_BYTES)
srd(40, "s6", "s7", W_BYTES)
srd(44, "s8", "s9", W_BYTES)
def g_issue(par):
    if par == 0:
        e("  s_mov_b32 m0, s51")
        e(f"  s_add_u32 s51, s51, {XSLOT}")
        for q in range(4): e(f"  buffer_load_dwordx4 v{5+q}, s[24:27], s49 offen offset:{q*1024}{NTX} lds")
        e("  s_cmp_eq_u32 s51, s37"); e("  s_cselect_b32 s51, s36, s51")
        e("  s_add_u32 s49, s49, 128"); e("  s_cmp_eq_u32 s49, 1152"); e("  s_cselect_b32 s49, 0, s49")
    e("  s_add_u32 s52, s50, s32")
    for mat in range(2):
        for n in range(2):
            e(f"  s_add_u32 m0, s52, {mat*IMG + n*4096}")
            e("  s_nop 0")
            e(f"  buffer_load_dwordx4 v{2+n}, s[{40+4*mat}:{43+4*mat}], s48 offen{NTS} lds")
    l = lab("p8")
    e(f"  s_cmp_eq_u32 s35, {par}")
    e(f"  s_cbranch_scc0 {l}")
    e("  s_add_u32 m0, s50, s33")
    e("  s_nop 0")
    e(f"  buffer_load_dwordx4 v4, s[56:59], s48 offen{NTS} lds")
    e(f"{l}:")
    e(f"  s_add_u32 s48, s48, {32*9216}"); e(f"  s_cmp_eq_u32 s48, {576*9216}"); e("  s_cselect_b32 s48, 0, s48")
    e(f"  s_add_u32 s50, s50, {WSLOT}"); e(f"  s_cmp_eq_u32 s50, {6*WSLOT}"); e("  s_cselect_b32 s50, 0, s50")
stamp(1)
FOLD = OPT["fold"] and STAMP != 3 and not OPT["early"]
if not FOLD:
    g_issue(0)
    if not OPT["early"]: g_issue(1)
    stamp(11) if STAMP == 1 else None
def spf():
    if OPT["spf"]:
        for k in range(5): e(f"  s_load_dword s63, s[10:11], s62 offset:{k*64}")
        e("  s_add_u32 s62, s62, 320")
def lbody(it):
    e("  s_waitcnt vmcnt(4)")
    e("  s_barrier")
    if STAMP == 3: stamp(1 + it, True)
    if 0 <= OPT["vpf"] < 8:
        if STAMP == 3:
            if it == OPT["vpf"]: e(f"  buffer_load_dword v17, v18, s[96:99], 0 offen{NTP}")
        else:
            e(f"  s_cmp_eq_u32 s53, {8 - OPT['vpf']}")
            e("  s_cbranch_scc0 L_novpf")
            e(f"  buffer_load_dword v17, v18, s[96:99], 0 offen{NTP}")
            e("L_novpf:")
    g_issue(0); spf()
    e("  s_waitcnt vmcnt(8)")
    e("  s_barrier")
    g_issue(1); spf()
NIT = 8
if OPT["early"]:
    NIT = 7
    e("  s_waitcnt vmcnt(0)")
    e("  s_barrier")
    if STAMP == 3: stamp(1, True)
    g_issue(1); g_issue(0)
    e("  s_waitcnt vmcnt(8)")
    e("  s_barrier")
    g_issue(1)
if STAMP == 3:
    for it in range(8 - NIT, 8): lbody(it)
else:
    if FOLD:
        e("  s_mov_b32 s53, 9")
        e("  s_branch L_lf0")
        e("L_lloop:")
        e("  s_waitcnt vmcnt(4)"); e("  s_barrier")
        e("L_lf0:")
        g_issue(0)
        e("  s_cmp_eq_u32 s53, 9"); e("  s_cbranch_scc1 L_lf1")
        e("  s_waitcnt vmcnt(8)"); e("  s_barrier")
        e("L_lf1:")
        g_issue(1)
    else:
        e(f"  s_mov_b32 s53, {NIT}")
        e("L_lloop:")
        lbody(0)
    e("  s_sub_u32 s53, s53, 1"); e("  s_cmp_lg_u32 s53, 0"); e("  s_cbranch_scc1 L_lloop")
if OPT["spf"]: e("  s_load_dword s63, s[10:11], s62")
e("  s_mul_i32 s53, s22, 288")
e("  s_lshl_b32 s62, s34, 6")
for n in range(3):
    r = 12 + 2*n
    e("  v_add_u32 v30, s62, v0" if n == 0 else "  v_add_u32 v30, 192, v30")
    e("  v_mul_u32_u24 v31, 3641, v30")
    e(f"  v_lshrrev_b32 v{r}, 16, v31")
    e(f"  v_mul_u32_u24 v31, 18, v{r}")
    e("  v_sub_u32 v32, v30, v31")
    e(f"  v_mul_u32_u24 v31, 1152, v{r}")
    e("  v_lshl_add_u32 v31, v32, 4, v31")
    e(f"  v_add_u32 v{9+n}, s53, v31")
e(f"  v_mov_b32 v20, {SY}"); e("  v_mov_b32 v21, 1"); e("  v_mov_b32 v22, 0")
e("  s_lshl_b32 s53, s34, 2")
e("  v_add_u32 v26, s53, v20")
srd(28, "s14", "s15", 256)
e("  s_lshr_b32 s62, s2, 3"); e("  s_lshl_b32 s62, s62, 2"); e("  s_add_u32 s62, s62, s34")
if OPT["vpf"] >= 0:
    e("  s_mul_i32 s55, s62, 5184")
    e(f"  s_mul_i32 s53, s19, {576*1152}")
    e("  s_add_u32 s55, s55, s53")
    e("  v_min_u32 v18, 41, v0")
    e("  v_lshlrev_b32 v18, 7, v18")
    e("  v_add_u32 v18, s55, v18")
    srd(96, "s10", "s11", W_BYTES)
srd(40, "s10", "s11", W_BYTES)
e(f"  s_mul_i32 s49, s19, {576*1152}")
def piece_row(dst, p):
    e(f"  s_add_u32 s52, s20, {p}"); e("  s_and_b32 s52, s52, 3")
    e(f"  s_lshr_b32 {dst}, s52, 1"); e(f"  s_mul_i32 {dst}, {dst}, 288")
    e("  s_and_b32 s52, s52, 1"); e("  s_lshl_b32 s52, s52, 4")
    e(f"  s_add_u32 {dst}, {dst}, s52"); e(f"  s_add_u32 {dst}, {dst}, 128")
def d_issue(sig):
    so = ["s48", "s54"]; vb = [9, 9]
    if sig < 8:
        for im in range(2):
            p, i = ORDER[2*sig + im]
            e(f"  s_add_u32 s52, s20, {p}"); e("  s_and_b32 s52, s52, 3"); e("  s_mul_i32 s52, s52, 9")
            e(f"  s_add_u32 s52, s52, {1 + 2*i}"); e("  s_lshr_b32 s52, s52, 1")
            e(f"  s_mul_i32 {so[im]}, s52, {32*1152}"); e(f"  s_add_u32 {so[im]}, {so[im]}, s49")
        la = [2*sig*IMG, (2*sig+1)*IMG]
    else:
        for im in range(2):
            piece_row("s50", 2*im); piece_row("s51", 2*im+1)
            e("  s_sub_u32 s51, s51, 16")
            e("  s_mul_i32 s50, s50, 1152"); e("  s_mul_i32 s51, s51, 1152")
            e("  v_mov_b32 v33, s50"); e("  v_mov_b32 v34, s51")
            for n in range(3):
                e(f"  v_cmp_lt_u32 vcc, 15, v{12+2*n}")
                e("  s_nop 1")
                e("  v_cndmask_b32 v35, v33, v34, vcc")
                e(f"  v_add_u32 v{27+3*im+n}, v35, v{9+n}")
            e(f"  s_mov_b32 {so[im]}, s49")
        vb = [27, 30]
        la = [16*IMG, 0]
    for im in range(2):
        for n in range(3):
            e(f"  s_add_u32 m0, s32, {la[im] + n*3072}")
            e("  s_nop 0")
            e(f"  buffer_load_dwordx4 v{vb[im]+n}, s[40:43], {so[im]} offen{NTD} lds")
VP = 1 if OPT["vpf"] == 8 else 0
e("  buffer_load_dword v23, v22, s[28:31], 0 offen sc1")
if VP: e(f"  buffer_load_dword v17, v18, s[96:99], 0 offen{NTP}")
e(f"  s_waitcnt vmcnt({5+VP})")
e("  s_barrier")
stamp(2)
if STAMP == 3: stamp(9, True)
e("  s_cmp_eq_u32 s34, 3")
e("  s_cbranch_scc1 L_poller")
d_issue(0)
e(f"  s_waitcnt vmcnt({6+VP})")
e("  s_barrier")
e("  ds_read_b32 v23, v20")
d_issue(1)
srd(28, "s16", "s17", WS_USE)
WP = OPT["wdpre"]; LAG = OPT["wdw"] // 6
assert 2 <= WP <= 4
MS = {1: O_M, 3: O_M + 4, 5: O_M + 8, 7: O_M + 12}
done = set()
def landed(k):
    for m in sorted(MS):
        if m <= k and m not in done:
            lds_inc(20, MS[m], 21); done.add(m)
            if m == 1: stamp(3)
for sg in range(2, 8):
    if sg == WP:
        e("  s_waitcnt vmcnt(0)"); landed(sg - 1)
        lds_spin(20, O_G1, 4, 24)
    d_issue(sg)
    e(f"  s_waitcnt vmcnt({6*LAG})")
    landed(sg - LAG)
    if OPT["wsl"]: e(f"  s_sleep {OPT['wsl']}")
e("  s_waitcnt vmcnt(0)")
landed(7)
stamp(4)
if OPT["xstop"]: e("  s_branch L_fin")
lds_spin(20, O_CONS, 4, 24)
d_issue(8)
e("  s_waitcnt vmcnt(0)")
lds_inc(20, O_M + 16, 21)
stamp(6)
OWNL = IMG
e("L_reduce:")
srd(24, "s12", "s13", X_BYTES)
srd(28, "s16", "s17", WS_USE)
e("  s_and_b32 s45, s19, 1")
e("  s_lshl_b32 s44, s45, 1"); e("  s_add_u32 s44, s44, s34")
e("  s_add_u32 s46, s45, 4"); e("  s_cmp_eq_u32 s34, 2"); e("  s_cselect_b32 s44, s46, s44")
e("  s_add_u32 s46, s44, 3"); e("  s_cmp_eq_u32 s34, 3"); e("  s_cselect_b32 s44, s46, s44")
e(f"  s_mul_i32 s44, s44, {KST}")
e("  s_lshr_b32 s45, s19, 1"); e("  s_lshl_b32 s45, s45, 8"); e("  s_andn2_b32 s46, s2, 7"); e("  s_add_u32 s45, s45, s46")
e("  s_lshl_b32 s45, s45, 10"); e("  s_add_u32 s44, s44, s45")
e(f"  s_add_u32 s44, s44, {P_OFF}")
e("  v_lshlrev_b32 v5, 4, v0")
e("  v_add_u32 v6, s44, v5")
e(f"  v_add_u32 v7, {KST}, v6")
RS = [40, 41, 42, 43, 44, 45, 46, 47]
for r in range(8):
    e(f"  s_add_u32 s{RS[r]}, s19, {r}"); e(f"  s_and_b32 s{RS[r]}, s{RS[r]}, 7"); e(f"  s_lshl_b32 s{RS[r]}, s{RS[r]}, 10")
e("  s_lshl_b32 s48, s34, 10"); e(f"  s_add_u32 s48, s48, {OWNL}")
e("  v_add_u32 v8, s48, v5")
e("  s_lshl_b32 s48, s21, 7"); e("  s_lshl_b32 s49, s19, 4"); e("  s_add_u32 s48, s48, s49"); e("  s_mul_i32 s48, s48, 1152")
e("  s_mul_i32 s49, s22, 288"); e("  s_add_u32 s48, s48, s49"); e("  s_lshl_b32 s49, s34, 6"); e("  s_add_u32 s48, s48, s49")
e("  v_and_b32 v1, 15, v0"); e("  v_mul_u32_u24 v1, 1152, v1"); e("  v_lshrrev_b32 v2, 4, v0"); e("  v_lshl_add_u32 v1, v2, 3, v1")
e("  s_mov_b32 s50, 0xffff0000")
e("  v_readfirstlane_b32 s3, v23")
e("  s_andn2_b32 s53, s2, 7"); e("  s_lshl_b32 s53, s53, 2"); e("  s_lshr_b32 s62, s19, 1"); e("  s_add_u32 s53, s53, s62")
e("  s_lshl_b32 s53, s53, 7"); e(f"  s_add_u32 s53, s53, {FH_OFF}")
e("  s_max_u32 s52, s34, 1"); e("  s_sub_u32 s52, s52, 1")
e("  s_add_u32 s3, s3, s52"); e("  s_add_u32 s3, s3, 4")
e("  s_sub_u32 s62, 3, s52")
e("  s_lshl_b32 s52, s52, 2")
e("  v_add_u32 v26, s52, v20")
PR = [32, 33, 35, 36, 37, 38, 39, 51]
lds_spin(26, O_TG, 4, 24)
stamp(7)
e(f"  s_mov_b32 s63, {OPT['spin']}")
e("L_rprobe:")
e("  s_sub_u32 s63, s63, 1"); e("  s_cmp_eq_u32 s63, 0"); e("  s_cbranch_scc1 L_fin")
for k in range(8): e(f"  s_load_dword s{PR[k]}, s[16:17], s53 offset:{k*512} glc")
e("  s_waitcnt lgkmcnt(0)")
for k in range(8):
    e(f"  s_sub_u32 s{PR[k]}, s{PR[k]}, s3")
    if k: e(f"  s_max_u32 s32, s32, s{PR[k]}")
e("  s_cmp_gt_u32 s32, s62")
e("  s_cbranch_scc1 L_rprobe")
stamp(10)
e("  s_cmp_eq_u32 s34, 3"); e("  s_cbranch_scc1 L_rtag")
if OPT["rlate"]: lds_spin(20, O_TG + 8, 4, 24)
R0 = 1 if OPT["own"] else 0
def accum(k, srcs):
    base = 100 if k == 0 else 116
    for p, r in enumerate(srcs):
        e(f"  v_lshlrev_b32 v{base+2*p}, 16, v{r}"); e(f"  v_and_b32 v{base+1+2*p}, s50, v{r}")
    if k:
        for p in range(len(srcs)): e(f"  v_pk_add_f32 v[{100+2*p}:{101+2*p}], v[{100+2*p}:{101+2*p}], v[{116+2*p}:{117+2*p}]")
for r in range(R0, 8): e(f"  buffer_load_dwordx4 v[{32+4*r}:{35+4*r}], v6, s[28:31], s{RS[r]} offen sc1")
if R0: e("  ds_read_b128 v[32:35], v8")
for r in range(8):
    e("  s_waitcnt lgkmcnt(0)" if (r == 0 and R0) else f"  s_waitcnt vmcnt({7-r})")
    accum(r, [32+4*r+x for x in range(4)])
for p in range(4): e(f"  v_cvt_pk_bf16_f32 v{32+p}, v{100+2*p}, v{101+2*p}")
stamp(8)
for k in range(2): e(f"  buffer_store_dwordx2 v[{32+2*k}:{33+2*k}], v1, s[24:27], s48 offen offset:{k*32}")
if STAMP: e("  s_waitcnt vmcnt(0)")
stamp(9)
e("  s_branch L_fin")
e("L_rtag:")
for r in range(R0, 8):
    e(f"  buffer_load_dwordx4 v[{32+8*r}:{35+8*r}], v6, s[28:31], s{RS[r]} offen sc1")
    e(f"  buffer_load_dwordx4 v[{36+8*r}:{39+8*r}], v7, s[28:31], s{RS[r]} offen sc1")
if R0:
    e("  ds_read_b128 v[32:35], v8"); e("  ds_read_b128 v[36:39], v8 offset:1024")
for r in range(8):
    e("  s_waitcnt lgkmcnt(0)" if (r == 0 and R0) else f"  s_waitcnt vmcnt({14-2*r})")
    a_, b_ = 32 + 8*r, 36 + 8*r
    e(f"  v_xor_b32 v{a_+3}, v23, v{a_+3}"); e(f"  v_xor_b32 v{b_+3}, v23, v{b_+3}")
    e(f"  v_or_b32 v24, v{a_+3}, v{b_+3}" if r == 0 else f"  v_or3_b32 v24, v{a_+3}, v{b_+3}, v24")
    accum(r, [a_, a_+1, a_+2, b_, b_+1, b_+2])
e("  v_cmp_ne_u32 vcc, 0, v24")
for p in range(6): e(f"  v_cvt_pk_bf16_f32 v{32+p}, v{100+2*p}, v{101+2*p}")
e("  s_cbranch_vccnz L_rprobe")
stamp(8)
for k in range(3): e(f"  buffer_store_dwordx2 v[{32+2*k}:{33+2*k}], v1, s[24:27], s48 offen offset:{k*32}")
if STAMP: e("  s_waitcnt vmcnt(0)")
stamp(9)
e("  s_branch L_fin")

e("L_poller:")
e(f"  s_mov_b32 s60, {OPT['spin']}")
e(f"  s_waitcnt vmcnt({VP})")
e("L_npoll:")
e("  v_readfirstlane_b32 s3, v23")
e("  s_cmp_lg_u32 s3, 0")
e("  s_cbranch_scc1 L_nok")
e("  s_sub_u32 s60, s60, 1")
e("  s_cmp_eq_u32 s60, 0")
e("  s_cbranch_scc1 L_nok")
e("  buffer_load_dword v23, v22, s[28:31], 0 offen sc1")
e("  s_waitcnt vmcnt(0)")
e("  s_branch L_npoll")
e("L_nok:")
e("  ds_write_b32 v20, v23")
e("  s_waitcnt lgkmcnt(0)")
e("  s_barrier")
for p in range(1, 4):
    e(f"  s_add_u32 s52, s20, {p}"); e("  s_and_b32 s52, s52, 3"); e("  s_lshl_b32 s52, s52, 3")
    e("  s_lshl_b32 s53, s21, 5"); e("  s_add_u32 s53, s53, s19"); e("  s_add_u32 s53, s53, s52")
    e("  s_lshl_b32 s53, s53, 9"); e(f"  s_add_u32 s{24+p}, s53, {FH_OFF}")
if OPT["xstop"]: e("  s_branch L_fin")
lds_spin(20, 12, 1, 24)
stamp(6)
e(f"  s_mov_b32 s60, {OPT['spin']}")
for k in range(12): e(f"  s_mov_b32 s{36+k}, 0")
for k in range(4): e(f"  s_mov_b32 s{48+k}, 0")
e("L_hpoll:")
for mt in range(4):
    for p in range(3): e(f"  s_load_dword s{36+3*mt+p}, s[16:17], s{25+p} offset:{mt*128} glc")
if not OPT["pipe"] & 2: e("  s_waitcnt lgkmcnt(0)")
for mt in range(4):
    for p in range(3):
        d = "s32" if p == 0 else "s33"
        e(f"  s_sub_u32 {d}, s{36+3*mt+p}, s3"); e(f"  s_cmp_gt_u32 {d}, 7"); e(f"  s_cselect_b32 {d}, 0, {d}")
        if p: e("  s_min_u32 s32, s32, s33")
    e(f"  s_max_u32 s{48+mt}, s{48+mt}, s32")
    e(f"  v_mov_b32 v{28+mt}, s{48+mt}")
e(f"  ds_write_b128 v20, v[28:31] offset:{O_SIG}")
e("  s_min_u32 s35, s48, s49"); e("  s_min_u32 s32, s50, s51"); e("  s_min_u32 s35, s35, s32")
if STAMP:
    for st in (1, 2):
        e(f"  s_cmp_ge_u32 s35, {st}"); e(f"  s_cbranch_scc0 L_hs{st}")
        e(f"  s_cmp_eq_u32 s{SB+2*(2+st)}, 0"); e(f"  s_cbranch_scc0 L_hs{st}")
        stamp(2 + st); e("  s_waitcnt lgkmcnt(0)")
        e(f"L_hs{st}:")
    e(f"  s_add_u32 s{SB+2*13}, s{SB+2*13}, 1")
e("  s_sub_u32 s60, s60, 1"); e("  s_cmp_eq_u32 s60, 0"); e("  s_cbranch_scc1 L_hdone")
e("  s_cmp_ge_u32 s35, 3")
e("  s_cbranch_scc0 L_hpoll")
e("L_hdone:")
stamp(5)
e("  s_waitcnt lgkmcnt(0)")
e("  s_branch L_reduce")

LMODE[0] = False
e("L_compute:")
if OPT["prio"]: e(f"  s_setprio {OPT['prio']}")
NB = 6; D = 5
AB = 16; XB = 40; OWN = 56; ACC = 112; ACC2 = 184
e(f"  v_mov_b32 v1, {SY}")
e("  v_and_b32 v10, 31, v0")
e("  v_lshl_add_u32 v11, v10, 2, v1")
e("  v_mov_b32 v105, 0")
e("  ds_write_b32 v11, v105")
e("  v_lshrrev_b32 v10, 5, v0"); e("  v_lshlrev_b32 v10, 4, v10"); e("  v_bfe_u32 v11, v0, 2, 3"); e("  v_add_u32 v10, v10, v11")
e("  v_mul_u32_u24 v10, 288, v10"); e("  v_and_b32 v11, 3, v0"); e("  v_lshl_add_u32 v2, v11, 3, v10")
e("  v_lshrrev_b32 v10, 2, v0"); e("  v_mul_u32_u24 v10, 288, v10"); e("  v_lshl_add_u32 v6, v11, 3, v10")
e(f"  v_add_u32 v7, {6*IMG}, v6"); e(f"  v_add_u32 v8, {12*IMG}, v6")
e("  s_lshl_b32 s40, s18, 12"); e(f"  s_add_u32 s40, s40, {XBASE}")
e("  v_and_b32 v10, 15, v0"); e("  v_lshrrev_b32 v11, 1, v10"); e("  v_lshrrev_b32 v13, 4, v0"); e("  v_xor_b32 v11, v11, v13")
e("  v_lshlrev_b32 v11, 4, v11"); e("  v_lshl_add_u32 v10, v10, 7, v11")
e("  v_add_u32 v3, s40, v10"); e("  v_xor_b32 v10, 64, v10"); e("  v_add_u32 v4, s40, v10")
e("  v_lshlrev_b32 v5, 4, v0")
e("  v_mov_b32 v10, 1")
for i in range(144): e(f"  v_mov_b32 v{ACC+i}, 0")
K1 = -2*0.7978845608028654*1.4426950408889634
K3 = K1*0.044715
e(f"  s_mov_b32 s54, {f2u(K3)}"); e(f"  s_mov_b32 s55, {f2u(K3)}")
e(f"  v_mov_b32 v14, {f2u(K1)}"); e(f"  v_mov_b32 v15, {f2u(K1)}")
KS = [24, 25, 26, 27, 32, 33, 34, 35, 36, 37, 38, 39]
HV = [5, 9, 12, 13]
for k in range(12): e(f"  s_mov_b32 s{KS[k]}, {k*KST}")
e("  s_lshl_b32 s40, s21, 5"); e("  s_add_u32 s40, s40, s19"); e("  s_lshl_b32 s41, s18, 8"); e("  s_add_u32 s40, s40, s41")
for p in (3, 2, 1, 0):
    e(f"  s_add_u32 s41, s20, {p}"); e("  s_and_b32 s41, s41, 3"); e("  s_lshl_b32 s41, s41, 3"); e("  s_add_u32 s41, s41, s40")
    e("  s_lshl_b32 s41, s41, 10")
    e(f"  v_add_u32 v{HV[p]}, s41, v5")
e("  s_lshl_b32 s43, s2, 2"); e("  s_add_u32 s43, s43, s18"); e("  s_lshl_b32 s43, s43, 7"); e(f"  s_add_u32 s43, s43, {FH_OFF}")
e("  s_lshl_b32 s40, s18, 2")
e("  v_add_u32 v106, s40, v1")
e("  s_waitcnt lgkmcnt(0)")
srd(28, "s16", "s17", WS_USE)
e(f"  s_add_u32 s44, s16, {P_OFF}"); e("  s_addc_u32 s45, s17, 0"); e(f"  s_mov_b32 s46, {P_OFF}"); e("  s_mov_b32 s47, 0x00020000")
if OPT["cpf"]:
    e("  s_lshr_b32 s62, s2, 3"); e("  s_lshl_b32 s62, s62, 2"); e("  s_add_u32 s62, s62, s18")
    e("  s_getpc_b64 s[60:61]")
    e("L_pc:")
    e(f"  s_sub_u32 s60, s60, L_pc-{NAME}")
    e("  s_subb_u32 s61, s61, 0")
    e("  s_lshl_b32 s53, s62, 6")
    e("  s_load_dword s63, s[60:61], s53")
    e("  s_load_dword s63, s[60:61], s53 offset:8192")
    e("  s_add_u32 s53, s53, 16384")
    e(f"  s_min_u32 s53, s53, L_codeend-{NAME}-4")
    e("  s_load_dword s63, s[60:61], s53")
e("  s_or_b32 s53, s2, s18")
e("  s_cmp_eq_u32 s53, 0")
e("  s_cbranch_scc0 L_nononce")
srd(56, "s14", "s15", 256)
e("  s_memrealtime s[96:97]")
e("  s_waitcnt lgkmcnt(0)")
e("  s_lshl_b32 s53, s96, 3")
e("  s_max_u32 s53, s53, 8")
e("  v_mov_b32 v104, s53")
e("  buffer_store_dword v104, v105, s[56:59], 0 offen sc1")
e("L_nononce:")
if OPT["warmf"]:
    e("  s_mov_b64 exec, 1")
    e("  buffer_store_dword v105, v105, s[28:31], s43 offen sc1")
    e("  s_mov_b64 exec, -1")

def acc1(t, mat, mh):
    if t == 8: return ACC + 8*16 + mh*8 + mat*4
    return ACC + ((t//2)*2 + mh)*16 + (t & 1)*8 + mat*4
def a1read(j, d):
    kk, r = j // 18, j % 18
    t, mat = r // 2, r % 2
    b = AB + 4*(j % NB) + 2*d
    return f"  ds_read_b64_tr_b16 v[{b}:{b+1}], v2 offset:{kk*WSLOT + mat*IMG + d*8*288 + t*32}"
def x1read(kk, mh):
    b = XB + 8*kk + 4*mh
    return f"  ds_read_b128 v[{b}:{b+3}], v{3+kk} offset:{mh*2048}"
stamp(1)
e("  s_barrier")
stamp(2)
if STAMP: e("  s_waitcnt lgkmcnt(0)")
e(x1read(0, 0)); e(x1read(0, 1))
for j in range(D):
    e(a1read(j, 0)); e(a1read(j, 1))
e("  s_mov_b32 s48, 9")
e("  s_mov_b32 s51, 0")
e("L_loop:")
if OPT["cyc"]:
    e("  s_cmp_eq_u32 s48, 5"); e("  s_cbranch_scc0 L_nocyc")
    e("  s_memtime s[96:97]"); stamp(1)
    e("L_nocyc:")
e("  s_add_u32 s51, s51, 1"); e("  s_cmp_eq_u32 s51, 3")
e(f"  s_mov_b32 s52, {2*WSLOT}"); e(f"  s_cmov_b32 s52, {(-4*WSLOT) & 0xffffffff}")
e(f"  s_mov_b32 s53, {XSLOT}"); e(f"  s_cmov_b32 s53, {(-2*XSLOT) & 0xffffffff}")
e("  s_cselect_b32 s51, 0, s51")
q = [("x", 0), ("x", 0)] + [("a", j) for j in range(D) for _ in range(2)]
for j in range(36):
    kk, r = j // 18, j % 18
    t, mat = r // 2, r % 2
    if j == 18:
        e("  s_cmp_eq_u32 s48, 1"); e("  s_cbranch_scc1 L_peel")
        q_mid = list(q)
    if r == 18 - D:
        e("  s_barrier")
        if kk == 1:
            e("  v_add_u32 v2, s52, v2"); e("  v_add_u32 v3, s53, v3")
        e(x1read(1 - kk, 0)); e(x1read(1 - kk, 1)); q += [("x", kk+1)]*2
        if kk == 0: e("  v_add_u32 v4, s53, v4")
    WEV = OPT["wev"]
    want = [("a", j + x) for x in range(WEV)] if any(it == ("a", j) for it in q) else []
    need = [i for i, it in enumerate(q) if it in want or it == ("x", kk)]
    if need:
        e(f"  s_waitcnt lgkmcnt({len(q)-1-max(need)})")
        q = q[max(need)+1:]
    b = AB + 4*(j % NB)
    for mh in range(2):
        a = acc1(t, mat, mh); xb = XB + 8*kk + 4*mh
        e(f"  {M16} v[{a}:{a+3}], v[{b}:{b+3}], v[{xb}:{xb+3}], v[{a}:{a+3}]")
        e(a1read((j + D) % 36, mh)); q.append(("a", j + D))
e("  s_sub_u32 s48, s48, 1"); e("  s_branch L_loop")
e("L_peel:")
stamp(3)
if OPT["cyc"]:
    e("  s_memtime s[98:99]"); e("  s_waitcnt lgkmcnt(0)"); e(f"  s_sub_u32 s{SB+26}, s98, s96")
if OPT["ue"] < 0: lds_inc(1, O_G1, 10)
e("  ds_read_b32 v11, v1")
q_mid.append("n")

def blk(b): return [b, b+4, b+8]
BUF = {(0, 0): blk(OWN), (0, 1): blk(OWN+12), (0, 2): blk(OWN+24),
       (1, 0): blk(ACC), (2, 0): blk(ACC+12), (3, 0): blk(ACC+24),
       (1, 1): blk(ACC+36), (2, 1): blk(ACC+48), (3, 1): blk(ACC+60),
       (1, 2): blk(OWN), (2, 2): blk(OWN+12), (3, 2): blk(92)}
SH = {(0, 0): XB, (0, 1): XB+4, (1, 0): XB+8, (1, 1): XB+12}
vq = []
def gloads(p, g):
    return [f"  buffer_load_dwordx4 v[{r}:{r+3}], v{HV[p]}, s[28:31], s{KS[3*g+k]} offen sc1" for k, r in enumerate(BUF[(p, g)])]
def flag(stage):
    e(f"  v_add_u32 v104, {stage}, v11")
    e("  s_mov_b64 exec, 1")
    e("  buffer_store_dword v104, v105, s[28:31], s43 offen sc1")
    e("  s_mov_b64 exec, -1")
    vq.append("f")
def wait_stores(lbl):
    global vq
    assert all(isinstance(it, str) for it in vq)
    k = max(i for i, it in enumerate(vq) if it == lbl)
    e(f"  s_waitcnt vmcnt({len(vq)-1-k})")
    vq = vq[k+1:]
def stages(ab, dst, tp):
    gs = [ab, ab+2, ab+8, ab+10]; us = [g + 4 for g in gs]
    P2 = lambda x: f"v[{x}:{x+1}]"
    A = [f"  v_pk_mul_f32 {P2(tp[p])}, {P2(gs[p])}, {P2(gs[p])}" for p in range(4)] + \
        [f"  v_pk_fma_f32 {P2(tp[p])}, {P2(tp[p])}, s[54:55], v[14:15]" for p in range(4)] + \
        [f"  v_pk_mul_f32 {P2(tp[p])}, {P2(tp[p])}, {P2(gs[p])}" for p in range(4)]
    E = [f"  v_exp_f32 v{tp[p]+h}, v{tp[p]+h}" for p in range(4) for h in range(2)]
    B1 = [f"  v_pk_mul_f32 {P2(gs[p])}, {P2(gs[p])}, {P2(us[p])}" for p in range(4)]
    B2 = [f"  v_pk_add_f32 {P2(tp[p])}, {P2(tp[p])}, 1.0 op_sel_hi:[1,0]" for p in range(4)]
    R = [f"  v_rcp_f32 v{tp[p]+h}, v{tp[p]+h}" for p in range(4) for h in range(2)]
    C = [f"  v_pk_mul_f32 {P2(gs[p])}, {P2(gs[p])}, {P2(tp[p])}" for p in range(4)] + \
        [f"  v_cvt_pk_bf16_f32 v{dst+p}, v{gs[p]}, v{gs[p]+1}" for p in range(4)]
    return A, E, B1, B2, R, C
def weave(t, o):
    r = []; o = list(o); n = len(t)
    for i, x in enumerate(t):
        r.append(x)
        k = -(-len(o) // (n - i))
        r += o[:k]; o = o[k:]
    return r + o
TS = [[XB, XB+2, XB+4, XB+6], [92, 94, 96, 98]]
U = [stages(ACC + 16*u, BUF[(0, u//3)][u % 3], TS[u & 1]) for u in range(9)]
V = []
if OPT["swp"]:
    V += [("need", 0)] + U[0][0]
    for u in range(9):
        A, E, B1, B2, R, C = U[u]
        V += weave(E, (U[u-1][5] + [("done", u-1)] if u else []) + B1)
        V += B2
        V += weave(R, ([("need", u+1)] + U[u+1][0]) if u < 8 else [])
    V += ["  s_nop 0"] + U[8][5] + [("done", 8)]
else:
    for u in range(9):
        A, E, B1, B2, R, C = U[u]
        V += [("need", u)] + A + E + B1 + B2 + R + ["  s_nop 0"] + C + [("done", u)]
lq = q_mid
mf_next = [0]
since = [99]
def emit_half():
    global lq
    f, mh = mf_next[0] // 2, mf_next[0] % 2
    j = 18 + f; t, mat = f // 2, f % 2
    if mh == 0:
        need = [i for i, it in enumerate(lq) if it == ("a", j) or it == ("x", 1)]
        if need:
            e(f"  s_waitcnt lgkmcnt({len(lq)-1-max(need)})")
            lq = lq[max(need)+1:]
    b = AB + 4*(j % NB); a = acc1(t, mat, mh); xb = XB + 8 + 4*mh
    e(f"  {M16} v[{a}:{a+3}], v[{b}:{b+3}], v[{xb}:{xb+3}], v[{a}:{a+3}]")
    lastm[(t, mh)] = len(out)
    if j + D < 36:
        e(a1read(j + D, mh)); lq.append(("a", j + D))
    mf_next[0] += 1
lastm = {}
def unit_tiles(u): return [(8, 0), (8, 1)] if u == 8 else [(2*(u//2), u % 2), (2*(u//2)+1, u % 2)]
def done(u):
    global lq
    g, k = u // 3, u % 3
    B = BUF[(0, g)]
    e(f"  buffer_store_dwordx4 v[{B[k]}:{B[k]+3}], v5, s[28:31], s{KS[u]} offen sc1"); vq.append(f"st{g}")
    if u == 2 and not OPT["wv"]:
        while mf_next[0] < 36: emit_half()
    if u == OPT["ue"] and OPT["un"] < 0:
        assert mf_next[0] == 36
        lds_inc(1, O_G1, 10); lq.append("c")
    if u == OPT["f1"] - 1:
        lds_inc(1, 12, 10); lq.append("c")
    if u == OPT["f1"]:
        if "n" in lq:
            e("  s_waitcnt lgkmcnt(0)"); lq = []
        wait_stores("st0"); flag(1); stamp(4)
    if u == OPT["ea"] - 1:
        e(f"  ds_read_b32 v3, v106 offset:{O_SIG}"); lq.append("c")
    if u == OPT["ea"]:
        e("  s_waitcnt lgkmcnt(0)"); lq = []
        e("  v_readfirstlane_b32 s42, v3")
        e("  s_cmp_ge_u32 s42, 1")
        e("  s_cbranch_scc0 L_noearly")
        for p in range(1, 4):
            for x in gloads(p, 0): e(x)
        e("L_noearly:")
for _ in range(2*(OPT["pre"] if OPT["peel"] else 18)): emit_half()
cnt = 0
for x in V:
    if isinstance(x, tuple):
        if x[0] == "need":
            lastfrag = 17 if x[1] == 8 else 4*(x[1]//2) + 3
            while mf_next[0] < 2*(lastfrag + 1): emit_half()
            gap = len(out) - max(lastm[tm] for tm in unit_tiles(x[1]))
            if gap < 8: e(f"  s_nop {7 - gap}")
        else: done(x[1])
        continue
    e(x); cnt += 1
    if OPT["wv"] and cnt % OPT["wv"] == 0 and mf_next[0] < 36: emit_half()
assert mf_next[0] == 36
stamp(5)
def hreg(ei, mh):
    p, i = ORDER[ei]
    if p == "S": return SH[(i, mh)]
    f = 2*i + mh
    return BUF[(p, f // 3)][f % 3]
def groups_needed(ei):
    p, i = ORDER[ei]
    if p == 0: return []
    if p == "S": return [(pp, 2) for pp in (2*i, 2*i+1) if pp]
    return sorted(set((p, (2*i+mh)//3) for mh in range(2)))
checked = set(); issued = set()
def piece_move(p):
    B = BUF[(p, 2)]
    for mh in range(2):
        for h in range(2): e(f"  v_mov_b32 v{SH[(p//2, mh)] + 2*(p & 1) + h}, v{B[2] + 2*mh + h}")
def gcheck(p, g):
    global vq
    assert (p, g) in issued, (p, g)
    idx = [i for i, it in enumerate(vq) if it == (p, g)]
    if idx:
        younger = [it for it in vq[max(idx)+1:] if not isinstance(it, str)]
        e(f"  s_waitcnt vmcnt({len(younger)})")
        vq = younger
    if g == 2:
        piece_move(p); e("  s_nop 1")
    checked.add((p, g))
piece_move(0)
TM = OPT["tm"]
TG = [[0, 1, 2, 3], [4, 5], [6, 7, 8]]
seq = [(ei, t) for ei in range(TM) for t in range(9)] + [(ei, t) for tg in range(3) for ei in range(TM, 18) for t in TG[tg]]
e("  s_lshr_b32 s40, s19, 1"); e("  s_and_b32 s49, s19, 1"); e("  s_cmp_eq_u32 s40, s18"); e("  s_cselect_b32 s49, s49, 2")
e("  v_lshlrev_b32 v107, 4, v0"); e(f"  v_add_u32 v107, {OWNL}, v107")
ownp = []
acks = {}
def first_use(ei): return min(n for n, (a_, _) in enumerate(seq) if a_ == ei)
def a2read(n, d):
    ei, t = seq[n]
    img = ei if ei < 17 else 0
    b = AB + 4*(n % NB) + 2*d
    return f"  ds_read_b64_tr_b16 v[{b}:{b+1}], v{6 + img//6} offset:{(img % 6)*IMG + d*16*288 + t*32}"
slow = []
checks = {}
def add_check(n, vaddr, off, val, post=None):
    assert n not in checks
    checks[n] = (vaddr, off, val, post)
LA, LB, LC = OPT["la"], OPT["lb"], OPT["lc"]
assert LC >= 28
add_check(first_use(4) - D, 1, O_M + 4, 3)
add_check(first_use(8) - D, 1, O_M + 8, 3)
add_check(first_use(12) - D, 1, O_M + 12, 3)
add_check(first_use(16) - D, 1, O_M + 16, 3)
add_check(LA, 106, O_SIG, 1, lambda: stamp(7))
add_check(LB, 106, O_SIG, 2)
add_check(LC, 106, O_SIG, 3)
chk_reg = {n: 2 + (i % 3) for i, n in enumerate(sorted(checks))}
events = {LA: (1, 0), LA+1: (2, 0), LA+2: (3, 0), LB: (1, 1), LB+2: (2, 1), LB+4: (3, 1), LC: (1, 2), LC+2: (2, 2), LC+4: (3, 2)}
if OPT["ea"] >= 0:
    for k_ in (LA, LA+1, LA+2): del events[k_]
lds_spin(1, O_M, 3, 2)
stamp(6)
if STAMP: e("  s_waitcnt lgkmcnt(0)")
q = []
for n in range(D):
    e(a2read(n, 0)); e(a2read(n, 1)); q += [n, n]
N = len(seq); PRE = 4
assert min(checks) >= PRE
pend_epi = []
for n in range(N):
    ei, t = seq[n]
    if n == OPT["f2"]:
        wait_stores("st1"); flag(2)
    if n == OPT["f3"]:
        e("  s_waitcnt vmcnt(0)"); vq = []; flag(3)
    if n == OPT["un"]:
        lds_inc(1, O_G1, 10); q.append("c")
    if n == 18:
        lds_inc(1, O_CONS, 10); q.append("c")
    if n + PRE in checks:
        va, off, val, post = checks[n + PRE]
        e(f"  ds_read_b32 v{chk_reg[n+PRE]}, v{va} offset:{off}"); q.append(("chk", n + PRE))
    if n in checks:
        va, off, val, post = checks[n]
        need = [i for i, it in enumerate(q) if it == ("chk", n)]
        if need:
            e(f"  s_waitcnt lgkmcnt({len(q)-1-max(need)})")
            q = q[max(need)+1:]
        ls, lb = lab("slow"), lab("back")
        if n == LA and OPT["ea"] >= 0:
            e("  s_cmp_ge_u32 s42, 1")
            e("  s_cbranch_scc1 L_skipA")
        e(f"  v_readfirstlane_b32 s60, v{chk_reg[n]}")
        e(f"  s_cmp_ge_u32 s60, {val}")
        e(f"  s_cbranch_scc0 {ls}")
        e(f"{lb}:")
        slow.append((ls, lb, va, off, val, chk_reg[n]))
        if n == LA and OPT["ea"] >= 0:
            for p in range(1, 4):
                for x in gloads(p, 0): e(x); vq.append((p, 0))
                issued.add((p, 0))
            e("L_skipA:")
        if post: post()
    for pg in groups_needed(ei):
        if pg not in checked:
            gcheck(*pg)
            if pg == (1, 0):
                stamp(8)
                if OPT["cyc2"]: e("  s_memtime s[96:97]")
            if pg == (1, 2): stamp(9)
    if n in events:
        for x in gloads(*events[n]): e(x); vq.append(events[n])
        issued.add(events[n])
    need = [i for i, it in enumerate(q) if it == n]
    if need:
        e(f"  s_waitcnt lgkmcnt({len(q)-1-max(need)})")
        q = q[max(need)+1:]
    b = AB + 4*(n % NB)
    for mh in range(2):
        a = ACC2 + t*8 + mh*4; hb = hreg(ei, mh)
        c = "0" if ei == 0 else f"v[{a}:{a+3}]"
        e(f"  {M16} v[{a}:{a+3}], v[{b}:{b+3}], v[{hb}:{hb+3}], {c}")
        if n + D < N:
            e(a2read(n + D, mh)); q.append(n + D)
    if n in acks:
        cnt, st = acks[n]
        e(f"  s_waitcnt vmcnt({cnt})"); flag(st)
    for tg in range(3):
        if ei == 17 and t == TG[tg][-1]: pend_epi.append((n + 3, tg))
    while pend_epi and (pend_epi[0][0] <= n or n == N - 1):
        _, tg = pend_epi.pop(0)
        assert all(isinstance(it, str) for it in vq)
        if n == N - 1 and tg == 2:
            stamp(10)
            e("  s_nop 7")
        PG = [BUF[(1, 0)][0], BUF[(1, 0)][1], BUF[(2, 0)][0], BUF[(2, 0)][1]]
        if tg == 1: PG = [BUF[(3, 0)][0], None, BUF[(3, 0)][1], None]
        for mh in range(2):
            g0, g1 = PG[2*mh], PG[2*mh+1]
            src = [ACC2 + t_*8 + mh*4 + 2*h for t_ in TG[tg] for h in range(2)]
            dst = [[g0, g0+1, g0+2, g0+3, g1, g1+1, g1+2, g1+3] if tg == 0 else None, [g0, g0+1, g0+2, g0+3],
                   [g0, g0+1, g0+2, g1, g1+1, g1+2] if tg == 2 else None][tg]
            for s_, d_ in zip(src, dst): e(f"  v_cvt_pk_bf16_f32 v{d_}, v{s_}, v{s_+1}")
            blks = [[(g0, mh*2, 0), (g1, mh*2+1, 1)], [(g0, 4+mh, 2)], [(g0, 6+mh*2, 3), (g1, 7+mh*2, 4)]][tg]
            if OPT["own"]:
                lo, lb = lab("own"), lab("ownb")
                e(f"  s_cmp_eq_u32 s49, {mh}"); e(f"  s_cbranch_scc1 {lo}")
                ownp.append((lo, lb, blks))
            for g_, k_, _l in blks:
                e(f"  buffer_store_dwordx4 v[{g_}:{g_+3}], v5, s[44:47], s{KS[k_]} offen sc1")
            if OPT["own"]: e(f"{lb}:")
        if tg == 1:
            for r_ in (BUF[(1, 0)][0], BUF[(1, 0)][1], BUF[(2, 0)][0], BUF[(2, 0)][1]): e(f"  v_mov_b32 v{r_+3}, v11")
            acks[n + OPT["a4"]] = (1 if OPT["own"] else 2, 4)
            acks[N - 1 - OPT["a5"]] = (0, 5)
            assert n + OPT["a4"] < N - 1 - OPT["a5"]
        if tg == 2: flag(6)
        lds_inc(1, O_TG + 4*tg, 10); q.append("c")
stamp(11)
if STAMP:
    e("  s_waitcnt vmcnt(0)")
    stamp(12)
e("L_fin:")
stamp_flush()
e("L_end:")
e("  s_endpgm")
for ls, lb, va, off, val, vt in slow:
    e(f"{ls}:")
    lds_spin(va, off, val, vt)
    e(f"  s_branch {lb}")
for lo, lb, blks in ownp:
    e(f"{lo}:")
    for g_, k_, l_ in blks: e(f"  ds_write_b128 v107, v[{g_}:{g_+3}] offset:{l_*1024}")
    e(f"  s_branch {lb}")
e("L_codeend:")
e('.section .rodata,"a"\n.p2align 6')
e(f".amdhsa_kernel {NAME}")
e("  .amdhsa_next_free_vgpr 256\n  .amdhsa_next_free_sgpr 102\n  .amdhsa_accum_offset 256")
e("  .amdhsa_group_segment_fixed_size 0\n  .amdhsa_kernarg_size 56\n  .amdhsa_user_sgpr_count 2\n  .amdhsa_user_sgpr_kernarg_segment_ptr 1\n  .amdhsa_system_sgpr_workgroup_id_x 1\n.end_amdhsa_kernel")
print("\n".join(out))
```

```python
import sys, struct
OPT = dict(stamp=0, rot=0, grp=3, nt=0, prio=0, spin=400000, slp=1, cpf=1, spf=0, tm=10,
           f1=6, f2=0, f3=14, la=14, lb=40, lc=70, warmf=1, kst=0x100000, xstop=0, spoll=1, vpf=8, wdw=6, wdpre=4, ue=8, wsl=0, ea=8, repc=-1, repl=0, badx=0, rmode=0, rsl=0, early=0, cyc=0, wev=1, rlate=0, pipe=0, rst=4, lsl=2, swap=0, gx=1, xp=0, own=1, a4=14, a5=0, un=-1, peel=1, xw=0, df=-1, dec=1, cons=18, fold=1, wv=0, pre=8, swp=1, cyc2=0, psl=3)
for a in sys.argv[1:]:
    k, v = a.split("="); assert k in OPT, k; OPT[k] = int(v, 0)
assert OPT["spf"] == 0 and OPT["vpf"] in (-1, 8)
STAMP = OPT["stamp"]
out = []
def e(s=""): out.append(s)
def f2u(x): return "0x%08x" % struct.unpack("<I", struct.pack("<f", x))[0]

X_BYTES = 1024*576*2
W_BYTES = 576*4608*2
P_OFF = 0x1000000
FH_OFF = 0x2000000
WS_USE = 0x2040000
ST_OFF = 0x4000000
IMG = 9216
WSLOT = 2*IMG
XBASE = 6*WSLOT
XSLOT = 16384
SY = XBASE + 3*XSLOT
O_G1, O_CONS, O_TG, O_SIG, O_M = 4, 8, 16, 32, 64
LDS_TOTAL = SY + 128
NTS = " nt" if OPT["nt"] & 1 else ""
NTX = " nt" if OPT["nt"] & 2 else ""
NTD = " nt" if OPT["nt"] & 4 else ""
NTP = " nt" if OPT["nt"] & 8 else ""
M16 = "v_mfma_f32_16x16x32_bf16"
NAME = "standalone__geglu_ffn__sampling_kernel"
KST = OPT["kst"]
ORDER = [(0, 0), (0, 1), (0, 2), (0, 3), (1, 0), (2, 0), (3, 0), (1, 1), (1, 2), (2, 1), (2, 2), (3, 1), (3, 2),
         (1, 3), (2, 3), (3, 3), ("S", 0), ("S", 1)]
uid = [0]
def lab(p):
    uid[0] += 1
    return f"L_{p}{uid[0]}"
def srd(d, lo, hi, nbytes):
    e(f"  s_mov_b32 s{d}, {lo}"); e(f"  s_mov_b32 s{d+1}, {hi}")
    e(f"  s_mov_b32 s{d+2}, {nbytes}"); e(f"  s_mov_b32 s{d+3}, 0x00020000")
NST, SB = 14, 64
LMODE = [False]
def stamp(i, force=False):
    if STAMP == 3 and LMODE[0] and not force: return
    if STAMP: e(f"  s_memrealtime s[{SB+2*i}:{SB+1+2*i}]")
def stamp_init():
    if STAMP:
        for i in range(1, NST): e(f"  s_mov_b64 s[{SB+2*i}:{SB+1+2*i}], 0")
def stamp_flush():
    if not STAMP: return
    if OPT["repc"] == 99:
        e(f"  v_mov_b32 v2, {SY}")
        e("  ds_read_b32 v2, v2")
        e("  s_waitcnt lgkmcnt(0)")
        e("  v_readfirstlane_b32 s92, v2")
        e("L_rep:")
        e("  s_memrealtime s[94:95]")
        e("  s_waitcnt lgkmcnt(0)")
        e("  s_lshl_b32 s94, s94, 3")
        e("  s_sub_u32 s94, s94, s92")
        e("  s_cmp_lt_u32 s94, 32000")
        e("  s_cbranch_scc1 L_rep")
        return
    if OPT["repc"] >= 0:
        e("  s_waitcnt lgkmcnt(0)")
        e("  s_cmp_lt_u32 s18, 4")
        e(f"  s_cselect_b32 s92, s{SB+2*OPT['repc']}, s{SB+2*OPT['repl']}")
        e("  s_cmp_eq_u32 s92, 0")
        e(f"  s_cselect_b32 s92, s{SB}, s92")
        e("L_rep:")
        e("  s_memrealtime s[94:95]")
        e("  s_waitcnt lgkmcnt(0)")
        e("  s_sub_u32 s94, s94, s92")
        e("  s_cmp_lt_u32 s94, 4000")
        e("  s_cbranch_scc1 L_rep")
        return
    e("  s_waitcnt lgkmcnt(0)")
    e(f"  s_add_u32 s92, s16, {ST_OFF}"); e("  s_addc_u32 s93, s17, 0")
    e("  s_mov_b32 s94, 0x100000"); e("  s_mov_b32 s95, 0x00020000")
    e("  s_lshl_b32 s96, s2, 3"); e("  s_add_u32 s96, s96, s18"); e("  s_lshl_b32 s96, s96, 7")
    e("  v_mov_b32 v250, 0")
    for i in range(NST):
        e(f"  v_mov_b32 v252, s{SB+2*i}"); e(f"  v_mov_b32 v253, s{SB+1+2*i}")
        e(f"  buffer_store_dwordx2 v[252:253], v250, s[92:95], s96 offen offset:{i*8}")
        e("  s_nop 1")
def lds_spin(vaddr, off, val, vt):
    l = lab("sp"); d = lab("spd")
    e(f"  s_mov_b32 s61, {OPT['spin']*8}")
    e(f"{l}:")
    e(f"  ds_read_b32 v{vt}, v{vaddr} offset:{off}")
    e("  s_sub_u32 s61, s61, 1")
    e("  s_waitcnt lgkmcnt(0)")
    e(f"  v_readfirstlane_b32 s60, v{vt}")
    e("  s_cmp_eq_u32 s61, 0")
    e(f"  s_cbranch_scc1 {d}")
    e(f"  s_cmp_ge_u32 s60, {val}")
    if LMODE[0] and OPT["lsl"]:
        e(f"  s_cbranch_scc1 {d}")
        e(f"  s_sleep {OPT['lsl']}")
        e(f"  s_branch {l}")
    else:
        e(f"  s_cbranch_scc0 {l}")
    e(f"{d}:")
def lds_inc(vaddr, off, vone):
    e("  s_mov_b64 exec, 1")
    e(f"  ds_add_u32 v{vaddr}, v{vone} offset:{off}")
    e("  s_mov_b64 exec, -1")

e(f"; @launch grid=(256,1,1) block=(512,1,1) lds={LDS_TOTAL}")
e('.amdgcn_target "amdgcn-amd-amdhsa--gfx950"')
e(".text")
e(f".globl {NAME}\n.p2align 8\n.type {NAME},@function\n{NAME}:")
e("  s_cmp_ge_u32 s2, 256")
e("  s_cbranch_scc1 L_end")
if OPT["badx"]:
    e("  s_lshr_b32 s3, s2, 5"); e("  s_lshl_b32 s2, s2, 3"); e("  s_and_b32 s2, s2, 255"); e("  s_or_b32 s2, s2, s3")
e("  s_load_dwordx8 s[4:11], s[0:1], 0")
e("  s_load_dwordx4 s[12:15], s[0:1], 32")
e("  s_load_dwordx2 s[16:17], s[0:1], 48")
stamp(0)
e("  v_lshrrev_b32 v1, 6, v0")
e("  v_and_b32 v0, 63, v0")
e("  v_readfirstlane_b32 s18, v1")
if OPT["swap"]: e("  s_xor_b32 s18, s18, 4")
stamp_init()
e("  s_and_b32 s19, s2, 7")
e("  s_lshr_b32 s20, s2, 3")
e("  s_lshr_b32 s21, s20, 2")
e("  s_and_b32 s20, s20, 3")
e("  s_add_u32 s23, s20, s21")
e("  s_and_b32 s22, s23, 3")
e("  s_cmp_lt_u32 s18, 4")
e("  s_cbranch_scc1 L_compute")

LMODE[0] = True
if OPT["grp"]:
    G = OPT["grp"]
    tab = 0
    for v in range(11): tab |= ((v % G)*9//G) << (4*v)
    e(f"  s_mov_b32 s24, {tab & 0xffffffff}"); e(f"  s_mov_b32 s25, {tab >> 32}")
    e("  s_lshl_b32 s23, s23, 2")
    e("  s_lshr_b64 s[24:25], s[24:25], s23")
    e("  s_and_b32 s23, s24, 15")
    if OPT["gx"]:
        e("  s_add_u32 s23, s23, s19")
        e("  s_cmp_ge_u32 s23, 9"); e("  s_cselect_b32 s24, 9, 0"); e("  s_sub_u32 s23, s23, s24")
elif OPT["rot"]:
    e("  s_add_u32 s23, s23, s20"); e("  s_add_u32 s23, s23, s19")
    for _ in range(2):
        e("  s_cmp_ge_u32 s23, 9"); e("  s_cselect_b32 s24, 9, 0"); e("  s_sub_u32 s23, s23, s24")
else:
    e("  s_mov_b32 s23, 0")
e("  s_sub_u32 s34, s18, 4")
e("  s_lshl_b32 s38, s21, 7"); e("  s_lshl_b32 s39, s34, 5"); e("  s_add_u32 s38, s38, s39")
e("  v_lshrrev_b32 v30, 3, v0")
e("  v_add_u32 v30, s38, v30")
e("  v_mul_u32_u24 v30, 1152, v30")
e("  v_lshrrev_b32 v31, 4, v0")
e("  v_xor_b32 v31, v31, v0")
e("  v_and_b32 v31, 7, v31")
e("  v_lshl_add_u32 v5, v31, 4, v30")
e("  v_xor_b32 v31, 4, v31")
e("  v_lshl_add_u32 v6, v31, 4, v30")
e(f"  v_add_u32 v6, {8*1152-1024}, v6")
e(f"  v_add_u32 v7, {16*1152-2048}, v5")
e(f"  v_add_u32 v8, {16*1152-2048}, v6")
e("  s_mul_i32 s35, s19, 1152")
e("  s_mul_i32 s38, s20, 288")
e("  s_add_u32 s38, s38, s35")
e("  s_and_b32 s39, s20, 1")
e("  s_lshl_b32 s33, s39, 8")
e("  s_lshl_b32 s32, s39, 5")
e("  s_sub_u32 s39, s38, s33")
e("  s_add_u32 s38, s38, s32")
if OPT["xw"] & 1:
    e("  s_lshl_b32 s38, s20, 8"); e("  s_add_u32 s38, s38, s35"); e("  s_add_u32 s38, s38, 128"); e("  s_sub_u32 s39, s38, 128")
e("  v_mov_b32 v34, s38"); e("  v_mov_b32 v35, s39")
e("  s_lshl_b32 s36, s34, 6")
for n in range(3):
    r, c = 12 + 2*n, 13 + 2*n
    e(["  v_add_u32 v30, s36, v0", "  v_add_u32 v30, 256, v30", "  v_add_u32 v30, 512, v0"][n])
    e("  v_mul_u32_u24 v31, 3641, v30")
    e(f"  v_lshrrev_b32 v{r}, 16, v31")
    e(f"  v_mul_u32_u24 v31, 18, v{r}")
    e(f"  v_sub_u32 v{c}, v30, v31")
    e(f"  v_and_b32 v33, 0x13, v{r}")
    e(f"  v_bfe_u32 v36, v{r}, 2, 1")
    e("  v_lshl_or_b32 v33, v36, 3, v33")
    e(f"  v_bfe_u32 v36, v{r}, 3, 1")
    e(f"  v_cmp_lt_u32 vcc, 15, v{c}")
    e("  v_lshl_or_b32 v33, v36, 2, v33")
    e("  v_mul_u32_u24 v33, 9216, v33")
    e("  v_cndmask_b32 v36, v34, v35, vcc")
    e(f"  v_lshl_add_u32 v33, v{c}, 4, v33")
    e(f"  v_add_u32 v{2+n}, v36, v33")
e(f"  s_mul_i32 s48, s23, {64*9216}")
e("  s_lshl_b32 s49, s23, 7")
e("  s_lshl_b32 s32, s34, 10")
e("  s_and_b32 s33, s34, 1")
e(f"  s_mul_i32 s33, s33, {IMG}")
e("  s_add_u32 s33, s33, 8192")
e("  s_lshr_b32 s35, s34, 1")
e("  s_lshl_b32 s36, s34, 12")
e(f"  s_add_u32 s36, s36, {XBASE}")
e("  s_mov_b32 s50, 0")
e("  s_mov_b32 s51, s36")
e(f"  s_add_u32 s37, s36, {3*XSLOT}")
e("  s_bitcmp1_b32 s34, 0")
e("  s_waitcnt lgkmcnt(0)")
e("  s_cselect_b32 s56, s8, s6"); e("  s_cselect_b32 s57, s9, s7")
e(f"  s_mov_b32 s58, {W_BYTES}"); e("  s_mov_b32 s59, 0x00020000")
srd(24, "s4", "s5", X_BYTES)
srd(40, "s6", "s7", W_BYTES)
srd(44, "s8", "s9", W_BYTES)
def g_issue(par):
    if par == 0:
        e("  s_mov_b32 m0, s51")
        e(f"  s_add_u32 s51, s51, {XSLOT}")
        for q in range(4): e(f"  buffer_load_dwordx4 v{5+q}, s[24:27], s49 offen offset:{q*1024}{NTX} lds")
        e("  s_cmp_eq_u32 s51, s37"); e("  s_cselect_b32 s51, s36, s51")
        e("  s_add_u32 s49, s49, 128"); e("  s_cmp_eq_u32 s49, 1152"); e("  s_cselect_b32 s49, 0, s49")
    e("  s_add_u32 s52, s50, s32")
    for mat in range(2):
        for n in range(2):
            e(f"  s_add_u32 m0, s52, {mat*IMG + n*4096}")
            e("  s_nop 0")
            e(f"  buffer_load_dwordx4 v{2+n}, s[{40+4*mat}:{43+4*mat}], s48 offen{NTS} lds")
    l = lab("p8")
    e(f"  s_cmp_eq_u32 s35, {par}")
    e(f"  s_cbranch_scc0 {l}")
    e("  s_add_u32 m0, s50, s33")
    e("  s_nop 0")
    e(f"  buffer_load_dwordx4 v4, s[56:59], s48 offen{NTS} lds")
    e(f"{l}:")
    e(f"  s_add_u32 s48, s48, {32*9216}"); e(f"  s_cmp_eq_u32 s48, {576*9216}"); e("  s_cselect_b32 s48, 0, s48")
    e(f"  s_add_u32 s50, s50, {WSLOT}"); e(f"  s_cmp_eq_u32 s50, {6*WSLOT}"); e("  s_cselect_b32 s50, 0, s50")
stamp(1)
FOLD = OPT["fold"] and STAMP != 3 and not OPT["early"]
if not FOLD:
    g_issue(0)
    if not OPT["early"]: g_issue(1)
    stamp(11) if STAMP == 1 else None
def spf():
    if OPT["spf"]:
        for k in range(5): e(f"  s_load_dword s63, s[10:11], s62 offset:{k*64}")
        e("  s_add_u32 s62, s62, 320")
def lbody(it):
    e("  s_waitcnt vmcnt(4)")
    e("  s_barrier")
    if STAMP == 3: stamp(1 + it, True)
    if 0 <= OPT["vpf"] < 8:
        if STAMP == 3:
            if it == OPT["vpf"]: e(f"  buffer_load_dword v17, v18, s[96:99], 0 offen{NTP}")
        else:
            e(f"  s_cmp_eq_u32 s53, {8 - OPT['vpf']}")
            e("  s_cbranch_scc0 L_novpf")
            e(f"  buffer_load_dword v17, v18, s[96:99], 0 offen{NTP}")
            e("L_novpf:")
    g_issue(0); spf()
    e("  s_waitcnt vmcnt(8)")
    e("  s_barrier")
    g_issue(1); spf()
NIT = 8
if OPT["early"]:
    NIT = 7
    e("  s_waitcnt vmcnt(0)")
    e("  s_barrier")
    if STAMP == 3: stamp(1, True)
    g_issue(1); g_issue(0)
    e("  s_waitcnt vmcnt(8)")
    e("  s_barrier")
    g_issue(1)
if STAMP == 3:
    for it in range(8 - NIT, 8): lbody(it)
else:
    if FOLD:
        e("  s_mov_b32 s53, 9")
        e("  s_branch L_lf0")
        e("L_lloop:")
        e("  s_waitcnt vmcnt(4)"); e("  s_barrier")
        e("L_lf0:")
        g_issue(0)
        e("  s_cmp_eq_u32 s53, 9"); e("  s_cbranch_scc1 L_lf1")
        e("  s_waitcnt vmcnt(8)"); e("  s_barrier")
        e("L_lf1:")
        g_issue(1)
    else:
        e(f"  s_mov_b32 s53, {NIT}")
        e("L_lloop:")
        lbody(0)
    e("  s_sub_u32 s53, s53, 1"); e("  s_cmp_lg_u32 s53, 0"); e("  s_cbranch_scc1 L_lloop")
if OPT["spf"]: e("  s_load_dword s63, s[10:11], s62")
e(f"  s_mul_i32 s53, s22, {256 if OPT['xw'] & 2 else 288}")
e("  s_lshl_b32 s62, s34, 6")
for n in range(3):
    r = 12 + 2*n
    e("  v_add_u32 v30, s62, v0" if n == 0 else "  v_add_u32 v30, 192, v30")
    e("  v_mul_u32_u24 v31, 3641, v30")
    e(f"  v_lshrrev_b32 v{r}, 16, v31")
    e(f"  v_mul_u32_u24 v31, 18, v{r}")
    e("  v_sub_u32 v32, v30, v31")
    e(f"  v_mul_u32_u24 v31, 1152, v{r}")
    if OPT["xw"] & 2: e("  v_and_b32 v32, 15, v32")
    e("  v_lshl_add_u32 v31, v32, 4, v31")
    e(f"  v_add_u32 v{9+n}, s53, v31")
e(f"  v_mov_b32 v20, {SY}"); e("  v_mov_b32 v21, 1"); e("  v_mov_b32 v22, 0")
e("  s_lshl_b32 s53, s34, 2")
e("  v_add_u32 v26, s53, v20")
srd(28, "s14", "s15", 256)
e("  s_lshr_b32 s62, s2, 3"); e("  s_lshl_b32 s62, s62, 2"); e("  s_add_u32 s62, s62, s34")
if OPT["vpf"] >= 0:
    e("  s_mul_i32 s55, s62, 5184")
    e(f"  s_mul_i32 s53, s19, {576*1152}")
    e("  s_add_u32 s55, s55, s53")
    e("  v_min_u32 v18, 41, v0")
    e("  v_lshlrev_b32 v18, 7, v18")
    e("  v_add_u32 v18, s55, v18")
    srd(96, "s10", "s11", W_BYTES)
srd(40, "s10", "s11", W_BYTES)
e(f"  s_mul_i32 s49, s19, {576*1152}")
def piece_row(dst, p):
    e(f"  s_add_u32 s52, s20, {p}"); e("  s_and_b32 s52, s52, 3")
    e(f"  s_lshr_b32 {dst}, s52, 1"); e(f"  s_mul_i32 {dst}, {dst}, 288")
    e("  s_and_b32 s52, s52, 1"); e("  s_lshl_b32 s52, s52, 4")
    e(f"  s_add_u32 {dst}, {dst}, s52"); e(f"  s_add_u32 {dst}, {dst}, 128")
def d_issue(sig):
    so = ["s48", "s54"]; vb = [9, 9]
    if sig < 8:
        for im in range(2):
            p, i = ORDER[2*sig + im]
            e(f"  s_add_u32 s52, s20, {p}"); e("  s_and_b32 s52, s52, 3"); e("  s_mul_i32 s52, s52, 9")
            e(f"  s_add_u32 s52, s52, {1 + 2*i}"); e("  s_lshr_b32 s52, s52, 1")
            e(f"  s_mul_i32 {so[im]}, s52, {32*1152}"); e(f"  s_add_u32 {so[im]}, {so[im]}, s49")
        la = [2*sig*IMG, (2*sig+1)*IMG]
    else:
        for im in range(2):
            piece_row("s50", 2*im); piece_row("s51", 2*im+1)
            e("  s_sub_u32 s51, s51, 16")
            e("  s_mul_i32 s50, s50, 1152"); e("  s_mul_i32 s51, s51, 1152")
            e("  v_mov_b32 v33, s50"); e("  v_mov_b32 v34, s51")
            for n in range(3):
                e(f"  v_cmp_lt_u32 vcc, 15, v{12+2*n}")
                e("  s_nop 1")
                e("  v_cndmask_b32 v35, v33, v34, vcc")
                e(f"  v_add_u32 v{27+3*im+n}, v35, v{9+n}")
            e(f"  s_mov_b32 {so[im]}, s49")
        vb = [27, 30]
        la = [16*IMG, 0]
    for im in range(2):
        for n in range(3):
            e(f"  s_add_u32 m0, s32, {la[im] + n*3072}")
            e("  s_nop 0")
            e(f"  buffer_load_dwordx4 v{vb[im]+n}, s[40:43], {so[im]} offen{NTD} lds")
VP = 1 if OPT["vpf"] == 8 else 0
e("  buffer_load_dword v23, v22, s[28:31], 0 offen sc1")
if VP: e(f"  buffer_load_dword v17, v18, s[96:99], 0 offen{NTP}")
e(f"  s_waitcnt vmcnt({5+VP})")
e("  s_barrier")
stamp(2)
if STAMP == 3: stamp(9, True)
e("  s_cmp_eq_u32 s34, 3")
e("  s_cbranch_scc1 L_poller")
d_issue(0)
e(f"  s_waitcnt vmcnt({6+VP})")
e("  s_barrier")
e("  ds_read_b32 v23, v20")
d_issue(1)
srd(28, "s16", "s17", WS_USE)
WP = OPT["wdpre"]; LAG = OPT["wdw"] // 6
assert 2 <= WP <= 4
MS = {1: O_M, 3: O_M + 4, 5: O_M + 8, 7: O_M + 12}
done = set()
def landed(k):
    for m in sorted(MS):
        if m <= k and m not in done:
            lds_inc(20, MS[m], 21); done.add(m)
            if m == 1: stamp(3)
for sg in range(2, 8):
    if sg == WP:
        e("  s_waitcnt vmcnt(0)"); landed(sg - 1)
        lds_spin(20, O_G1, 4, 24)
    d_issue(sg)
    e(f"  s_waitcnt vmcnt({6*LAG})")
    landed(sg - LAG)
    if OPT["wsl"]: e(f"  s_sleep {OPT['wsl']}")
e("  s_waitcnt vmcnt(0)")
landed(7)
stamp(4)
if OPT["xstop"]: e("  s_branch L_fin")
lds_spin(20, O_CONS, 4, 24)
d_issue(8)
e("  s_waitcnt vmcnt(0)")
lds_inc(20, O_M + 16, 21)
stamp(6)
OWNL = IMG
e("L_reduce:")
srd(24, "s12", "s13", X_BYTES)
srd(28, "s16", "s17", WS_USE)
e("  s_and_b32 s45, s19, 1")
e("  s_lshl_b32 s44, s45, 1"); e("  s_add_u32 s44, s44, s34")
e("  s_add_u32 s46, s45, 4"); e("  s_cmp_eq_u32 s34, 2"); e("  s_cselect_b32 s44, s46, s44")
e("  s_add_u32 s46, s44, 3"); e("  s_cmp_eq_u32 s34, 3"); e("  s_cselect_b32 s44, s46, s44")
e(f"  s_mul_i32 s44, s44, {KST}")
e("  s_lshr_b32 s45, s19, 1"); e("  s_lshl_b32 s45, s45, 8"); e("  s_andn2_b32 s46, s2, 7"); e("  s_add_u32 s45, s45, s46")
e("  s_lshl_b32 s45, s45, 10"); e("  s_add_u32 s44, s44, s45")
e(f"  s_add_u32 s44, s44, {P_OFF}")
e("  v_lshlrev_b32 v5, 4, v0")
e("  v_add_u32 v6, s44, v5")
e(f"  v_add_u32 v7, {KST}, v6")
RS = [40, 41, 42, 43, 44, 45, 46, 47]
for r in range(8):
    e(f"  s_add_u32 s{RS[r]}, s19, {r}"); e(f"  s_and_b32 s{RS[r]}, s{RS[r]}, 7"); e(f"  s_lshl_b32 s{RS[r]}, s{RS[r]}, 10")
e("  s_lshl_b32 s48, s34, 10"); e(f"  s_add_u32 s48, s48, {OWNL}")
e("  v_add_u32 v8, s48, v5")
e("  s_lshl_b32 s48, s21, 7"); e("  s_lshl_b32 s49, s19, 4"); e("  s_add_u32 s48, s48, s49"); e("  s_mul_i32 s48, s48, 1152")
e("  s_mul_i32 s49, s22, 288"); e("  s_add_u32 s48, s48, s49"); e("  s_lshl_b32 s49, s34, 6"); e("  s_add_u32 s48, s48, s49")
e("  v_and_b32 v1, 15, v0"); e("  v_mul_u32_u24 v1, 1152, v1"); e("  v_lshrrev_b32 v2, 4, v0"); e("  v_lshl_add_u32 v1, v2, 3, v1")
e("  s_mov_b32 s50, 0xffff0000")
e("  v_readfirstlane_b32 s3, v23")
e("  s_andn2_b32 s53, s2, 7"); e("  s_lshl_b32 s53, s53, 2"); e("  s_lshr_b32 s62, s19, 1"); e("  s_add_u32 s53, s53, s62")
e("  s_lshl_b32 s53, s53, 7"); e(f"  s_add_u32 s53, s53, {FH_OFF}")
if OPT["dec"]:
    e("  s_add_u32 s52, s53, 64"); e("  s_cmp_eq_u32 s34, 3"); e("  s_cselect_b32 s53, s52, s53")
e("  s_max_u32 s52, s34, 1"); e("  s_sub_u32 s52, s52, 1")
e("  s_add_u32 s3, s3, s52"); e("  s_add_u32 s3, s3, 4")
e("  s_sub_u32 s62, 3, s52")
e("  s_lshl_b32 s52, s52, 2")
e("  v_add_u32 v26, s52, v20")
PR = [32, 33, 35, 36, 37, 38, 39, 51]
lds_spin(26, O_TG, 4, 24)
stamp(7)
e(f"  s_mov_b32 s63, {OPT['spin']}")
e("L_rprobe:")
e("  s_sub_u32 s63, s63, 1"); e("  s_cmp_eq_u32 s63, 0"); e("  s_cbranch_scc1 L_fin")
for k in range(8): e(f"  s_load_dword s{PR[k]}, s[16:17], s53 offset:{k*512} glc")
e("  s_waitcnt lgkmcnt(0)")
for k in range(8):
    e(f"  s_sub_u32 s{PR[k]}, s{PR[k]}, s3")
    if k: e(f"  s_max_u32 s32, s32, s{PR[k]}")
e("  s_cmp_gt_u32 s32, s62")
e("  s_cbranch_scc1 L_rprobe")
stamp(10)
e("  s_cmp_eq_u32 s34, 3"); e("  s_cbranch_scc1 L_rtag")
if OPT["rlate"]: lds_spin(20, O_TG + 8, 4, 24)
R0 = 1 if OPT["own"] else 0
def accum(k, srcs):
    base = 100 if k == 0 else 116
    for p, r in enumerate(srcs):
        e(f"  v_lshlrev_b32 v{base+2*p}, 16, v{r}"); e(f"  v_and_b32 v{base+1+2*p}, s50, v{r}")
    if k:
        for p in range(len(srcs)): e(f"  v_pk_add_f32 v[{100+2*p}:{101+2*p}], v[{100+2*p}:{101+2*p}], v[{116+2*p}:{117+2*p}]")
for r in range(R0, 8): e(f"  buffer_load_dwordx4 v[{32+4*r}:{35+4*r}], v6, s[28:31], s{RS[r]} offen sc1")
if R0: e("  ds_read_b128 v[32:35], v8")
for r in range(8):
    e("  s_waitcnt lgkmcnt(0)" if (r == 0 and R0) else f"  s_waitcnt vmcnt({7-r})")
    accum(r, [32+4*r+x for x in range(4)])
for p in range(4): e(f"  v_cvt_pk_bf16_f32 v{32+p}, v{100+2*p}, v{101+2*p}")
stamp(8)
for k in range(2): e(f"  buffer_store_dwordx2 v[{32+2*k}:{33+2*k}], v1, s[24:27], s48 offen offset:{k*32}")
if STAMP: e("  s_waitcnt vmcnt(0)")
stamp(9)
e("  s_branch L_fin")
e("L_rtag:")
for r in range(R0, 8):
    e(f"  buffer_load_dwordx4 v[{32+8*r}:{35+8*r}], v6, s[28:31], s{RS[r]} offen sc1")
    e(f"  buffer_load_dwordx4 v[{36+8*r}:{39+8*r}], v7, s[28:31], s{RS[r]} offen sc1")
if R0:
    e("  ds_read_b128 v[32:35], v8"); e("  ds_read_b128 v[36:39], v8 offset:1024")
for r in range(8):
    e("  s_waitcnt lgkmcnt(0)" if (r == 0 and R0) else f"  s_waitcnt vmcnt({14-2*r})")
    a_, b_ = 32 + 8*r, 36 + 8*r
    e(f"  v_xor_b32 v{a_+3}, v23, v{a_+3}"); e(f"  v_xor_b32 v{b_+3}, v23, v{b_+3}")
    e(f"  v_or_b32 v24, v{a_+3}, v{b_+3}" if r == 0 else f"  v_or3_b32 v24, v{a_+3}, v{b_+3}, v24")
    accum(r, [a_, a_+1, a_+2, b_, b_+1, b_+2])
e("  v_cmp_ne_u32 vcc, 0, v24")
for p in range(6): e(f"  v_cvt_pk_bf16_f32 v{32+p}, v{100+2*p}, v{101+2*p}")
e("  s_cbranch_vccnz L_rprobe")
stamp(8)
for k in range(3): e(f"  buffer_store_dwordx2 v[{32+2*k}:{33+2*k}], v1, s[24:27], s48 offen offset:{k*32}")
if STAMP: e("  s_waitcnt vmcnt(0)")
stamp(9)
e("  s_branch L_fin")

e("L_poller:")
e(f"  s_mov_b32 s60, {OPT['spin']}")
e(f"  s_waitcnt vmcnt({VP})")
e("L_npoll:")
e("  v_readfirstlane_b32 s3, v23")
e("  s_cmp_lg_u32 s3, 0")
e("  s_cbranch_scc1 L_nok")
e("  s_sub_u32 s60, s60, 1")
e("  s_cmp_eq_u32 s60, 0")
e("  s_cbranch_scc1 L_nok")
e("  buffer_load_dword v23, v22, s[28:31], 0 offen sc1")
e("  s_waitcnt vmcnt(0)")
e("  s_branch L_npoll")
e("L_nok:")
e("  ds_write_b32 v20, v23")
e("  s_waitcnt lgkmcnt(0)")
e("  s_barrier")
for p in range(1, 4):
    e(f"  s_add_u32 s52, s20, {p}"); e("  s_and_b32 s52, s52, 3"); e("  s_lshl_b32 s52, s52, 3")
    e("  s_lshl_b32 s53, s21, 5"); e("  s_add_u32 s53, s53, s19"); e("  s_add_u32 s53, s53, s52")
    e("  s_lshl_b32 s53, s53, 9"); e(f"  s_add_u32 s{24+p}, s53, {FH_OFF}")
if OPT["xstop"]: e("  s_branch L_fin")
lds_spin(20, 12, 1, 24)
stamp(6)
e(f"  s_mov_b32 s60, {OPT['spin']}")
for k in range(12): e(f"  s_mov_b32 s{36+k}, 0")
for k in range(4): e(f"  s_mov_b32 s{48+k}, 0")
e("L_hpoll:")
for mt in range(4):
    for p in range(3): e(f"  s_load_dword s{36+3*mt+p}, s[16:17], s{25+p} offset:{mt*128} glc")
if not OPT["pipe"] & 2: e("  s_waitcnt lgkmcnt(0)")
for mt in range(4):
    for p in range(3):
        d = "s32" if p == 0 else "s33"
        e(f"  s_sub_u32 {d}, s{36+3*mt+p}, s3"); e(f"  s_cmp_gt_u32 {d}, 7"); e(f"  s_cselect_b32 {d}, 0, {d}")
        if p: e("  s_min_u32 s32, s32, s33")
    e(f"  s_max_u32 s{48+mt}, s{48+mt}, s32")
    e(f"  v_mov_b32 v{28+mt}, s{48+mt}")
e(f"  ds_write_b128 v20, v[28:31] offset:{O_SIG}")
e("  s_min_u32 s35, s48, s49"); e("  s_min_u32 s32, s50, s51"); e("  s_min_u32 s35, s35, s32")
if STAMP:
    for st in (1, 2):
        e(f"  s_cmp_ge_u32 s35, {st}"); e(f"  s_cbranch_scc0 L_hs{st}")
        e(f"  s_cmp_eq_u32 s{SB+2*(2+st)}, 0"); e(f"  s_cbranch_scc0 L_hs{st}")
        stamp(2 + st); e("  s_waitcnt lgkmcnt(0)")
        e(f"L_hs{st}:")
    e(f"  s_add_u32 s{SB+2*13}, s{SB+2*13}, 1")
e("  s_sub_u32 s60, s60, 1"); e("  s_cmp_eq_u32 s60, 0"); e("  s_cbranch_scc1 L_hdone")
e("  s_cmp_ge_u32 s35, 3")
e("  s_cbranch_scc0 L_hpoll")
e("L_hdone:")
stamp(5)
e("  s_waitcnt lgkmcnt(0)")
e("  s_branch L_reduce")

LMODE[0] = False
e("L_compute:")
if OPT["prio"]: e(f"  s_setprio {OPT['prio']}")
NB = 6; D = 5
AB = 16; XB = 40; OWN = 56; ACC = 112; ACC2 = 184
e(f"  v_mov_b32 v1, {SY}")
e("  v_and_b32 v10, 31, v0")
e("  v_lshl_add_u32 v11, v10, 2, v1")
e("  v_mov_b32 v105, 0")
e("  ds_write_b32 v11, v105")
e("  v_lshrrev_b32 v10, 5, v0"); e("  v_lshlrev_b32 v10, 4, v10"); e("  v_bfe_u32 v11, v0, 2, 3"); e("  v_add_u32 v10, v10, v11")
e("  v_mul_u32_u24 v10, 288, v10"); e("  v_and_b32 v11, 3, v0"); e("  v_lshl_add_u32 v2, v11, 3, v10")
e("  v_lshrrev_b32 v10, 2, v0"); e("  v_mul_u32_u24 v10, 288, v10"); e("  v_lshl_add_u32 v6, v11, 3, v10")
e(f"  v_add_u32 v7, {6*IMG}, v6"); e(f"  v_add_u32 v8, {12*IMG}, v6")
e("  s_lshl_b32 s40, s18, 12"); e(f"  s_add_u32 s40, s40, {XBASE}")
e("  v_and_b32 v10, 15, v0"); e("  v_lshrrev_b32 v11, 1, v10"); e("  v_lshrrev_b32 v13, 4, v0"); e("  v_xor_b32 v11, v11, v13")
e("  v_lshlrev_b32 v11, 4, v11"); e("  v_lshl_add_u32 v10, v10, 7, v11")
e("  v_add_u32 v3, s40, v10"); e("  v_xor_b32 v10, 64, v10"); e("  v_add_u32 v4, s40, v10")
e("  v_lshlrev_b32 v5, 4, v0")
e("  v_mov_b32 v10, 1")
for i in range(144): e(f"  v_mov_b32 v{ACC+i}, 0")
K1 = -2*0.7978845608028654*1.4426950408889634
K3 = K1*0.044715
e(f"  s_mov_b32 s54, {f2u(K3)}"); e(f"  s_mov_b32 s55, {f2u(K3)}")
e(f"  v_mov_b32 v14, {f2u(K1)}"); e(f"  v_mov_b32 v15, {f2u(K1)}")
KS = [24, 25, 26, 27, 32, 33, 34, 35, 36, 37, 38, 39]
HV = [5, 9, 12, 13]
for k in range(12): e(f"  s_mov_b32 s{KS[k]}, {k*KST}")
e("  s_lshl_b32 s40, s21, 5"); e("  s_add_u32 s40, s40, s19"); e("  s_lshl_b32 s41, s18, 8"); e("  s_add_u32 s40, s40, s41")
for p in (3, 2, 1, 0):
    e(f"  s_add_u32 s41, s20, {p}"); e("  s_and_b32 s41, s41, 3"); e("  s_lshl_b32 s41, s41, 3"); e("  s_add_u32 s41, s41, s40")
    e("  s_lshl_b32 s41, s41, 10")
    e(f"  v_add_u32 v{HV[p]}, s41, v5")
e("  s_lshl_b32 s43, s2, 2"); e("  s_add_u32 s43, s43, s18"); e("  s_lshl_b32 s43, s43, 7"); e(f"  s_add_u32 s43, s43, {FH_OFF}")
e("  s_lshl_b32 s40, s18, 2")
e("  v_add_u32 v106, s40, v1")
e("  s_waitcnt lgkmcnt(0)")
srd(28, "s16", "s17", WS_USE)
e(f"  s_add_u32 s44, s16, {P_OFF}"); e("  s_addc_u32 s45, s17, 0"); e(f"  s_mov_b32 s46, {P_OFF}"); e("  s_mov_b32 s47, 0x00020000")
if OPT["cpf"]:
    e("  s_lshr_b32 s62, s2, 3"); e("  s_lshl_b32 s62, s62, 2"); e("  s_add_u32 s62, s62, s18")
    e("  s_getpc_b64 s[60:61]")
    e("L_pc:")
    e(f"  s_sub_u32 s60, s60, L_pc-{NAME}")
    e("  s_subb_u32 s61, s61, 0")
    e("  s_lshl_b32 s53, s62, 6")
    e("  s_load_dword s63, s[60:61], s53")
    e("  s_load_dword s63, s[60:61], s53 offset:8192")
    e("  s_add_u32 s53, s53, 16384")
    e(f"  s_min_u32 s53, s53, L_codeend-{NAME}-4")
    e("  s_load_dword s63, s[60:61], s53")
e("  s_or_b32 s53, s2, s18")
e("  s_cmp_eq_u32 s53, 0")
e("  s_cbranch_scc0 L_nononce")
srd(56, "s14", "s15", 256)
e("  s_memrealtime s[96:97]")
e("  s_waitcnt lgkmcnt(0)")
e("  s_lshl_b32 s53, s96, 3")
e("  s_max_u32 s53, s53, 8")
e("  v_mov_b32 v104, s53")
e("  buffer_store_dword v104, v105, s[56:59], 0 offen sc1")
e("L_nononce:")
if OPT["warmf"]:
    e("  s_mov_b64 exec, 1")
    e("  buffer_store_dword v105, v105, s[28:31], s43 offen sc1")
    e("  s_mov_b64 exec, -1")

def acc1(t, mat, mh):
    if t == 8: return ACC + 8*16 + mh*8 + mat*4
    return ACC + ((t//2)*2 + mh)*16 + (t & 1)*8 + mat*4
def a1read(j, d):
    kk, r = j // 18, j % 18
    t, mat = r // 2, r % 2
    b = AB + 4*(j % NB) + 2*d
    return f"  ds_read_b64_tr_b16 v[{b}:{b+1}], v2 offset:{kk*WSLOT + mat*IMG + d*8*288 + t*32}"
def x1read(kk, mh):
    b = XB + 8*kk + 4*mh
    return f"  ds_read_b128 v[{b}:{b+3}], v{3+kk} offset:{mh*2048}"
stamp(1)
e("  s_barrier")
stamp(2)
if STAMP: e("  s_waitcnt lgkmcnt(0)")
e(x1read(0, 0)); e(x1read(0, 1))
for j in range(D):
    e(a1read(j, 0)); e(a1read(j, 1))
e("  s_mov_b32 s48, 9")
e("  s_mov_b32 s51, 0")
e("L_loop:")
if OPT["cyc"]:
    e("  s_cmp_eq_u32 s48, 5"); e("  s_cbranch_scc0 L_nocyc")
    e("  s_memtime s[96:97]"); stamp(1)
    e("L_nocyc:")
e("  s_add_u32 s51, s51, 1"); e("  s_cmp_eq_u32 s51, 3")
e(f"  s_mov_b32 s52, {2*WSLOT}"); e(f"  s_cmov_b32 s52, {(-4*WSLOT) & 0xffffffff}")
e(f"  s_mov_b32 s53, {XSLOT}"); e(f"  s_cmov_b32 s53, {(-2*XSLOT) & 0xffffffff}")
e("  s_cselect_b32 s51, 0, s51")
q = [("x", 0), ("x", 0)] + [("a", j) for j in range(D) for _ in range(2)]
for j in range(36):
    kk, r = j // 18, j % 18
    t, mat = r // 2, r % 2
    if j == 18:
        e("  s_cmp_eq_u32 s48, 1"); e("  s_cbranch_scc1 L_peel")
        q_mid = list(q)
    if r == 18 - D:
        e("  s_barrier")
        if kk == 1:
            e("  v_add_u32 v2, s52, v2"); e("  v_add_u32 v3, s53, v3")
        e(x1read(1 - kk, 0)); e(x1read(1 - kk, 1)); q += [("x", kk+1)]*2
        if kk == 0: e("  v_add_u32 v4, s53, v4")
    WEV = OPT["wev"]
    want = [("a", j + x) for x in range(WEV)] if any(it == ("a", j) for it in q) else []
    need = [i for i, it in enumerate(q) if it in want or it == ("x", kk)]
    if need:
        e(f"  s_waitcnt lgkmcnt({len(q)-1-max(need)})")
        q = q[max(need)+1:]
    b = AB + 4*(j % NB)
    for mh in range(2):
        a = acc1(t, mat, mh); xb = XB + 8*kk + 4*mh
        e(f"  {M16} v[{a}:{a+3}], v[{b}:{b+3}], v[{xb}:{xb+3}], v[{a}:{a+3}]")
        e(a1read((j + D) % 36, mh)); q.append(("a", j + D))
e("  s_sub_u32 s48, s48, 1"); e("  s_branch L_loop")
e("L_peel:")
stamp(3)
if OPT["cyc"]:
    e("  s_memtime s[98:99]"); e("  s_waitcnt lgkmcnt(0)"); e(f"  s_sub_u32 s{SB+26}, s98, s96")
if OPT["ue"] < 0: lds_inc(1, O_G1, 10)
e("  ds_read_b32 v11, v1")
q_mid.append("n")

def blk(b): return [b, b+4, b+8]
BUF = {(0, 0): blk(OWN), (0, 1): blk(OWN+12), (0, 2): blk(OWN+24),
       (1, 0): blk(ACC), (2, 0): blk(ACC+12), (3, 0): blk(ACC+24),
       (1, 1): blk(ACC+36), (2, 1): blk(ACC+48), (3, 1): blk(ACC+60),
       (1, 2): blk(OWN), (2, 2): blk(OWN+12), (3, 2): blk(92)}
SH = {(0, 0): XB, (0, 1): XB+4, (1, 0): XB+8, (1, 1): XB+12}
vq = []
def gloads(p, g):
    return [f"  buffer_load_dwordx4 v[{r}:{r+3}], v{HV[p]}, s[28:31], s{KS[3*g+k]} offen sc1" for k, r in enumerate(BUF[(p, g)])]
def flag(stage):
    e(f"  v_add_u32 v104, {stage}, v11")
    e("  s_mov_b64 exec, 1")
    e(f"  buffer_store_dword v104, v105, s[28:31], s43 offen offset:{64 if (stage == 6 and OPT['dec']) else 0} sc1")
    e("  s_mov_b64 exec, -1")
    vq.append("f")
def wait_stores(lbl):
    global vq
    assert all(isinstance(it, str) for it in vq)
    k = max(i for i, it in enumerate(vq) if it == lbl)
    e(f"  s_waitcnt vmcnt({len(vq)-1-k})")
    vq = vq[k+1:]
def stages(ab, dst, tp):
    gs = [ab, ab+2, ab+8, ab+10]; us = [g + 4 for g in gs]
    P2 = lambda x: f"v[{x}:{x+1}]"
    A = [f"  v_pk_mul_f32 {P2(tp[p])}, {P2(gs[p])}, {P2(gs[p])}" for p in range(4)] + \
        [f"  v_pk_fma_f32 {P2(tp[p])}, {P2(tp[p])}, s[54:55], v[14:15]" for p in range(4)] + \
        [f"  v_pk_mul_f32 {P2(tp[p])}, {P2(tp[p])}, {P2(gs[p])}" for p in range(4)]
    E = [f"  v_exp_f32 v{tp[p]+h}, v{tp[p]+h}" for p in range(4) for h in range(2)]
    B1 = [f"  v_pk_mul_f32 {P2(gs[p])}, {P2(gs[p])}, {P2(us[p])}" for p in range(4)]
    B2 = [f"  v_pk_add_f32 {P2(tp[p])}, {P2(tp[p])}, 1.0 op_sel_hi:[1,0]" for p in range(4)]
    R = [f"  v_rcp_f32 v{tp[p]+h}, v{tp[p]+h}" for p in range(4) for h in range(2)]
    C = [f"  v_pk_mul_f32 {P2(gs[p])}, {P2(gs[p])}, {P2(tp[p])}" for p in range(4)] + \
        [f"  v_cvt_pk_bf16_f32 v{dst+p}, v{gs[p]}, v{gs[p]+1}" for p in range(4)]
    return A, E, B1, B2, R, C
def weave(t, o):
    r = []; o = list(o); n = len(t)
    for i, x in enumerate(t):
        r.append(x)
        k = -(-len(o) // (n - i))
        r += o[:k]; o = o[k:]
    return r + o
TS = [[XB, XB+2, XB+4, XB+6], [92, 94, 96, 98]]
U = [stages(ACC + 16*u, BUF[(0, u//3)][u % 3], TS[u & 1]) for u in range(9)]
V = []
if OPT["swp"]:
    V += [("need", 0)] + U[0][0]
    for u in range(9):
        A, E, B1, B2, R, C = U[u]
        V += weave(E, (U[u-1][5] + [("done", u-1)] if u else []) + B1)
        V += B2
        V += weave(R, ([("need", u+1)] + U[u+1][0]) if u < 8 else [])
    V += ["  s_nop 0"] + U[8][5] + [("done", 8)]
else:
    for u in range(9):
        A, E, B1, B2, R, C = U[u]
        V += [("need", u)] + A + E + B1 + B2 + R + ["  s_nop 0"] + C + [("done", u)]
lq = q_mid
mf_next = [0]
since = [99]
def emit_half():
    global lq
    f, mh = mf_next[0] // 2, mf_next[0] % 2
    j = 18 + f; t, mat = f // 2, f % 2
    if mh == 0:
        need = [i for i, it in enumerate(lq) if it == ("a", j) or it == ("x", 1)]
        if need:
            e(f"  s_waitcnt lgkmcnt({len(lq)-1-max(need)})")
            lq = lq[max(need)+1:]
    b = AB + 4*(j % NB); a = acc1(t, mat, mh); xb = XB + 8 + 4*mh
    e(f"  {M16} v[{a}:{a+3}], v[{b}:{b+3}], v[{xb}:{xb+3}], v[{a}:{a+3}]")
    lastm[(t, mh)] = len(out)
    if j + D < 36:
        e(a1read(j + D, mh)); lq.append(("a", j + D))
    mf_next[0] += 1
lastm = {}
def unit_tiles(u): return [(8, 0), (8, 1)] if u == 8 else [(2*(u//2), u % 2), (2*(u//2)+1, u % 2)]
def done(u):
    global lq
    g, k = u // 3, u % 3
    B = BUF[(0, g)]
    e(f"  buffer_store_dwordx4 v[{B[k]}:{B[k]+3}], v5, s[28:31], s{KS[u]} offen sc1"); vq.append(f"st{g}")
    if u == 2 and not OPT["wv"]:
        while mf_next[0] < 36: emit_half()
    if u == OPT["ue"] and OPT["un"] < 0:
        assert mf_next[0] == 36
        lds_inc(1, O_G1, 10); lq.append("c")
    if u == OPT["f1"] - 1:
        lds_inc(1, 12, 10); lq.append("c")
    if u == OPT["f1"]:
        if "n" in lq:
            e("  s_waitcnt lgkmcnt(0)"); lq = []
        wait_stores("st0"); flag(1); stamp(4)
    if u == OPT["ea"] - 1:
        e(f"  ds_read_b32 v3, v106 offset:{O_SIG}"); lq.append("c")
    if u == OPT["ea"]:
        e("  s_waitcnt lgkmcnt(0)"); lq = []
        e("  v_readfirstlane_b32 s42, v3")
        e("  s_cmp_ge_u32 s42, 1")
        e("  s_cbranch_scc0 L_noearly")
        for p in range(1, 4):
            for x in gloads(p, 0): e(x)
        e("L_noearly:")
for _ in range(2*(OPT["pre"] if OPT["peel"] else 18)): emit_half()
cnt = 0
for x in V:
    if isinstance(x, tuple):
        if x[0] == "need":
            lastfrag = 17 if x[1] == 8 else 4*(x[1]//2) + 3
            while mf_next[0] < 2*(lastfrag + 1): emit_half()
            gap = len(out) - max(lastm[tm] for tm in unit_tiles(x[1]))
            if gap < 8: e(f"  s_nop {7 - gap}")
        else: done(x[1])
        continue
    e(x); cnt += 1
    if OPT["wv"] and cnt % OPT["wv"] == 0 and mf_next[0] < 36: emit_half()
assert mf_next[0] == 36
stamp(5)
def hreg(ei, mh):
    p, i = ORDER[ei]
    if p == "S": return SH[(i, mh)]
    f = 2*i + mh
    return BUF[(p, f // 3)][f % 3]
def groups_needed(ei):
    p, i = ORDER[ei]
    if p == 0: return []
    if p == "S": return [(pp, 2) for pp in (2*i, 2*i+1) if pp]
    return sorted(set((p, (2*i+mh)//3) for mh in range(2)))
checked = set(); issued = set()
def piece_move(p):
    B = BUF[(p, 2)]
    for mh in range(2):
        for h in range(2): e(f"  v_mov_b32 v{SH[(p//2, mh)] + 2*(p & 1) + h}, v{B[2] + 2*mh + h}")
def gcheck(p, g):
    global vq
    assert (p, g) in issued, (p, g)
    idx = [i for i, it in enumerate(vq) if it == (p, g)]
    if idx:
        younger = [it for it in vq[max(idx)+1:] if not isinstance(it, str)]
        e(f"  s_waitcnt vmcnt({len(younger)})")
        vq = younger
    if g == 2:
        piece_move(p); e("  s_nop 1")
    checked.add((p, g))
piece_move(0)
TM = OPT["tm"]
TG = [[0, 1, 2, 3], [4, 5], [6, 7, 8]]
seq = [(ei, t) for ei in range(TM) for t in range(9)] + [(ei, t) for tg in range(3) for ei in range(TM, 18) for t in TG[tg]]
if OPT["df"] >= 0:
    DF = OPT["df"]
    seq = [(ei, t) for ei in range(DF) for t in range(9)] + [(ei, t) for ei in range(DF, TM) for t in TG[0] + TG[1]] + \
          [(ei, t) for tg in range(2) for ei in range(TM, 18) for t in TG[tg]] + [(ei, t) for ei in range(DF, 18) for t in TG[2]]
    assert DF >= 7
e("  s_lshr_b32 s40, s19, 1"); e("  s_and_b32 s49, s19, 1"); e("  s_cmp_eq_u32 s40, s18"); e("  s_cselect_b32 s49, s49, 2")
e("  v_lshlrev_b32 v107, 4, v0"); e(f"  v_add_u32 v107, {OWNL}, v107")
ownp = []
acks = {}
def first_use(ei): return min(n for n, (a_, _) in enumerate(seq) if a_ == ei)
def a2read(n, d):
    ei, t = seq[n]
    img = ei if ei < 17 else 0
    b = AB + 4*(n % NB) + 2*d
    return f"  ds_read_b64_tr_b16 v[{b}:{b+1}], v{6 + img//6} offset:{(img % 6)*IMG + d*16*288 + t*32}"
slow = []
checks = {}
def add_check(n, vaddr, off, val, post=None):
    assert n not in checks
    checks[n] = (vaddr, off, val, post)
LA, LB, LC = OPT["la"], OPT["lb"], OPT["lc"]
assert LC >= 28
add_check(first_use(4) - D, 1, O_M + 4, 3)
add_check(first_use(8) - D, 1, O_M + 8, 3)
add_check(first_use(12) - D, 1, O_M + 12, 3)
add_check(first_use(16) - D, 1, O_M + 16, 3)
add_check(LA, 106, O_SIG, 1, lambda: stamp(7))
add_check(LB, 106, O_SIG, 2)
add_check(LC, 106, O_SIG, 3)
chk_reg = {n: 2 + (i % 3) for i, n in enumerate(sorted(checks))}
events = {LA: (1, 0), LA+1: (2, 0), LA+2: (3, 0), LB: (1, 1), LB+2: (2, 1), LB+4: (3, 1), LC: (1, 2), LC+2: (2, 2), LC+4: (3, 2)}
if OPT["ea"] >= 0:
    for k_ in (LA, LA+1, LA+2): del events[k_]
lds_spin(1, O_M, 3, 2)
stamp(6)
if STAMP: e("  s_waitcnt lgkmcnt(0)")
q = []
for n in range(D):
    e(a2read(n, 0)); e(a2read(n, 1)); q += [n, n]
N = len(seq); PRE = 4
assert min(checks) >= PRE
pend_epi = []
for n in range(N):
    ei, t = seq[n]
    if n == OPT["f2"]:
        wait_stores("st1"); flag(2)
    if n == OPT["f3"]:
        e("  s_waitcnt vmcnt(0)"); vq = []; flag(3)
    if n == OPT["un"]:
        lds_inc(1, O_G1, 10); q.append("c")
    if n == OPT["cons"]:
        lds_inc(1, O_CONS, 10); q.append("c")
    if n + PRE in checks:
        va, off, val, post = checks[n + PRE]
        e(f"  ds_read_b32 v{chk_reg[n+PRE]}, v{va} offset:{off}"); q.append(("chk", n + PRE))
    if n in checks:
        va, off, val, post = checks[n]
        need = [i for i, it in enumerate(q) if it == ("chk", n)]
        if need:
            e(f"  s_waitcnt lgkmcnt({len(q)-1-max(need)})")
            q = q[max(need)+1:]
        ls, lb = lab("slow"), lab("back")
        if n == LA and OPT["ea"] >= 0:
            e("  s_cmp_ge_u32 s42, 1")
            e("  s_cbranch_scc1 L_skipA")
        e(f"  v_readfirstlane_b32 s60, v{chk_reg[n]}")
        e(f"  s_cmp_ge_u32 s60, {val}")
        e(f"  s_cbranch_scc0 {ls}")
        e(f"{lb}:")
        slow.append((ls, lb, va, off, val, chk_reg[n]))
        if n == LA and OPT["ea"] >= 0:
            for p in range(1, 4):
                for x in gloads(p, 0): e(x); vq.append((p, 0))
                issued.add((p, 0))
            e("L_skipA:")
        if post: post()
    for pg in groups_needed(ei):
        if pg not in checked:
            gcheck(*pg)
            if pg == (1, 0):
                stamp(8)
                if OPT["cyc2"]: e("  s_memtime s[96:97]")
            if pg == (1, 2):
                stamp(9)
                if OPT["cyc2"]: e("  s_memtime s[100:101]")
    if n in events:
        for x in gloads(*events[n]): e(x); vq.append(events[n])
        issued.add(events[n])
    need = [i for i, it in enumerate(q) if it == n]
    if need:
        e(f"  s_waitcnt lgkmcnt({len(q)-1-max(need)})")
        q = q[max(need)+1:]
    b = AB + 4*(n % NB)
    for mh in range(2):
        a = ACC2 + t*8 + mh*4; hb = hreg(ei, mh)
        c = "0" if ei == 0 else f"v[{a}:{a+3}]"
        e(f"  {M16} v[{a}:{a+3}], v[{b}:{b+3}], v[{hb}:{hb+3}], {c}")
        if n + D < N:
            e(a2read(n + D, mh)); q.append(n + D)
    if n in acks:
        cnt, st = acks[n]
        e(f"  s_waitcnt vmcnt({cnt})"); flag(st)
    for tg in range(3):
        if ei == 17 and t == TG[tg][-1]: pend_epi.append((n + 3, tg))
    while pend_epi and (pend_epi[0][0] <= n or n == N - 1):
        _, tg = pend_epi.pop(0)
        assert all(isinstance(it, str) for it in vq)
        if n == N - 1 and tg == 2:
            stamp(10)
            if OPT["cyc2"]:
                e("  s_memtime s[98:99]"); e("  s_waitcnt lgkmcnt(0)"); e(f"  s_sub_u32 s{SB+26}, s98, s96"); e(f"  s_sub_u32 s{SB+2}, s100, s96"); e(f"  s_mov_b32 s{SB+3}, 0")
            e("  s_nop 7")
        PG = [BUF[(1, 0)][0], BUF[(1, 0)][1], BUF[(2, 0)][0], BUF[(2, 0)][1]]
        if tg == 1: PG = [BUF[(3, 0)][0], None, BUF[(3, 0)][1], None]
        for mh in range(2):
            g0, g1 = PG[2*mh], PG[2*mh+1]
            src = [ACC2 + t_*8 + mh*4 + 2*h for t_ in TG[tg] for h in range(2)]
            dst = [[g0, g0+1, g0+2, g0+3, g1, g1+1, g1+2, g1+3] if tg == 0 else None, [g0, g0+1, g0+2, g0+3],
                   [g0, g0+1, g0+2, g1, g1+1, g1+2] if tg == 2 else None][tg]
            for s_, d_ in zip(src, dst): e(f"  v_cvt_pk_bf16_f32 v{d_}, v{s_}, v{s_+1}")
            blks = [[(g0, mh*2, 0), (g1, mh*2+1, 1)], [(g0, 4+mh, 2)], [(g0, 6+mh*2, 3), (g1, 7+mh*2, 4)]][tg]
            if OPT["own"]:
                lo, lb = lab("own"), lab("ownb")
                e(f"  s_cmp_eq_u32 s49, {mh}"); e(f"  s_cbranch_scc1 {lo}")
                ownp.append((lo, lb, blks))
            for g_, k_, _l in blks:
                e(f"  buffer_store_dwordx4 v[{g_}:{g_+3}], v5, s[44:47], s{KS[k_]} offen sc1")
            if OPT["own"]: e(f"{lb}:")
        if tg == 1:
            for r_ in (BUF[(1, 0)][0], BUF[(1, 0)][1], BUF[(2, 0)][0], BUF[(2, 0)][1]): e(f"  v_mov_b32 v{r_+3}, v11")
            acks[n + OPT["a4"]] = (1 if OPT["own"] else 2, 4)
            if not OPT["dec"]: acks[N - 1 - OPT["a5"]] = (0, 5)
            assert n + OPT["a4"] < N - 1 - OPT["a5"]
        if tg == 2: flag(6)
        lds_inc(1, O_TG + 4*tg, 10); q.append("c")
        if tg == 2 and OPT["dec"]:
            e(f"  s_waitcnt vmcnt({3 if OPT['own'] else 5})"); flag(5)
stamp(11)
if STAMP:
    e("  s_waitcnt vmcnt(0)")
    stamp(12)
e("L_fin:")
stamp_flush()
e("L_end:")
e("  s_endpgm")
for ls, lb, va, off, val, vt in slow:
    e(f"{ls}:")
    lds_spin(va, off, val, vt)
    e(f"  s_branch {lb}")
for lo, lb, blks in ownp:
    e(f"{lo}:")
    for g_, k_, l_ in blks: e(f"  ds_write_b128 v107, v[{g_}:{g_+3}] offset:{l_*1024}")
    e(f"  s_branch {lb}")
e("L_codeend:")
e('.section .rodata,"a"\n.p2align 6')
e(f".amdhsa_kernel {NAME}")
e("  .amdhsa_next_free_vgpr 256\n  .amdhsa_next_free_sgpr 102\n  .amdhsa_accum_offset 256")
e("  .amdhsa_group_segment_fixed_size 0\n  .amdhsa_kernarg_size 56\n  .amdhsa_user_sgpr_count 2\n  .amdhsa_user_sgpr_kernarg_segment_ptr 1\n  .amdhsa_system_sgpr_workgroup_id_x 1\n.end_amdhsa_kernel")
print("\n".join(out))
```

```python
import sys, struct
OPT = dict(stamp=0, rot=0, grp=3, nt=0, prio=0, spin=400000, slp=1, cpf=1, spf=0, tm=10,
           f1=6, f2=-1, f3=14, la=14, lb=40, lc=70, warmf=1, kst=0x100000, xstop=0, spoll=1, vpf=8, wdw=6, wdpre=4, ue=8, wsl=0, ea=8, repc=-1, repl=0, badx=0, rmode=0, rsl=0, early=0, cyc=0, wev=1, rlate=0, pipe=0, rst=4, lsl=2, swap=0, gx=1, xp=0, own=1, a4=14, a5=0, un=-1, peel=1, rt=0, pm=1, rs0=0, rw=0, hsl=0, xw=0, df=-1, dec=1, cons=18, fold=1, wv=0, pre=8, swp=1, cyc2=0, psl=3)
for a in sys.argv[1:]:
    k, v = a.split("="); assert k in OPT, k; OPT[k] = int(v, 0)
assert OPT["spf"] == 0 and OPT["vpf"] in (-1, 8)
STAMP = OPT["stamp"]
out = []
def e(s=""): out.append(s)
def f2u(x): return "0x%08x" % struct.unpack("<I", struct.pack("<f", x))[0]

X_BYTES = 1024*576*2
W_BYTES = 576*4608*2
P_OFF = 0x1000000
FH_OFF = 0x2000000
WS_USE = 0x2040000
ST_OFF = 0x4000000
IMG = 9216
WSLOT = 2*IMG
XBASE = 6*WSLOT
XSLOT = 16384
SY = XBASE + 3*XSLOT
O_G1, O_CONS, O_TG, O_SIG, O_M = 4, 8, 16, 32, 64
LDS_TOTAL = SY + 128
NTS = " nt" if OPT["nt"] & 1 else ""
NTX = " nt" if OPT["nt"] & 2 else ""
NTD = " nt" if OPT["nt"] & 4 else ""
NTP = " nt" if OPT["nt"] & 8 else ""
M16 = "v_mfma_f32_16x16x32_bf16"
NAME = "standalone__geglu_ffn__sampling_kernel"
KST = OPT["kst"]
ORDER = [(0, 0), (0, 1), (0, 2), (0, 3), (1, 0), (2, 0), (3, 0), (1, 1), (1, 2), (2, 1), (2, 2), (3, 1), (3, 2),
         (1, 3), (2, 3), (3, 3), ("S", 0), ("S", 1)]
uid = [0]
def lab(p):
    uid[0] += 1
    return f"L_{p}{uid[0]}"
def srd(d, lo, hi, nbytes):
    e(f"  s_mov_b32 s{d}, {lo}"); e(f"  s_mov_b32 s{d+1}, {hi}")
    e(f"  s_mov_b32 s{d+2}, {nbytes}"); e(f"  s_mov_b32 s{d+3}, 0x00020000")
NST, SB = 14, 64
LMODE = [False]
def stamp(i, force=False):
    if STAMP == 3 and LMODE[0] and not force: return
    if STAMP: e(f"  s_memrealtime s[{SB+2*i}:{SB+1+2*i}]")
def stamp_init():
    if STAMP:
        for i in range(1, NST): e(f"  s_mov_b64 s[{SB+2*i}:{SB+1+2*i}], 0")
def stamp_flush():
    if not STAMP: return
    if OPT["repc"] == 99:
        e(f"  v_mov_b32 v2, {SY}")
        e("  ds_read_b32 v2, v2")
        e("  s_waitcnt lgkmcnt(0)")
        e("  v_readfirstlane_b32 s92, v2")
        e("L_rep:")
        e("  s_memrealtime s[94:95]")
        e("  s_waitcnt lgkmcnt(0)")
        e("  s_lshl_b32 s94, s94, 3")
        e("  s_sub_u32 s94, s94, s92")
        e("  s_cmp_lt_u32 s94, 32000")
        e("  s_cbranch_scc1 L_rep")
        return
    if OPT["repc"] >= 0:
        e("  s_waitcnt lgkmcnt(0)")
        e("  s_cmp_lt_u32 s18, 4")
        e(f"  s_cselect_b32 s92, s{SB+2*OPT['repc']}, s{SB+2*OPT['repl']}")
        e("  s_cmp_eq_u32 s92, 0")
        e(f"  s_cselect_b32 s92, s{SB}, s92")
        e("L_rep:")
        e("  s_memrealtime s[94:95]")
        e("  s_waitcnt lgkmcnt(0)")
        e("  s_sub_u32 s94, s94, s92")
        e("  s_cmp_lt_u32 s94, 4000")
        e("  s_cbranch_scc1 L_rep")
        return
    e("  s_waitcnt lgkmcnt(0)")
    e(f"  s_add_u32 s92, s16, {ST_OFF}"); e("  s_addc_u32 s93, s17, 0")
    e("  s_mov_b32 s94, 0x100000"); e("  s_mov_b32 s95, 0x00020000")
    e("  s_lshl_b32 s96, s2, 3"); e("  s_add_u32 s96, s96, s18"); e("  s_lshl_b32 s96, s96, 7")
    e("  v_mov_b32 v250, 0")
    for i in range(NST):
        e(f"  v_mov_b32 v252, s{SB+2*i}"); e(f"  v_mov_b32 v253, s{SB+1+2*i}")
        e(f"  buffer_store_dwordx2 v[252:253], v250, s[92:95], s96 offen offset:{i*8}")
        e("  s_nop 1")
def lds_spin(vaddr, off, val, vt):
    l = lab("sp"); d = lab("spd")
    e(f"  s_mov_b32 s61, {OPT['spin']*8}")
    e(f"{l}:")
    e(f"  ds_read_b32 v{vt}, v{vaddr} offset:{off}")
    e("  s_sub_u32 s61, s61, 1")
    e("  s_waitcnt lgkmcnt(0)")
    e(f"  v_readfirstlane_b32 s60, v{vt}")
    e("  s_cmp_eq_u32 s61, 0")
    e(f"  s_cbranch_scc1 {d}")
    e(f"  s_cmp_ge_u32 s60, {val}")
    if LMODE[0] and OPT["lsl"]:
        e(f"  s_cbranch_scc1 {d}")
        e(f"  s_sleep {OPT['lsl']}")
        e(f"  s_branch {l}")
    else:
        e(f"  s_cbranch_scc0 {l}")
    e(f"{d}:")
def lds_inc(vaddr, off, vone):
    e("  s_mov_b64 exec, 1")
    e(f"  ds_add_u32 v{vaddr}, v{vone} offset:{off}")
    e("  s_mov_b64 exec, -1")

e(f"; @launch grid=(256,1,1) block=(512,1,1) lds={LDS_TOTAL}")
e('.amdgcn_target "amdgcn-amd-amdhsa--gfx950"')
e(".text")
e(f".globl {NAME}\n.p2align 8\n.type {NAME},@function\n{NAME}:")
e("  s_cmp_ge_u32 s2, 256")
e("  s_cbranch_scc1 L_end")
if OPT["badx"]:
    e("  s_lshr_b32 s3, s2, 5"); e("  s_lshl_b32 s2, s2, 3"); e("  s_and_b32 s2, s2, 255"); e("  s_or_b32 s2, s2, s3")
e("  s_load_dwordx8 s[4:11], s[0:1], 0")
e("  s_load_dwordx4 s[12:15], s[0:1], 32")
e("  s_load_dwordx2 s[16:17], s[0:1], 48")
stamp(0)
e("  v_lshrrev_b32 v1, 6, v0")
e("  v_and_b32 v0, 63, v0")
e("  v_readfirstlane_b32 s18, v1")
if OPT["swap"]: e("  s_xor_b32 s18, s18, 4")
stamp_init()
e("  s_and_b32 s19, s2, 7")
e("  s_lshr_b32 s20, s2, 3")
e("  s_lshr_b32 s21, s20, 2")
e("  s_and_b32 s20, s20, 3")
e("  s_add_u32 s23, s20, s21")
e("  s_and_b32 s22, s23, 3")
e("  s_cmp_lt_u32 s18, 4")
e("  s_cbranch_scc1 L_compute")

LMODE[0] = True
if OPT["rt"]:
    fn = {1: lambda mi, sub: ((mi + 2*sub) % 5)*2 % 9, 2: lambda mi, sub: ((mi + sub) % 4)*9//4,
          3: lambda mi, sub: ((mi + (sub >> 1)) % 3)*3 + (sub & 1), 4: lambda mi, sub: ((mi // 2 + sub) % 4)*9//4 + (mi & 1),
          5: lambda mi, sub: ((mi + sub) % 3)*3 + (mi // 3) % 2, 6: lambda mi, sub: ((mi + [0, 1, 2, 1][sub]) % 3)*3}[OPT["rt"]]
    tab = 0
    for idx in range(32): tab |= (fn(idx >> 2, idx & 3) % 9) << (4*idx)
    e(f"  s_mov_b32 s24, {tab & 0xffffffff}"); e(f"  s_mov_b32 s25, {(tab >> 32) & 0xffffffff}")
    e(f"  s_mov_b32 s26, {(tab >> 64) & 0xffffffff}"); e(f"  s_mov_b32 s27, {(tab >> 96) & 0xffffffff}")
    e("  s_bitcmp1_b32 s2, 7"); e("  s_cselect_b64 s[24:25], s[26:27], s[24:25]")
    e("  s_lshr_b32 s23, s2, 3"); e("  s_and_b32 s23, s23, 15"); e("  s_lshl_b32 s23, s23, 2")
    e("  s_lshr_b64 s[24:25], s[24:25], s23")
    e("  s_and_b32 s23, s24, 15")
    e("  s_add_u32 s23, s23, s19")
    e("  s_cmp_ge_u32 s23, 9"); e("  s_cselect_b32 s24, 9, 0"); e("  s_sub_u32 s23, s23, s24")
elif OPT["grp"]:
    G = OPT["grp"]
    tab = 0
    for v in range(11): tab |= ((v % G)*9//G) << (4*v)
    e(f"  s_mov_b32 s24, {tab & 0xffffffff}"); e(f"  s_mov_b32 s25, {tab >> 32}")
    e("  s_lshl_b32 s23, s23, 2")
    e("  s_lshr_b64 s[24:25], s[24:25], s23")
    e("  s_and_b32 s23, s24, 15")
    if OPT["gx"]:
        e("  s_add_u32 s23, s23, s19")
        e("  s_cmp_ge_u32 s23, 9"); e("  s_cselect_b32 s24, 9, 0"); e("  s_sub_u32 s23, s23, s24")
elif OPT["rot"]:
    e("  s_add_u32 s23, s23, s20"); e("  s_add_u32 s23, s23, s19")
    for _ in range(2):
        e("  s_cmp_ge_u32 s23, 9"); e("  s_cselect_b32 s24, 9, 0"); e("  s_sub_u32 s23, s23, s24")
else:
    e("  s_mov_b32 s23, 0")
e("  s_sub_u32 s34, s18, 4")
e("  s_lshl_b32 s38, s21, 7"); e("  s_lshl_b32 s39, s34, 5"); e("  s_add_u32 s38, s38, s39")
e("  v_lshrrev_b32 v30, 3, v0")
e("  v_add_u32 v30, s38, v30")
e("  v_mul_u32_u24 v30, 1152, v30")
e("  v_lshrrev_b32 v31, 4, v0")
e("  v_xor_b32 v31, v31, v0")
e("  v_and_b32 v31, 7, v31")
e("  v_lshl_add_u32 v5, v31, 4, v30")
e("  v_xor_b32 v31, 4, v31")
e("  v_lshl_add_u32 v6, v31, 4, v30")
e(f"  v_add_u32 v6, {8*1152-1024}, v6")
e(f"  v_add_u32 v7, {16*1152-2048}, v5")
e(f"  v_add_u32 v8, {16*1152-2048}, v6")
e("  s_mul_i32 s35, s19, 1152")
e("  s_mul_i32 s38, s20, 288")
e("  s_add_u32 s38, s38, s35")
e("  s_and_b32 s39, s20, 1")
e("  s_lshl_b32 s33, s39, 8")
e("  s_lshl_b32 s32, s39, 5")
e("  s_sub_u32 s39, s38, s33")
e("  s_add_u32 s38, s38, s32")
if OPT["xw"] & 1:
    e("  s_lshl_b32 s38, s20, 8"); e("  s_add_u32 s38, s38, s35"); e("  s_add_u32 s38, s38, 128"); e("  s_sub_u32 s39, s38, 128")
e("  v_mov_b32 v34, s38"); e("  v_mov_b32 v35, s39")
e("  s_lshl_b32 s36, s34, 6")
for n in range(3):
    r, c = 12 + 2*n, 13 + 2*n
    e(["  v_add_u32 v30, s36, v0", "  v_add_u32 v30, 256, v30", "  v_add_u32 v30, 512, v0"][n])
    e("  v_mul_u32_u24 v31, 3641, v30")
    e(f"  v_lshrrev_b32 v{r}, 16, v31")
    e(f"  v_mul_u32_u24 v31, 18, v{r}")
    e(f"  v_sub_u32 v{c}, v30, v31")
    e(f"  v_and_b32 v33, 0x13, v{r}")
    e(f"  v_bfe_u32 v36, v{r}, 2, 1")
    e("  v_lshl_or_b32 v33, v36, 3, v33")
    e(f"  v_bfe_u32 v36, v{r}, 3, 1")
    e(f"  v_cmp_lt_u32 vcc, 15, v{c}")
    e("  v_lshl_or_b32 v33, v36, 2, v33")
    e("  v_mul_u32_u24 v33, 9216, v33")
    e("  v_cndmask_b32 v36, v34, v35, vcc")
    e(f"  v_lshl_add_u32 v33, v{c}, 4, v33")
    e(f"  v_add_u32 v{2+n}, v36, v33")
e(f"  s_mul_i32 s48, s23, {64*9216}")
e("  s_lshl_b32 s49, s23, 7")
e("  s_lshl_b32 s32, s34, 10")
e("  s_and_b32 s33, s34, 1")
e(f"  s_mul_i32 s33, s33, {IMG}")
e("  s_add_u32 s33, s33, 8192")
e("  s_lshr_b32 s35, s34, 1")
e("  s_lshl_b32 s36, s34, 12")
e(f"  s_add_u32 s36, s36, {XBASE}")
e("  s_mov_b32 s50, 0")
e("  s_mov_b32 s51, s36")
e(f"  s_add_u32 s37, s36, {3*XSLOT}")
e("  s_bitcmp1_b32 s34, 0")
e("  s_waitcnt lgkmcnt(0)")
e("  s_cselect_b32 s56, s8, s6"); e("  s_cselect_b32 s57, s9, s7")
e(f"  s_mov_b32 s58, {W_BYTES}"); e("  s_mov_b32 s59, 0x00020000")
srd(24, "s4", "s5", X_BYTES)
srd(40, "s6", "s7", W_BYTES)
srd(44, "s8", "s9", W_BYTES)
def g_issue(par):
    if par == 0:
        e("  s_mov_b32 m0, s51")
        e(f"  s_add_u32 s51, s51, {XSLOT}")
        for q in range(4): e(f"  buffer_load_dwordx4 v{5+q}, s[24:27], s49 offen offset:{q*1024}{NTX} lds")
        e("  s_cmp_eq_u32 s51, s37"); e("  s_cselect_b32 s51, s36, s51")
        e("  s_add_u32 s49, s49, 128"); e("  s_cmp_eq_u32 s49, 1152"); e("  s_cselect_b32 s49, 0, s49")
    e("  s_add_u32 s52, s50, s32")
    for mat in range(2):
        for n in range(2):
            e(f"  s_add_u32 m0, s52, {mat*IMG + n*4096}")
            e("  s_nop 0")
            e(f"  buffer_load_dwordx4 v{2+n}, s[{40+4*mat}:{43+4*mat}], s48 offen{NTS} lds")
    l = lab("p8")
    e(f"  s_cmp_eq_u32 s35, {par}")
    e(f"  s_cbranch_scc0 {l}")
    e("  s_add_u32 m0, s50, s33")
    e("  s_nop 0")
    e(f"  buffer_load_dwordx4 v4, s[56:59], s48 offen{NTS} lds")
    e(f"{l}:")
    e(f"  s_add_u32 s48, s48, {32*9216}"); e(f"  s_cmp_eq_u32 s48, {576*9216}"); e("  s_cselect_b32 s48, 0, s48")
    e(f"  s_add_u32 s50, s50, {WSLOT}"); e(f"  s_cmp_eq_u32 s50, {6*WSLOT}"); e("  s_cselect_b32 s50, 0, s50")
stamp(1)
FOLD = OPT["fold"] and STAMP != 3 and not OPT["early"]
if not FOLD:
    g_issue(0)
    if not OPT["early"]: g_issue(1)
    stamp(11) if STAMP == 1 else None
def spf():
    if OPT["spf"]:
        for k in range(5): e(f"  s_load_dword s63, s[10:11], s62 offset:{k*64}")
        e("  s_add_u32 s62, s62, 320")
def lbody(it):
    e("  s_waitcnt vmcnt(4)")
    e("  s_barrier")
    if STAMP == 3: stamp(1 + it, True)
    if 0 <= OPT["vpf"] < 8:
        if STAMP == 3:
            if it == OPT["vpf"]: e(f"  buffer_load_dword v17, v18, s[96:99], 0 offen{NTP}")
        else:
            e(f"  s_cmp_eq_u32 s53, {8 - OPT['vpf']}")
            e("  s_cbranch_scc0 L_novpf")
            e(f"  buffer_load_dword v17, v18, s[96:99], 0 offen{NTP}")
            e("L_novpf:")
    g_issue(0); spf()
    e("  s_waitcnt vmcnt(8)")
    e("  s_barrier")
    g_issue(1); spf()
NIT = 8
if OPT["early"]:
    NIT = 7
    e("  s_waitcnt vmcnt(0)")
    e("  s_barrier")
    if STAMP == 3: stamp(1, True)
    g_issue(1); g_issue(0)
    e("  s_waitcnt vmcnt(8)")
    e("  s_barrier")
    g_issue(1)
if STAMP == 3:
    for it in range(8 - NIT, 8): lbody(it)
else:
    if FOLD:
        e("  s_mov_b32 s53, 9")
        e("  s_branch L_lf0")
        e("L_lloop:")
        e("  s_waitcnt vmcnt(4)"); e("  s_barrier")
        e("L_lf0:")
        g_issue(0)
        e("  s_cmp_eq_u32 s53, 9"); e("  s_cbranch_scc1 L_lf1")
        e("  s_waitcnt vmcnt(8)"); e("  s_barrier")
        e("L_lf1:")
        g_issue(1)
    else:
        e(f"  s_mov_b32 s53, {NIT}")
        e("L_lloop:")
        lbody(0)
    e("  s_sub_u32 s53, s53, 1"); e("  s_cmp_lg_u32 s53, 0"); e("  s_cbranch_scc1 L_lloop")
if OPT["spf"]: e("  s_load_dword s63, s[10:11], s62")
e(f"  s_mul_i32 s53, s22, {256 if OPT['xw'] & 2 else 288}")
e("  s_lshl_b32 s62, s34, 6")
for n in range(3):
    r = 12 + 2*n
    e("  v_add_u32 v30, s62, v0" if n == 0 else "  v_add_u32 v30, 192, v30")
    e("  v_mul_u32_u24 v31, 3641, v30")
    e(f"  v_lshrrev_b32 v{r}, 16, v31")
    e(f"  v_mul_u32_u24 v31, 18, v{r}")
    e("  v_sub_u32 v32, v30, v31")
    e(f"  v_mul_u32_u24 v31, 1152, v{r}")
    if OPT["xw"] & 2: e("  v_and_b32 v32, 15, v32")
    e("  v_lshl_add_u32 v31, v32, 4, v31")
    e(f"  v_add_u32 v{9+n}, s53, v31")
e(f"  v_mov_b32 v20, {SY}"); e("  v_mov_b32 v21, 1"); e("  v_mov_b32 v22, 0")
e("  s_lshl_b32 s53, s34, 2")
e("  v_add_u32 v26, s53, v20")
srd(28, "s14", "s15", 256)
e("  s_lshr_b32 s62, s2, 3"); e("  s_lshl_b32 s62, s62, 2"); e("  s_add_u32 s62, s62, s34")
if OPT["vpf"] >= 0:
    e("  s_mul_i32 s55, s62, 5184")
    e(f"  s_mul_i32 s53, s19, {576*1152}")
    e("  s_add_u32 s55, s55, s53")
    e("  v_min_u32 v18, 41, v0")
    e("  v_lshlrev_b32 v18, 7, v18")
    e("  v_add_u32 v18, s55, v18")
    srd(96, "s10", "s11", W_BYTES)
srd(40, "s10", "s11", W_BYTES)
e(f"  s_mul_i32 s49, s19, {576*1152}")
def piece_row(dst, p):
    e(f"  s_add_u32 s52, s20, {p}"); e("  s_and_b32 s52, s52, 3")
    e(f"  s_lshr_b32 {dst}, s52, 1"); e(f"  s_mul_i32 {dst}, {dst}, 288")
    e("  s_and_b32 s52, s52, 1"); e("  s_lshl_b32 s52, s52, 4")
    e(f"  s_add_u32 {dst}, {dst}, s52"); e(f"  s_add_u32 {dst}, {dst}, 128")
def d_issue(sig):
    so = ["s48", "s54"]; vb = [9, 9]
    if sig < 8:
        for im in range(2):
            p, i = ORDER[2*sig + im]
            e(f"  s_add_u32 s52, s20, {p}"); e("  s_and_b32 s52, s52, 3"); e("  s_mul_i32 s52, s52, 9")
            e(f"  s_add_u32 s52, s52, {1 + 2*i}"); e("  s_lshr_b32 s52, s52, 1")
            e(f"  s_mul_i32 {so[im]}, s52, {32*1152}"); e(f"  s_add_u32 {so[im]}, {so[im]}, s49")
        la = [2*sig*IMG, (2*sig+1)*IMG]
    else:
        for im in range(2):
            piece_row("s50", 2*im); piece_row("s51", 2*im+1)
            e("  s_sub_u32 s51, s51, 16")
            e("  s_mul_i32 s50, s50, 1152"); e("  s_mul_i32 s51, s51, 1152")
            e("  v_mov_b32 v33, s50"); e("  v_mov_b32 v34, s51")
            for n in range(3):
                e(f"  v_cmp_lt_u32 vcc, 15, v{12+2*n}")
                e("  s_nop 1")
                e("  v_cndmask_b32 v35, v33, v34, vcc")
                e(f"  v_add_u32 v{27+3*im+n}, v35, v{9+n}")
            e(f"  s_mov_b32 {so[im]}, s49")
        vb = [27, 30]
        la = [16*IMG, 0]
    for im in range(2):
        for n in range(3):
            e(f"  s_add_u32 m0, s32, {la[im] + n*3072}")
            e("  s_nop 0")
            e(f"  buffer_load_dwordx4 v{vb[im]+n}, s[40:43], {so[im]} offen{NTD} lds")
VP = 1 if OPT["vpf"] == 8 else 0
e("  buffer_load_dword v23, v22, s[28:31], 0 offen sc1")
if VP: e(f"  buffer_load_dword v17, v18, s[96:99], 0 offen{NTP}")
e(f"  s_waitcnt vmcnt({5+VP})")
e("  s_barrier")
stamp(2)
if STAMP == 3: stamp(9, True)
e("  s_cmp_eq_u32 s34, 3")
e("  s_cbranch_scc1 L_poller")
d_issue(0)
e(f"  s_waitcnt vmcnt({6+VP})")
e("  s_barrier")
e("  ds_read_b32 v23, v20")
d_issue(1)
srd(28, "s16", "s17", WS_USE)
WP = OPT["wdpre"]; LAG = OPT["wdw"] // 6
assert 2 <= WP <= 4
MS = {1: O_M, 3: O_M + 4, 5: O_M + 8, 7: O_M + 12}
done = set()
def landed(k):
    for m in sorted(MS):
        if m <= k and m not in done:
            lds_inc(20, MS[m], 21); done.add(m)
            if m == 1: stamp(3)
for sg in range(2, 8):
    if sg == WP:
        e("  s_waitcnt vmcnt(0)"); landed(sg - 1)
        lds_spin(20, O_G1, 4, 24)
    d_issue(sg)
    e(f"  s_waitcnt vmcnt({6*LAG})")
    landed(sg - LAG)
    if OPT["wsl"]: e(f"  s_sleep {OPT['wsl']}")
e("  s_waitcnt vmcnt(0)")
landed(7)
stamp(4)
if OPT["xstop"]: e("  s_branch L_fin")
lds_spin(20, O_CONS, 4, 24)
d_issue(8)
e("  s_waitcnt vmcnt(0)")
lds_inc(20, O_M + 16, 21)
stamp(6)
OWNL = IMG
e("L_reduce:")
srd(24, "s12", "s13", X_BYTES)
srd(28, "s16", "s17", WS_USE)
e("  s_and_b32 s45, s19, 1")
e("  s_lshl_b32 s44, s45, 1"); e("  s_add_u32 s44, s44, s34")
e("  s_add_u32 s46, s45, 4"); e("  s_cmp_eq_u32 s34, 2"); e("  s_cselect_b32 s44, s46, s44")
e("  s_add_u32 s46, s44, 3"); e("  s_cmp_eq_u32 s34, 3"); e("  s_cselect_b32 s44, s46, s44")
e(f"  s_mul_i32 s44, s44, {KST}")
e("  s_lshr_b32 s45, s19, 1"); e("  s_lshl_b32 s45, s45, 8"); e("  s_andn2_b32 s46, s2, 7"); e("  s_add_u32 s45, s45, s46")
e("  s_lshl_b32 s45, s45, 10"); e("  s_add_u32 s44, s44, s45")
e(f"  s_add_u32 s44, s44, {P_OFF}")
e("  v_lshlrev_b32 v5, 4, v0")
e("  v_add_u32 v6, s44, v5")
e(f"  v_add_u32 v7, {KST}, v6")
RS = [40, 41, 42, 43, 44, 45, 46, 47]
for r in range(8):
    e(f"  s_add_u32 s{RS[r]}, s19, {r}"); e(f"  s_and_b32 s{RS[r]}, s{RS[r]}, 7"); e(f"  s_lshl_b32 s{RS[r]}, s{RS[r]}, 10")
e("  s_lshl_b32 s48, s34, 10"); e(f"  s_add_u32 s48, s48, {OWNL}")
e("  v_add_u32 v8, s48, v5")
e("  s_lshl_b32 s48, s21, 7"); e("  s_lshl_b32 s49, s19, 4"); e("  s_add_u32 s48, s48, s49"); e("  s_mul_i32 s48, s48, 1152")
e("  s_mul_i32 s49, s22, 288"); e("  s_add_u32 s48, s48, s49"); e("  s_lshl_b32 s49, s34, 6"); e("  s_add_u32 s48, s48, s49")
e("  v_and_b32 v1, 15, v0"); e("  v_mul_u32_u24 v1, 1152, v1"); e("  v_lshrrev_b32 v2, 4, v0"); e("  v_lshl_add_u32 v1, v2, 3, v1")
e("  s_mov_b32 s50, 0xffff0000")
e("  v_readfirstlane_b32 s3, v23")
e("  s_andn2_b32 s53, s2, 7"); e("  s_lshl_b32 s53, s53, 2"); e("  s_lshr_b32 s62, s19, 1"); e("  s_add_u32 s53, s53, s62")
e("  s_lshl_b32 s53, s53, 7"); e(f"  s_add_u32 s53, s53, {FH_OFF}")
if OPT["dec"]:
    e("  s_add_u32 s52, s53, 64"); e("  s_cmp_eq_u32 s34, 3"); e("  s_cselect_b32 s53, s52, s53")
e("  s_max_u32 s52, s34, 1"); e("  s_sub_u32 s52, s52, 1")
e("  s_add_u32 s3, s3, s52"); e("  s_add_u32 s3, s3, 4")
e("  s_sub_u32 s62, 3, s52")
e("  s_lshl_b32 s52, s52, 2")
e("  v_add_u32 v26, s52, v20")
PR = [32, 33, 35, 36, 37, 38, 39, 51]
if OPT["rw"]:
    e("  s_add_u32 s52, s52, 4"); e("  s_min_u32 s52, s52, 8"); e("  v_add_u32 v26, s52, v20")
lds_spin(26, O_TG, 4, 24)
if OPT["rs0"]: e(f"  s_sleep {OPT['rs0']}")
stamp(7)
e(f"  s_mov_b32 s63, {OPT['spin']}")
e("L_rprobe:")
e("  s_sub_u32 s63, s63, 1"); e("  s_cmp_eq_u32 s63, 0"); e("  s_cbranch_scc1 L_fin")
for k in range(8): e(f"  s_load_dword s{PR[k]}, s[16:17], s53 offset:{k*512} glc")
e("  s_waitcnt lgkmcnt(0)")
for k in range(8):
    e(f"  s_sub_u32 s{PR[k]}, s{PR[k]}, s3")
    if k: e(f"  s_max_u32 s32, s32, s{PR[k]}")
e("  s_cmp_gt_u32 s32, s62")
e("  s_cbranch_scc1 L_rprobe")
stamp(10)
e("  s_cmp_eq_u32 s34, 3"); e("  s_cbranch_scc1 L_rtag")
if OPT["rlate"]: lds_spin(20, O_TG + 8, 4, 24)
R0 = 1 if OPT["own"] else 0
def accum(k, srcs):
    base = 100 if k == 0 else 116
    for p, r in enumerate(srcs):
        e(f"  v_lshlrev_b32 v{base+2*p}, 16, v{r}"); e(f"  v_and_b32 v{base+1+2*p}, s50, v{r}")
    if k:
        for p in range(len(srcs)): e(f"  v_pk_add_f32 v[{100+2*p}:{101+2*p}], v[{100+2*p}:{101+2*p}], v[{116+2*p}:{117+2*p}]")
for r in range(R0, 8): e(f"  buffer_load_dwordx4 v[{32+4*r}:{35+4*r}], v6, s[28:31], s{RS[r]} offen sc1")
if R0: e("  ds_read_b128 v[32:35], v8")
for r in range(8):
    e("  s_waitcnt lgkmcnt(0)" if (r == 0 and R0) else f"  s_waitcnt vmcnt({7-r})")
    accum(r, [32+4*r+x for x in range(4)])
for p in range(4): e(f"  v_cvt_pk_bf16_f32 v{32+p}, v{100+2*p}, v{101+2*p}")
stamp(8)
for k in range(2): e(f"  buffer_store_dwordx2 v[{32+2*k}:{33+2*k}], v1, s[24:27], s48 offen offset:{k*32}")
if STAMP: e("  s_waitcnt vmcnt(0)")
stamp(9)
e("  s_branch L_fin")
e("L_rtag:")
for r in range(R0, 8):
    e(f"  buffer_load_dwordx4 v[{32+8*r}:{35+8*r}], v6, s[28:31], s{RS[r]} offen sc1")
    e(f"  buffer_load_dwordx4 v[{36+8*r}:{39+8*r}], v7, s[28:31], s{RS[r]} offen sc1")
if R0:
    e("  ds_read_b128 v[32:35], v8"); e("  ds_read_b128 v[36:39], v8 offset:1024")
for r in range(8):
    e("  s_waitcnt lgkmcnt(0)" if (r == 0 and R0) else f"  s_waitcnt vmcnt({14-2*r})")
    a_, b_ = 32 + 8*r, 36 + 8*r
    e(f"  v_xor_b32 v{a_+3}, v23, v{a_+3}"); e(f"  v_xor_b32 v{b_+3}, v23, v{b_+3}")
    e(f"  v_or_b32 v24, v{a_+3}, v{b_+3}" if r == 0 else f"  v_or3_b32 v24, v{a_+3}, v{b_+3}, v24")
    accum(r, [a_, a_+1, a_+2, b_, b_+1, b_+2])
e("  v_cmp_ne_u32 vcc, 0, v24")
for p in range(6): e(f"  v_cvt_pk_bf16_f32 v{32+p}, v{100+2*p}, v{101+2*p}")
e("  s_cbranch_vccnz L_rprobe")
stamp(8)
for k in range(3): e(f"  buffer_store_dwordx2 v[{32+2*k}:{33+2*k}], v1, s[24:27], s48 offen offset:{k*32}")
if STAMP: e("  s_waitcnt vmcnt(0)")
stamp(9)
e("  s_branch L_fin")

e("L_poller:")
e(f"  s_mov_b32 s60, {OPT['spin']}")
e(f"  s_waitcnt vmcnt({VP})")
e("L_npoll:")
e("  v_readfirstlane_b32 s3, v23")
e("  s_cmp_lg_u32 s3, 0")
e("  s_cbranch_scc1 L_nok")
e("  s_sub_u32 s60, s60, 1")
e("  s_cmp_eq_u32 s60, 0")
e("  s_cbranch_scc1 L_nok")
e("  buffer_load_dword v23, v22, s[28:31], 0 offen sc1")
e("  s_waitcnt vmcnt(0)")
e("  s_branch L_npoll")
e("L_nok:")
e("  ds_write_b32 v20, v23")
e("  s_waitcnt lgkmcnt(0)")
e("  s_barrier")
for p in range(1, 4):
    e(f"  s_add_u32 s52, s20, {p}"); e("  s_and_b32 s52, s52, 3"); e("  s_lshl_b32 s52, s52, 3")
    e("  s_lshl_b32 s53, s21, 5"); e("  s_add_u32 s53, s53, s19"); e("  s_add_u32 s53, s53, s52")
    e("  s_lshl_b32 s53, s53, 9"); e(f"  s_add_u32 s{24+p}, s53, {FH_OFF}")
if OPT["xstop"]: e("  s_branch L_fin")
lds_spin(20, 12, 1, 24)
stamp(6)
e(f"  s_mov_b32 s60, {OPT['spin']}")
for k in range(12): e(f"  s_mov_b32 s{36+k}, 0")
for k in range(4): e(f"  s_mov_b32 s{48+k}, 0")
e("L_hpoll:")
if OPT["hsl"]: e(f"  s_sleep {OPT['hsl']}")
for mt in range(4):
    for p in range(3): e(f"  s_load_dword s{36+3*mt+p}, s[16:17], s{25+p} offset:{mt*128} glc")
if not OPT["pipe"] & 2: e("  s_waitcnt lgkmcnt(0)")
for mt in range(4):
    for p in range(3):
        d = "s32" if p == 0 else "s33"
        e(f"  s_sub_u32 {d}, s{36+3*mt+p}, s3"); e(f"  s_cmp_gt_u32 {d}, 7"); e(f"  s_cselect_b32 {d}, 0, {d}")
        if p: e("  s_min_u32 s32, s32, s33")
    e(f"  s_max_u32 s{48+mt}, s{48+mt}, s32")
    e(f"  v_mov_b32 v{28+mt}, s{48+mt}")
e(f"  ds_write_b128 v20, v[28:31] offset:{O_SIG}")
e("  s_min_u32 s35, s48, s49"); e("  s_min_u32 s32, s50, s51"); e("  s_min_u32 s35, s35, s32")
if STAMP:
    for st in (1, 2):
        e(f"  s_cmp_ge_u32 s35, {st}"); e(f"  s_cbranch_scc0 L_hs{st}")
        e(f"  s_cmp_eq_u32 s{SB+2*(2+st)}, 0"); e(f"  s_cbranch_scc0 L_hs{st}")
        stamp(2 + st); e("  s_waitcnt lgkmcnt(0)")
        e(f"L_hs{st}:")
    e(f"  s_add_u32 s{SB+2*13}, s{SB+2*13}, 1")
e("  s_sub_u32 s60, s60, 1"); e("  s_cmp_eq_u32 s60, 0"); e("  s_cbranch_scc1 L_hdone")
e("  s_cmp_ge_u32 s35, 3")
e("  s_cbranch_scc0 L_hpoll")
e("L_hdone:")
stamp(5)
e("  s_waitcnt lgkmcnt(0)")
e("  s_branch L_reduce")

LMODE[0] = False
e("L_compute:")
if OPT["prio"]: e(f"  s_setprio {OPT['prio']}")
NB = 6; D = 5
AB = 16; XB = 40; OWN = 56; ACC = 112; ACC2 = 184
e(f"  v_mov_b32 v1, {SY}")
e("  v_and_b32 v10, 31, v0")
e("  v_lshl_add_u32 v11, v10, 2, v1")
e("  v_mov_b32 v105, 0")
e("  ds_write_b32 v11, v105")
e("  v_lshrrev_b32 v10, 5, v0"); e("  v_lshlrev_b32 v10, 4, v10"); e("  v_bfe_u32 v11, v0, 2, 3"); e("  v_add_u32 v10, v10, v11")
e("  v_mul_u32_u24 v10, 288, v10"); e("  v_and_b32 v11, 3, v0"); e("  v_lshl_add_u32 v2, v11, 3, v10")
e("  v_lshrrev_b32 v10, 2, v0"); e("  v_mul_u32_u24 v10, 288, v10"); e("  v_lshl_add_u32 v6, v11, 3, v10")
e(f"  v_add_u32 v7, {6*IMG}, v6"); e(f"  v_add_u32 v8, {12*IMG}, v6")
e("  s_lshl_b32 s40, s18, 12"); e(f"  s_add_u32 s40, s40, {XBASE}")
e("  v_and_b32 v10, 15, v0"); e("  v_lshrrev_b32 v11, 1, v10"); e("  v_lshrrev_b32 v13, 4, v0"); e("  v_xor_b32 v11, v11, v13")
e("  v_lshlrev_b32 v11, 4, v11"); e("  v_lshl_add_u32 v10, v10, 7, v11")
e("  v_add_u32 v3, s40, v10"); e("  v_xor_b32 v10, 64, v10"); e("  v_add_u32 v4, s40, v10")
e("  v_lshlrev_b32 v5, 4, v0")
e("  v_mov_b32 v10, 1")
for i in range(144): e(f"  v_mov_b32 v{ACC+i}, 0")
K1 = -2*0.7978845608028654*1.4426950408889634
K3 = K1*0.044715
e(f"  s_mov_b32 s54, {f2u(K3)}"); e(f"  s_mov_b32 s55, {f2u(K3)}")
e(f"  v_mov_b32 v14, {f2u(K1)}"); e(f"  v_mov_b32 v15, {f2u(K1)}")
KS = [24, 25, 26, 27, 32, 33, 34, 35, 36, 37, 38, 39]
HV = [5, 9, 12, 13]
for k in range(12): e(f"  s_mov_b32 s{KS[k]}, {k*KST}")
e("  s_lshl_b32 s40, s21, 5"); e("  s_add_u32 s40, s40, s19"); e("  s_lshl_b32 s41, s18, 8"); e("  s_add_u32 s40, s40, s41")
for p in (3, 2, 1, 0):
    e(f"  s_add_u32 s41, s20, {p}"); e("  s_and_b32 s41, s41, 3"); e("  s_lshl_b32 s41, s41, 3"); e("  s_add_u32 s41, s41, s40")
    e("  s_lshl_b32 s41, s41, 10")
    e(f"  v_add_u32 v{HV[p]}, s41, v5")
e("  s_lshl_b32 s43, s2, 2"); e("  s_add_u32 s43, s43, s18"); e("  s_lshl_b32 s43, s43, 7"); e(f"  s_add_u32 s43, s43, {FH_OFF}")
e("  s_lshl_b32 s40, s18, 2")
e("  v_add_u32 v106, s40, v1")
e("  s_waitcnt lgkmcnt(0)")
srd(28, "s16", "s17", WS_USE)
e(f"  s_add_u32 s44, s16, {P_OFF}"); e("  s_addc_u32 s45, s17, 0"); e(f"  s_mov_b32 s46, {P_OFF}"); e("  s_mov_b32 s47, 0x00020000")
if OPT["cpf"]:
    e("  s_lshr_b32 s62, s2, 3"); e("  s_lshl_b32 s62, s62, 2"); e("  s_add_u32 s62, s62, s18")
    e("  s_getpc_b64 s[60:61]")
    e("L_pc:")
    e(f"  s_sub_u32 s60, s60, L_pc-{NAME}")
    e("  s_subb_u32 s61, s61, 0")
    e("  s_lshl_b32 s53, s62, 6")
    e("  s_load_dword s63, s[60:61], s53")
    e("  s_load_dword s63, s[60:61], s53 offset:8192")
    e("  s_add_u32 s53, s53, 16384")
    e(f"  s_min_u32 s53, s53, L_codeend-{NAME}-4")
    e("  s_load_dword s63, s[60:61], s53")
e("  s_or_b32 s53, s2, s18")
e("  s_cmp_eq_u32 s53, 0")
e("  s_cbranch_scc0 L_nononce")
srd(56, "s14", "s15", 256)
e("  s_memrealtime s[96:97]")
e("  s_waitcnt lgkmcnt(0)")
e("  s_lshl_b32 s53, s96, 3")
e("  s_max_u32 s53, s53, 8")
e("  v_mov_b32 v104, s53")
e("  buffer_store_dword v104, v105, s[56:59], 0 offen sc1")
e("L_nononce:")
if OPT["warmf"]:
    e("  s_mov_b64 exec, 1")
    e("  buffer_store_dword v105, v105, s[28:31], s43 offen sc1")
    e("  s_mov_b64 exec, -1")

def acc1(t, mat, mh):
    if t == 8: return ACC + 8*16 + mh*8 + mat*4
    return ACC + ((t//2)*2 + mh)*16 + (t & 1)*8 + mat*4
def a1read(j, d):
    kk, r = j // 18, j % 18
    t, mat = r // 2, r % 2
    b = AB + 4*(j % NB) + 2*d
    return f"  ds_read_b64_tr_b16 v[{b}:{b+1}], v2 offset:{kk*WSLOT + mat*IMG + d*8*288 + t*32}"
def x1read(kk, mh):
    b = XB + 8*kk + 4*mh
    return f"  ds_read_b128 v[{b}:{b+3}], v{3+kk} offset:{mh*2048}"
stamp(1)
e("  s_barrier")
stamp(2)
if STAMP: e("  s_waitcnt lgkmcnt(0)")
e(x1read(0, 0)); e(x1read(0, 1))
for j in range(D):
    e(a1read(j, 0)); e(a1read(j, 1))
e("  s_mov_b32 s48, 9")
e("  s_mov_b32 s51, 0")
e("L_loop:")
if OPT["cyc"]:
    e("  s_cmp_eq_u32 s48, 5"); e("  s_cbranch_scc0 L_nocyc")
    e("  s_memtime s[96:97]"); stamp(1)
    e("L_nocyc:")
e("  s_add_u32 s51, s51, 1"); e("  s_cmp_eq_u32 s51, 3")
e(f"  s_mov_b32 s52, {2*WSLOT}"); e(f"  s_cmov_b32 s52, {(-4*WSLOT) & 0xffffffff}")
e(f"  s_mov_b32 s53, {XSLOT}"); e(f"  s_cmov_b32 s53, {(-2*XSLOT) & 0xffffffff}")
e("  s_cselect_b32 s51, 0, s51")
q = [("x", 0), ("x", 0)] + [("a", j) for j in range(D) for _ in range(2)]
for j in range(36):
    kk, r = j // 18, j % 18
    t, mat = r // 2, r % 2
    if j == 18:
        e("  s_cmp_eq_u32 s48, 1"); e("  s_cbranch_scc1 L_peel")
        q_mid = list(q)
    if r == 18 - D:
        e("  s_barrier")
        if kk == 1:
            e("  v_add_u32 v2, s52, v2"); e("  v_add_u32 v3, s53, v3")
        e(x1read(1 - kk, 0)); e(x1read(1 - kk, 1)); q += [("x", kk+1)]*2
        if kk == 0: e("  v_add_u32 v4, s53, v4")
    WEV = OPT["wev"]
    want = [("a", j + x) for x in range(WEV)] if any(it == ("a", j) for it in q) else []
    need = [i for i, it in enumerate(q) if it in want or it == ("x", kk)]
    if need:
        e(f"  s_waitcnt lgkmcnt({len(q)-1-max(need)})")
        q = q[max(need)+1:]
    b = AB + 4*(j % NB)
    for mh in range(2):
        a = acc1(t, mat, mh); xb = XB + 8*kk + 4*mh
        e(f"  {M16} v[{a}:{a+3}], v[{b}:{b+3}], v[{xb}:{xb+3}], v[{a}:{a+3}]")
        e(a1read((j + D) % 36, mh)); q.append(("a", j + D))
e("  s_sub_u32 s48, s48, 1"); e("  s_branch L_loop")
e("L_peel:")
stamp(3)
if OPT["cyc"]:
    e("  s_memtime s[98:99]"); e("  s_waitcnt lgkmcnt(0)"); e(f"  s_sub_u32 s{SB+26}, s98, s96")
if OPT["ue"] < 0: lds_inc(1, O_G1, 10)
e("  ds_read_b32 v11, v1")
q_mid.append("n")

def blk(b): return [b, b+4, b+8]
BUF = {(0, 0): blk(OWN), (0, 1): blk(OWN+12), (0, 2): blk(OWN+24),
       (1, 0): blk(ACC), (2, 0): blk(ACC+12), (3, 0): blk(ACC+24),
       (1, 1): blk(ACC+36), (2, 1): blk(ACC+48), (3, 1): blk(ACC+60),
       (1, 2): blk(OWN), (2, 2): blk(OWN+12), (3, 2): blk(92)}
SH = {(0, 0): XB, (0, 1): XB+4, (1, 0): XB+8, (1, 1): XB+12}
vq = []
def gloads(p, g):
    return [f"  buffer_load_dwordx4 v[{r}:{r+3}], v{HV[p]}, s[28:31], s{KS[3*g+k]} offen sc1" for k, r in enumerate(BUF[(p, g)])]
def flag(stage):
    e(f"  v_add_u32 v104, {stage}, v11")
    e("  s_mov_b64 exec, 1")
    e(f"  buffer_store_dword v104, v105, s[28:31], s43 offen offset:{64 if (stage == 6 and OPT['dec']) else 0} sc1")
    e("  s_mov_b64 exec, -1")
    vq.append("f")
def wait_stores(lbl):
    global vq
    assert all(isinstance(it, str) for it in vq)
    k = max(i for i, it in enumerate(vq) if it == lbl)
    e(f"  s_waitcnt vmcnt({len(vq)-1-k})")
    vq = vq[k+1:]
TM = OPT["tm"]
TG = [[0, 1, 2, 3], [4, 5], [6, 7, 8]]
seq = [(ei, t) for ei in range(TM) for t in range(9)] + [(ei, t) for tg in range(3) for ei in range(TM, 18) for t in TG[tg]]
if OPT["df"] >= 0:
    DF = OPT["df"]
    seq = [(ei, t) for ei in range(DF) for t in range(9)] + [(ei, t) for ei in range(DF, TM) for t in TG[0] + TG[1]] + \
          [(ei, t) for tg in range(2) for ei in range(TM, 18) for t in TG[tg]] + [(ei, t) for ei in range(DF, 18) for t in TG[2]]
    assert DF >= 7
e("  s_lshr_b32 s40, s19, 1"); e("  s_and_b32 s49, s19, 1"); e("  s_cmp_eq_u32 s40, s18"); e("  s_cselect_b32 s49, s49, 2")
e("  v_lshlrev_b32 v107, 4, v0"); e(f"  v_add_u32 v107, {OWNL}, v107")
ownp = []
acks = {}
def first_use(ei): return min(n for n, (a_, _) in enumerate(seq) if a_ == ei)
def a2read(n, d):
    ei, t = seq[n]
    img = ei if ei < 17 else 0
    b = AB + 4*(n % NB) + 2*d
    return f"  ds_read_b64_tr_b16 v[{b}:{b+1}], v{6 + img//6} offset:{(img % 6)*IMG + d*16*288 + t*32}"
slow = []
def stages(ab, dst, tp):
    gs = [ab, ab+2, ab+8, ab+10]; us = [g + 4 for g in gs]
    P2 = lambda x: f"v[{x}:{x+1}]"
    A = [f"  v_pk_mul_f32 {P2(tp[p])}, {P2(gs[p])}, {P2(gs[p])}" for p in range(4)] + \
        [f"  v_pk_fma_f32 {P2(tp[p])}, {P2(tp[p])}, s[54:55], v[14:15]" for p in range(4)] + \
        [f"  v_pk_mul_f32 {P2(tp[p])}, {P2(tp[p])}, {P2(gs[p])}" for p in range(4)]
    E = [f"  v_exp_f32 v{tp[p]+h}, v{tp[p]+h}" for p in range(4) for h in range(2)]
    B1 = [f"  v_pk_mul_f32 {P2(gs[p])}, {P2(gs[p])}, {P2(us[p])}" for p in range(4)]
    B2 = [f"  v_pk_add_f32 {P2(tp[p])}, {P2(tp[p])}, 1.0 op_sel_hi:[1,0]" for p in range(4)]
    R = [f"  v_rcp_f32 v{tp[p]+h}, v{tp[p]+h}" for p in range(4) for h in range(2)]
    C = [f"  v_pk_mul_f32 {P2(gs[p])}, {P2(gs[p])}, {P2(tp[p])}" for p in range(4)] + \
        [f"  v_cvt_pk_bf16_f32 v{dst+p}, v{gs[p]}, v{gs[p]+1}" for p in range(4)]
    return A, E, B1, B2, R, C
def weave(t, o):
    r = []; o = list(o); n = len(t)
    for i, x in enumerate(t):
        r.append(x)
        k = -(-len(o) // (n - i))
        r += o[:k]; o = o[k:]
    return r + o
TS = [[XB, XB+2, XB+4, XB+6], [92, 94, 96, 98]]
U = [stages(ACC + 16*u, BUF[(0, u//3)][u % 3], TS[u & 1]) for u in range(9)]
V = []
if OPT["swp"]:
    V += [("need", 0)] + U[0][0]
    for u in range(9):
        A, E, B1, B2, R, C = U[u]
        V += weave(E, (U[u-1][5] + [("done", u-1)] if u else []) + B1)
        V += B2
        V += weave(R, ([("need", u+1)] + U[u+1][0]) if u < 8 else [])
    V += ["  s_nop 0"] + U[8][5] + [("done", 8)]
else:
    for u in range(9):
        A, E, B1, B2, R, C = U[u]
        V += [("need", u)] + A + E + B1 + B2 + R + ["  s_nop 0"] + C + [("done", u)]
lq = q_mid
mf_next = [0]
since = [99]
def emit_half():
    global lq
    f, mh = mf_next[0] // 2, mf_next[0] % 2
    j = 18 + f; t, mat = f // 2, f % 2
    if mh == 0:
        need = [i for i, it in enumerate(lq) if it == ("a", j) or it == ("x", 1)]
        if need:
            e(f"  s_waitcnt lgkmcnt({len(lq)-1-max(need)})")
            lq = lq[max(need)+1:]
    b = AB + 4*(j % NB); a = acc1(t, mat, mh); xb = XB + 8 + 4*mh
    e(f"  {M16} v[{a}:{a+3}], v[{b}:{b+3}], v[{xb}:{xb+3}], v[{a}:{a+3}]")
    lastm[(t, mh)] = len(out)
    if j + D < 36:
        e(a1read(j + D, mh)); lq.append(("a", j + D))
    mf_next[0] += 1
lastm = {}
def unit_tiles(u): return [(8, 0), (8, 1)] if u == 8 else [(2*(u//2), u % 2), (2*(u//2)+1, u % 2)]
def done(u):
    global lq
    g, k = u // 3, u % 3
    B = BUF[(0, g)]
    e(f"  buffer_store_dwordx4 v[{B[k]}:{B[k]+3}], v5, s[28:31], s{KS[u]} offen sc1"); vq.append(f"st{g}")
    if u == 2 and not OPT["wv"]:
        while mf_next[0] < 36: emit_half()
    if u == OPT["ue"] and OPT["un"] < 0:
        assert mf_next[0] == 36
        lds_inc(1, O_G1, 10); lq.append("c")
    if u == OPT["f1"] - 1:
        lds_inc(1, 12, 10); lq.append("c")
    if u == OPT["f1"]:
        if "n" in lq:
            e("  s_waitcnt lgkmcnt(0)"); lq = []
        wait_stores("st0"); flag(1); stamp(4)
    if OPT["pm"] and u == 6:
        e(f"  ds_read_b32 v4, v1 offset:{O_M}"); lq.append("c")
    if OPT["pm"] and u == 7:
        assert mf_next[0] == 36
        ls, lb = lab("slow"), lab("back")
        e("  s_waitcnt lgkmcnt(0)"); lq = []
        e("  v_readfirstlane_b32 s60, v4"); e("  s_cmp_ge_u32 s60, 3"); e(f"  s_cbranch_scc0 {ls}"); e(f"{lb}:")
        slow.append((ls, lb, 1, O_M, 3, 4))
        for n in range(D):
            e(a2read(n, 0)); e(a2read(n, 1))
    if u == OPT["ea"] - 1:
        e(f"  ds_read_b32 v3, v106 offset:{O_SIG}"); lq.append("c")
    if u == 8 and OPT["f2"] < 0:
        wait_stores("st1"); flag(2)
    if u == OPT["ea"]:
        e("  s_waitcnt lgkmcnt(0)"); lq = []
        e("  v_readfirstlane_b32 s42, v3")
        e("  s_cmp_ge_u32 s42, 1")
        e("  s_cbranch_scc0 L_noearly")
        for p in range(1, 4):
            for x in gloads(p, 0): e(x)
        e("L_noearly:")
for _ in range(2*(OPT["pre"] if OPT["peel"] else 18)): emit_half()
cnt = 0
for x in V:
    if isinstance(x, tuple):
        if x[0] == "need":
            lastfrag = 17 if x[1] == 8 else 4*(x[1]//2) + 3
            while mf_next[0] < 2*(lastfrag + 1): emit_half()
            gap = len(out) - max(lastm[tm] for tm in unit_tiles(x[1]))
            if gap < 8: e(f"  s_nop {7 - gap}")
        else: done(x[1])
        continue
    e(x); cnt += 1
    if OPT["wv"] and cnt % OPT["wv"] == 0 and mf_next[0] < 36: emit_half()
assert mf_next[0] == 36
stamp(5)
def hreg(ei, mh):
    p, i = ORDER[ei]
    if p == "S": return SH[(i, mh)]
    f = 2*i + mh
    return BUF[(p, f // 3)][f % 3]
def groups_needed(ei):
    p, i = ORDER[ei]
    if p == 0: return []
    if p == "S": return [(pp, 2) for pp in (2*i, 2*i+1) if pp]
    return sorted(set((p, (2*i+mh)//3) for mh in range(2)))
checked = set(); issued = set()
def piece_move(p):
    B = BUF[(p, 2)]
    for mh in range(2):
        for h in range(2): e(f"  v_mov_b32 v{SH[(p//2, mh)] + 2*(p & 1) + h}, v{B[2] + 2*mh + h}")
def gcheck(p, g):
    global vq
    assert (p, g) in issued, (p, g)
    idx = [i for i, it in enumerate(vq) if it == (p, g)]
    if idx:
        younger = [it for it in vq[max(idx)+1:] if not isinstance(it, str)]
        e(f"  s_waitcnt vmcnt({len(younger)})")
        vq = younger
    if g == 2:
        piece_move(p); e("  s_nop 1")
    checked.add((p, g))
piece_move(0)
checks = {}
def add_check(n, vaddr, off, val, post=None):
    assert n not in checks
    checks[n] = (vaddr, off, val, post)
LA, LB, LC = OPT["la"], OPT["lb"], OPT["lc"]
assert LC >= 28
add_check(first_use(4) - D, 1, O_M + 4, 3)
add_check(first_use(8) - D, 1, O_M + 8, 3)
add_check(first_use(12) - D, 1, O_M + 12, 3)
add_check(first_use(16) - D, 1, O_M + 16, 3)
add_check(LA, 106, O_SIG, 1, lambda: stamp(7))
add_check(LB, 106, O_SIG, 2)
add_check(LC, 106, O_SIG, 3)
chk_reg = {n: 2 + (i % 3) for i, n in enumerate(sorted(checks))}
events = {LA: (1, 0), LA+1: (2, 0), LA+2: (3, 0), LB: (1, 1), LB+2: (2, 1), LB+4: (3, 1), LC: (1, 2), LC+2: (2, 2), LC+4: (3, 2)}
if OPT["ea"] >= 0:
    for k_ in (LA, LA+1, LA+2): del events[k_]
q = []
if OPT["pm"]:
    assert OPT["ea"] == 8
    stamp(6)
else:
    lds_spin(1, O_M, 3, 2)
    stamp(6)
    if STAMP: e("  s_waitcnt lgkmcnt(0)")
    for n in range(D):
        e(a2read(n, 0)); e(a2read(n, 1)); q += [n, n]
N = len(seq); PRE = 4
assert min(checks) >= PRE
pend_epi = []
for n in range(N):
    ei, t = seq[n]
    if n == OPT["f2"]:
        wait_stores("st1"); flag(2)
    if n == OPT["f3"]:
        e("  s_waitcnt vmcnt(0)"); vq = []; flag(3)
    if n == OPT["un"]:
        lds_inc(1, O_G1, 10); q.append("c")
    if n == OPT["cons"]:
        lds_inc(1, O_CONS, 10); q.append("c")
    if n + PRE in checks:
        va, off, val, post = checks[n + PRE]
        e(f"  ds_read_b32 v{chk_reg[n+PRE]}, v{va} offset:{off}"); q.append(("chk", n + PRE))
    if n in checks:
        va, off, val, post = checks[n]
        need = [i for i, it in enumerate(q) if it == ("chk", n)]
        if need:
            e(f"  s_waitcnt lgkmcnt({len(q)-1-max(need)})")
            q = q[max(need)+1:]
        ls, lb = lab("slow"), lab("back")
        if n == LA and OPT["ea"] >= 0:
            e("  s_cmp_ge_u32 s42, 1")
            e("  s_cbranch_scc1 L_skipA")
        e(f"  v_readfirstlane_b32 s60, v{chk_reg[n]}")
        e(f"  s_cmp_ge_u32 s60, {val}")
        e(f"  s_cbranch_scc0 {ls}")
        e(f"{lb}:")
        slow.append((ls, lb, va, off, val, chk_reg[n]))
        if n == LA and OPT["ea"] >= 0:
            for p in range(1, 4):
                for x in gloads(p, 0): e(x); vq.append((p, 0))
                issued.add((p, 0))
            e("L_skipA:")
        if post: post()
    for pg in groups_needed(ei):
        if pg not in checked:
            gcheck(*pg)
            if pg == (1, 0):
                stamp(8)
                if OPT["cyc2"]: e("  s_memtime s[96:97]")
            if pg == (1, 2):
                stamp(9)
                if OPT["cyc2"]: e("  s_memtime s[100:101]")
    if n in events:
        for x in gloads(*events[n]): e(x); vq.append(events[n])
        issued.add(events[n])
    need = [i for i, it in enumerate(q) if it == n]
    if need:
        e(f"  s_waitcnt lgkmcnt({len(q)-1-max(need)})")
        q = q[max(need)+1:]
    b = AB + 4*(n % NB)
    for mh in range(2):
        a = ACC2 + t*8 + mh*4; hb = hreg(ei, mh)
        c = "0" if ei == 0 else f"v[{a}:{a+3}]"
        e(f"  {M16} v[{a}:{a+3}], v[{b}:{b+3}], v[{hb}:{hb+3}], {c}")
        if n + D < N:
            e(a2read(n + D, mh)); q.append(n + D)
    if n in acks:
        cnt, st = acks[n]
        e(f"  s_waitcnt vmcnt({cnt})"); flag(st)
    for tg in range(3):
        if ei == 17 and t == TG[tg][-1]: pend_epi.append((n + 3, tg))
    while pend_epi and (pend_epi[0][0] <= n or n == N - 1):
        _, tg = pend_epi.pop(0)
        assert all(isinstance(it, str) for it in vq)
        if n == N - 1 and tg == 2:
            stamp(10)
            if OPT["cyc2"]:
                e("  s_memtime s[98:99]"); e("  s_waitcnt lgkmcnt(0)"); e(f"  s_sub_u32 s{SB+26}, s98, s96"); e(f"  s_sub_u32 s{SB+2}, s100, s96"); e(f"  s_mov_b32 s{SB+3}, 0")
            e("  s_nop 7")
        PG = [BUF[(1, 0)][0], BUF[(1, 0)][1], BUF[(2, 0)][0], BUF[(2, 0)][1]]
        if tg == 1: PG = [BUF[(3, 0)][0], None, BUF[(3, 0)][1], None]
        for mh in range(2):
            g0, g1 = PG[2*mh], PG[2*mh+1]
            src = [ACC2 + t_*8 + mh*4 + 2*h for t_ in TG[tg] for h in range(2)]
            dst = [[g0, g0+1, g0+2, g0+3, g1, g1+1, g1+2, g1+3] if tg == 0 else None, [g0, g0+1, g0+2, g0+3],
                   [g0, g0+1, g0+2, g1, g1+1, g1+2] if tg == 2 else None][tg]
            for s_, d_ in zip(src, dst): e(f"  v_cvt_pk_bf16_f32 v{d_}, v{s_}, v{s_+1}")
            blks = [[(g0, mh*2, 0), (g1, mh*2+1, 1)], [(g0, 4+mh, 2)], [(g0, 6+mh*2, 3), (g1, 7+mh*2, 4)]][tg]
            if OPT["own"]:
                lo, lb = lab("own"), lab("ownb")
                e(f"  s_cmp_eq_u32 s49, {mh}"); e(f"  s_cbranch_scc1 {lo}")
                ownp.append((lo, lb, blks))
            for g_, k_, _l in blks:
                e(f"  buffer_store_dwordx4 v[{g_}:{g_+3}], v5, s[44:47], s{KS[k_]} offen sc1")
            if OPT["own"]: e(f"{lb}:")
        if tg == 1:
            for r_ in (BUF[(1, 0)][0], BUF[(1, 0)][1], BUF[(2, 0)][0], BUF[(2, 0)][1]): e(f"  v_mov_b32 v{r_+3}, v11")
            acks[n + OPT["a4"]] = (1 if OPT["own"] else 2, 4)
            if not OPT["dec"]: acks[N - 1 - OPT["a5"]] = (0, 5)
            assert n + OPT["a4"] < N - 1 - OPT["a5"]
        if tg == 2: flag(6)
        lds_inc(1, O_TG + 4*tg, 10); q.append("c")
        if tg == 2 and OPT["dec"]:
            e(f"  s_waitcnt vmcnt({3 if OPT['own'] else 5})"); flag(5)
stamp(11)
if STAMP:
    e("  s_waitcnt vmcnt(0)")
    stamp(12)
e("L_fin:")
stamp_flush()
e("L_end:")
e("  s_endpgm")
for ls, lb, va, off, val, vt in slow:
    e(f"{ls}:")
    lds_spin(va, off, val, vt)
    e(f"  s_branch {lb}")
for lo, lb, blks in ownp:
    e(f"{lo}:")
    for g_, k_, l_ in blks: e(f"  ds_write_b128 v107, v[{g_}:{g_+3}] offset:{l_*1024}")
    e(f"  s_branch {lb}")
e("L_codeend:")
e('.section .rodata,"a"\n.p2align 6')
e(f".amdhsa_kernel {NAME}")
e("  .amdhsa_next_free_vgpr 256\n  .amdhsa_next_free_sgpr 102\n  .amdhsa_accum_offset 256")
e("  .amdhsa_group_segment_fixed_size 0\n  .amdhsa_kernarg_size 56\n  .amdhsa_user_sgpr_count 2\n  .amdhsa_user_sgpr_kernarg_segment_ptr 1\n  .amdhsa_system_sgpr_workgroup_id_x 1\n.end_amdhsa_kernel")
print("\n".join(out))
```
